```python
import torch

def _softmax(x, axis=-1):
    return torch.softmax(x, dim=axis)
def _gelu(x):
    return torch.nn.functional.gelu(x, approximate="tanh")
def _silu(x):
    return torch.nn.functional.silu(x)
def _sigmoid(x):
    return torch.sigmoid(x)
def _layernorm(x, axis=-1, eps=1e-5):
    m = x.mean(dim=axis, keepdim=True)
    v = x.var(dim=axis, keepdim=True, unbiased=False)
    return (x - m) / torch.sqrt(v + eps)
def _scatter_add(tgt, idx, src, axis=0):
    return tgt.clone().index_add_(axis, idx, src)
def _segment_sum(src, seg, n):
    out = torch.zeros((n,) + src.shape[1:], dtype=src.dtype)
    return out.index_add_(0, seg, src)
def _pad(x, pw):
    flat = tuple(v for pair in reversed(pw) for v in pair)
    return torch.nn.functional.pad(x, flat)

kernel_name = 'concat_heads__grouped_kv_mqa__grouped_kv_mqa__prompt'

def setup_inputs():

    _w = (lambda a: (lambda t: t.to(torch.bfloat16) if t.is_floating_point() else t)(torch.as_tensor(a)))
    def _A_setup():
        B, S, D, H = 1, 2048, 1024, 32
        Dh = D // H
        return {
            "x": _w((lambda *s: torch.randn(*s, dtype=torch.bfloat16) * 0.05)(B, S, D)),
            "wq": _w((lambda *s: torch.randn(*s, dtype=torch.bfloat16) * 0.8)(D, H * Dh)),
            "wk": _w((lambda *s: torch.randn(*s, dtype=torch.bfloat16) * 0.8)(D, Dh)),
            "wv": _w((lambda *s: torch.randn(*s, dtype=torch.bfloat16) * 0.05)(D, Dh)),
            "wo": _w((lambda *s: torch.randn(*s, dtype=torch.bfloat16) * 0.05)(H * Dh, D)),
        }
    _A_in = _A_setup()

    def _B_setup():
        B, S, D, H = 1, 2048, 1024, 32
        Dh = D // H
        return {
            "x": _w((lambda *s: torch.randn(*s, dtype=torch.bfloat16) * 0.05)(B, S, D)),
            "wq": _w((lambda *s: torch.randn(*s, dtype=torch.bfloat16) * 0.8)(D, H * Dh)),
            "wk": _w((lambda *s: torch.randn(*s, dtype=torch.bfloat16) * 0.8)(D, Dh)),
            "wv": _w((lambda *s: torch.randn(*s, dtype=torch.bfloat16) * 0.05)(D, Dh)),
            "wo": _w((lambda *s: torch.randn(*s, dtype=torch.bfloat16) * 0.05)(H * Dh, D)),
        }
    _B_in = _B_setup()

    return {
        "A_x": _A_in["x"],
        "A_wq": _A_in["wq"],
        "A_wk": _A_in["wk"],
        "A_wv": _A_in["wv"],
        "A_wo": _A_in["wo"],
        "B_x": _B_in["x"],
        "B_wq": _B_in["wq"],
        "B_wk": _B_in["wk"],
        "B_wv": _B_in["wv"],
        "B_wo": _B_in["wo"],
    }

def reference(A_x, A_wq, A_wk, A_wv, A_wo, B_x, B_wq, B_wk, B_wv, B_wo):
    def _A_ref(x, wq, wk, wv, wo):
        B, S, D = x.shape
        H = 32
        Dh = D // H
        q = (lambda x, *d: x.permute(*d))((x @ wq).reshape(B, S, H, Dh), 0, 2, 1, 3)
        k = x @ wk
        v = x @ wv
        scores = torch.einsum("bhqd,bkd->bhqk", q, k) * (Dh ** -0.5)
        p = _softmax(scores, axis=-1)
        o = torch.einsum("bhqk,bkd->bhqd", p, v)
        return (lambda x, *d: x.permute(*d))(o, 0, 2, 1, 3).reshape(B, S, H * Dh) @ wo

    def _B_ref(x, wq, wk, wv, wo):
        B, S, D = x.shape
        H = 32
        Dh = D // H
        q = (lambda x, *d: x.permute(*d))((x @ wq).reshape(B, S, H, Dh), 0, 2, 1, 3)
        k = x @ wk
        v = x @ wv
        scores = torch.einsum("bhqd,bkd->bhqk", q, k) * (Dh ** -0.5)
        p = _softmax(scores, axis=-1)
        o = torch.einsum("bhqk,bkd->bhqd", p, v)
        return (lambda x, *d: x.permute(*d))(o, 0, 2, 1, 3).reshape(B, S, H * Dh) @ wo

    a = _A_ref(A_x, A_wq, A_wk, A_wv, A_wo)
    b = _B_ref(B_x, B_wq, B_wk, B_wv, B_wo)
    return torch.concatenate([a, b], axis=-1)
```

```python
import sys, math

NAME = "concat_heads__grouped_kv_mqa__grouped_kv_mqa__prompt"

class Asm:
    def __init__(self): self.l = []
    def __call__(self, s=""):
        if isinstance(s, (list, tuple)):
            for x in s: self(x)
        else: self.l.append("  " + s if s and not s.endswith(":") else s)
    def label(self, s): self.l.append(s + ":")
    def text(self): return "\n".join(self.l)

def vr(b, n=1): return f"v{b}" if n == 1 else f"v[{b}:{b+n-1}]"
def sr(b, n=1): return f"s{b}" if n == 1 else f"s[{b}:{b+n-1}]"

def interleave(main, others, lead=0, per=None):
    out = list(others[:lead]); rest = list(others[lead:])
    n = len(main)
    if n == 0: return out + rest
    for i, m in enumerate(main):
        out.append(m)
        if per is not None:
            k = min(per, len(rest))
        else:
            left = n - i
            k = -(-len(rest) // left)
        out += rest[:k]; rest = rest[k:]
    return out + rest

class VM:
    def __init__(self): self.ops = []
    def issue(self, tag): self.ops.append(tag)
    def wait_n(self, tag):
        idx = [i for i, t in enumerate(self.ops) if t == tag]
        assert idx, tag
        n = len(self.ops) - 1 - idx[-1]
        assert n <= 63
        return n

WS_KV = 0
WS_O  = 0x100000
KSCALE = (32 ** -0.5) * math.log2(math.e)
def f32hex(x):
    import struct
    return "0x%08x" % struct.unpack("<I", struct.pack("<f", x))[0]

S_WG=2
SRD_X=4; SRD_WQ=8; SRD_WKV=12; SRD_KV=16; SRD_O=20
S_CNT=24
S_W=26; S_B=27; S_R=28; S_G=29
S_T0=30; S_T1=31; S_T2=32; S_T3=33; S_T4=34; S_T5=35
PTR=36
S_XQ=62; S_WQ=63; S_XKV=64; S_WKV=65; S_M0=66; S_OFFA=67; S_OFFB=68; S_LOOP=69; S_KVOFF=70; S_KVM0=71
S_WM=72; S_WN=73; S_OST=74; S_SAVE=76
S_MASK=78
S_MASK2=80
S_TYPE=82

def decode_ids(a):
    a(f"s_and_b32 s{S_T0}, s{S_WG}, 7")
    a(f"s_lshr_b32 s{S_T1}, s{S_WG}, 3")
    a(f"s_lshr_b32 s{S_B}, s{S_T0}, 2")
    a(f"s_and_b32 s{S_T0}, s{S_T0}, 3")
    a(f"s_lshl_b32 s{S_T0}, s{S_T0}, 2")
    a(f"s_lshr_b32 s{S_R}, s{S_T1}, 3")
    a(f"s_add_u32 s{S_R}, s{S_R}, s{S_T0}")
    a(f"s_and_b32 s{S_G}, s{S_T1}, 7")

def load_ptrs(a):
    a(f"s_load_dwordx16 s[{PTR}:{PTR+15}], s[0:1], 0")
    a(f"s_load_dwordx8 s[{PTR+16}:{PTR+23}], s[0:1], 64")
    a(f"s_load_dwordx2 s[{PTR+24}:{PTR+25}], s[0:1], 96")
def sel_ptr(a, dst, idxA, idxB):
    a(f"s_cselect_b32 s{dst}, s{PTR+idxB}, s{PTR+idxA}")
    a(f"s_cselect_b32 s{dst+1}, s{PTR+idxB+1}, s{PTR+idxA+1}")
def srd_tail(a, srd, nbytes):
    a(f"s_and_b32 s{srd+1}, s{srd+1}, 0xffff")
    a(f"s_mov_b32 s{srd+2}, {nbytes}")
    a(f"s_mov_b32 s{srd+3}, 0x00020000")

def gen_k1(cfg):
    a = Asm()
    kname = cfg['k1']
    a(f".globl {kname}\n.p2align 8\n.type {kname},@function")
    a.label(kname)
    a(f"s_cmp_ge_u32 s{S_WG}, 256")
    a(f"s_cbranch_scc1 L_k1_end")
    load_ptrs(a)
    decode_ids(a)
    V_LANE=0; VOX=2; VOW=6; VOWKV=10; VXA=11; VXAH=13; VWA=15; VWAH=19; VKXA=23; VKWA=25; T=26
    ACC=32; FA=[96,128]; FB=[112,144]; KVACC=160; KVX=164; KVW=196
    a(f"v_lshrrev_b32 v{T}, 6, v0")
    a(f"v_and_b32 v{V_LANE}, 63, v0")
    a(f"s_nop 0")
    a(f"v_readfirstlane_b32 s{S_W}, v{T}")
    L3=T+1; L4=T+2; X1=T+3; X2=T+4; X3=T+5
    a(f"v_lshrrev_b32 v{L3}, 3, v{V_LANE}")
    a(f"v_lshrrev_b32 v{L4}, 4, v{V_LANE}")
    for i in range(4):
        a(f"v_add_u32 v{X1}, {4*i}, v{L4}")
        a(f"v_and_b32 v{X1}, 7, v{X1}")
        a(f"v_and_b32 v{X2}, 7, v{V_LANE}")
        a(f"v_xor_b32 v{X1}, v{X1}, v{X2}")
        a(f"v_lshlrev_b32 v{X1}, 4, v{X1}")
        a(f"v_lshlrev_b32 v{X2}, 11, v{L3}")
        a(f"v_add_u32 v{X1}, v{X1}, v{X2}")
        a(f"v_add_u32 v{VOX+i}, {8*i*2048 - i*1024}, v{X1}")
    for j in range(4):
        a(f"v_and_b32 v{X1}, 15, v{V_LANE}")
        a(f"v_lshrrev_b32 v{X2}, 1, v{X1}")
        a(f"v_or_b32 v{X3}, {((j>>1)&1)<<2}, v{L4}")
        a(f"v_xor_b32 v{X2}, v{X2}, v{X3}")
        a(f"v_lshlrev_b32 v{X2}, 5, v{X2}")
        a(f"v_and_b32 v{X1}, 1, v{X1}")
        a(f"v_lshlrev_b32 v{X1}, 4, v{X1}")
        a(f"v_add_u32 v{X1}, v{X1}, v{X2}")
        a(f"v_lshlrev_b32 v{X2}, 11, v{L4}")
        a(f"v_add_u32 v{X1}, v{X1}, v{X2}")
        a(f"v_add_u32 v{VOW+j}, {4*j*2048 - j*1024}, v{X1}")
    a(f"v_lshrrev_b32 v{X1}, 5, v{V_LANE}")
    a(f"v_lshlrev_b32 v{X1}, 1, v{X1}")
    a(f"v_and_b32 v{X2}, 3, v{V_LANE}")
    a(f"v_xor_b32 v{X1}, v{X1}, v{X2}")
    a(f"v_lshlrev_b32 v{X1}, 4, v{X1}")
    a(f"v_lshrrev_b32 v{X2}, 2, v{V_LANE}")
    a(f"v_lshlrev_b32 v{X2}, 6, v{X2}")
    a(f"v_add_u32 v{VOWKV}, v{X1}, v{X2}")
    a(f"s_and_b32 s{S_WN}, s{S_W}, 1")
    a(f"s_lshr_b32 s{S_WM}, s{S_W}, 1")
    a(f"v_and_b32 v{X1}, 15, v{V_LANE}")
    a(f"v_lshrrev_b32 v{X2}, 1, v{X1}")
    a(f"v_lshlrev_b32 v{X3}, 7, v{X1}")
    a(f"s_lshl_b32 s{S_T0}, s{S_WM}, 13")
    a(f"s_lshl_b32 s{S_T1}, s{S_WM}, 11")
    for s in range(2):
        a(f"v_add_u32 v{L3}, {4*s}, v{L4}")
        a(f"v_xor_b32 v{L3}, v{L3}, v{X2}")
        a(f"v_lshlrev_b32 v{L3}, 4, v{L3}")
        a(f"v_add_u32 v{L3}, v{L3}, v{X3}")
        a(f"v_add_u32 v{VXA+s}, s{S_T0}, v{L3}")
        a(f"v_add_u32 v{VXAH+s}, 0x10000, v{VXA+s}")
        a(f"v_add_u32 v{VKXA+s}, s{S_T1}, v{L3}")
    a(f"v_lshrrev_b32 v{X2}, 2, v{X1}")
    a(f"v_and_b32 v{L3}, 1, v{L4}")
    a(f"v_lshlrev_b32 v{X3}, 2, v{L3}")
    a(f"v_or_b32 v{X3}, v{X3}, v{X2}")
    a(f"v_lshlrev_b32 v{T}, 3, v{L4}")
    a(f"v_add_u32 v{T}, v{T}, v{X2}")
    a(f"v_and_b32 v{X1}, 3, v{X1}")
    a(f"v_lshlrev_b32 v{X1}, 3, v{X1}")
    a(f"s_lshl_b32 s{S_T0}, s{S_WN}, 2")
    a(f"v_xor_b32 v{L3}, s{S_WN}, v{L3}")
    a(f"v_lshlrev_b32 v{L3}, 5, v{L3}")
    a(f"v_lshlrev_b32 v{X2}, 6, v{T}")
    a(f"v_add3_u32 v{VKWA}, v{L3}, v{X2}, v{X1}")
    a(f"v_add_u32 v{VKWA}, 16384, v{VKWA}")
    a(f"v_lshlrev_b32 v{T}, 8, v{T}")
    a(f"v_add_u32 v{T}, v{T}, v{X1}")
    a(f"v_add_u32 v{T}, 16384, v{T}")
    for cc in range(4):
        a(f"s_add_u32 s{S_T1}, s{S_T0}, {cc}")
        a(f"v_xor_b32 v{X2}, s{S_T1}, v{X3}")
        a(f"v_lshlrev_b32 v{X2}, 5, v{X2}")
        a(f"v_add_u32 v{VWA+cc}, v{X2}, v{T}")
        a(f"v_add_u32 v{VWAH+cc}, 0x10000, v{VWA+cc}")
    a(f"s_lshl_b32 s{S_T0}, s{S_R}, 18")
    a(f"s_lshl_b32 s{S_T1}, s{S_W}, 16")
    a(f"s_add_u32 s{S_XQ}, s{S_T0}, s{S_T1}")
    a(f"s_lshl_b32 s{S_T1}, s{S_W}, 15")
    a(f"s_lshl_b32 s{S_T2}, s{S_G}, 8")
    a(f"s_add_u32 s{S_WQ}, s{S_T1}, s{S_T2}")
    a(f"s_lshr_b32 s{S_T1}, s{S_G}, 1")
    a(f"s_lshl_b32 s{S_T1}, s{S_T1}, 16")
    a(f"s_add_u32 s{S_XKV}, s{S_T0}, s{S_T1}")
    a(f"s_lshl_b32 s{S_T1}, s{S_W}, 7")
    a(f"s_add_u32 s{S_XKV}, s{S_XKV}, s{S_T1}")
    a(f"s_lshl_b32 s{S_M0}, s{S_W}, 12")
    a(f"s_and_b32 s{S_TYPE}, s{S_G}, 1")
    a("s_waitcnt lgkmcnt(0)")
    a(f"s_cmp_lg_u32 s{S_B}, 0")
    sel_ptr(a, SRD_X, 0, 10)
    sel_ptr(a, SRD_WQ, 2, 12)
    sel_ptr(a, S_T0, 4, 14)
    sel_ptr(a, S_T2, 6, 16)
    a(f"s_cmp_lg_u32 s{S_TYPE}, 0")
    a(f"s_cselect_b32 s{SRD_WKV}, s{S_T2}, s{S_T0}")
    a(f"s_cselect_b32 s{SRD_WKV+1}, s{S_T2+1}, s{S_T0+1}")
    srd_tail(a, SRD_X, 2048*2048)
    srd_tail(a, SRD_WQ, 1024*2048)
    srd_tail(a, SRD_WKV, 1024*64)
    a(f"s_lshl_b32 s{S_T0}, s{S_B}, 18")
    a(f"s_add_u32 s{SRD_KV}, s{PTR+24}, s{S_T0}")
    a(f"s_addc_u32 s{SRD_KV+1}, s{PTR+25}, 0")
    srd_tail(a, SRD_KV, 262144)
    a(f"s_lshl_b32 s{S_T0}, s{S_B}, 22")
    a(f"s_add_u32 s{S_T0}, s{S_T0}, {WS_O}")
    a(f"s_add_u32 s{SRD_O}, s{PTR+24}, s{S_T0}")
    a(f"s_addc_u32 s{SRD_O+1}, s{PTR+25}, 0")
    srd_tail(a, SRD_O, 4*1024*1024)
    a(f"s_lshl_b32 s{S_T0}, s{S_B}, 7")
    a(f"s_add_u32 s{S_CNT}, s{PTR+22}, s{S_T0}")
    a(f"s_addc_u32 s{S_CNT+1}, s{PTR+23}, 0")

    vm = VM()
    NSLOT=4; SLOT=32768
    def dma_stage(gs):
        o = []
        slot = gs % NSLOT
        if gs < 4:
            j = gs
            o.append(f"s_add_u32 m0, s{S_M0}, {slot*SLOT}")
            o.append(f"s_add_u32 s{S_OFFA}, s{S_XKV}, {j*512}")
            for i in range(4):
                o.append(f"buffer_load_dwordx4 v{VOX+i}, s[{SRD_X}:{SRD_X+3}], s{S_OFFA} offen offset:{i*1024} lds"); vm.issue(('st',gs))
            o.append(f"s_add_u32 m0, s{S_M0}, {slot*SLOT+16384}")
            o.append(f"s_add_u32 s{S_OFFB}, s{S_M0}, {j*16384}")
            for i in range(4):
                o.append(f"buffer_load_dwordx4 v{VOWKV}, s[{SRD_WKV}:{SRD_WKV+3}], s{S_OFFB} offen offset:{i*1024} lds"); vm.issue(('st',gs))
        else:
            qs = gs-4
            o.append(f"s_add_u32 m0, s{S_M0}, {slot*SLOT}")
            o.append(f"s_add_u32 s{S_OFFA}, s{S_XQ}, {qs*128}")
            for i in range(4):
                o.append(f"buffer_load_dwordx4 v{VOX+i}, s[{SRD_X}:{SRD_X+3}], s{S_OFFA} offen offset:{i*1024} lds"); vm.issue(('st',gs))
            o.append(f"s_add_u32 m0, s{S_M0}, {slot*SLOT+16384}")
            o.append(f"s_add_u32 s{S_OFFB}, s{S_WQ}, {qs*131072}")
            for j in range(4):
                o.append(f"buffer_load_dwordx4 v{VOW+j}, s[{SRD_WQ}:{SRD_WQ+3}], s{S_OFFB} offen offset:{j*1024} lds"); vm.issue(('st',gs))
        return o

    a(dma_stage(0)); a(dma_stage(1)); a(dma_stage(2))
    for i in range(4): a(f"v_mov_b32 v{KVACC+i}, 0")
    for gs in range(4):
        a(f"s_waitcnt vmcnt({vm.wait_n(('st',gs))})")
        a("s_barrier")
        a(dma_stage(gs+3))
        hi = (gs >= 2)
        so = (gs % 2) * SLOT
        if gs == 2:
            for r_ in (VKXA, VKXA+1, VKWA): a(f"v_add_u32 v{r_}, 0x10000, v{r_}")
        for s in range(8):
            a(f"ds_read_b128 {vr(KVX+4*s,4)}, v{VKXA+(s&1)} offset:{so + (s>>1)*4096}")
            a(f"ds_read_b64_tr_b16 {vr(KVW+4*s,2)}, v{VKWA} offset:{so + (32*s)*64}")
            a(f"ds_read_b64_tr_b16 {vr(KVW+4*s+2,2)}, v{VKWA} offset:{so + (32*s+4)*64}")
        a("s_waitcnt lgkmcnt(0)")
        a(f"s_cmp_lg_u32 s{S_TYPE}, 0")
        a(f"s_cbranch_scc1 L_kv_v{gs}")
        for s in range(8):
            a(f"v_mfma_f32_16x16x32_bf16 {vr(KVACC,4)}, {vr(KVW+4*s,4)}, {vr(KVX+4*s,4)}, {vr(KVACC,4)}")
        a(f"s_branch L_kv_e{gs}")
        a.label(f"L_kv_v{gs}")
        for s in range(8):
            a(f"v_mfma_f32_16x16x32_bf16 {vr(KVACC,4)}, {vr(KVX+4*s,4)}, {vr(KVW+4*s,4)}, {vr(KVACC,4)}")
        a.label(f"L_kv_e{gs}")

    def kv_epilogue():
        o = []
        c=T; g_=T+1; x1=T+2; x2=T+3; ad=T+4
        o.append(f"v_and_b32 v{c}, 15, v{V_LANE}")
        o.append(f"v_lshrrev_b32 v{g_}, 4, v{V_LANE}")
        o.append(f"s_cmp_lg_u32 s{S_TYPE}, 0")
        o.append(f"s_cselect_b32 s{S_T0}, s{S_WM}, s{S_WN}")
        o.append(f"s_cselect_b32 s{S_T1}, s{S_WN}, s{S_WM}")
        o.append(f"s_cselect_b32 s{S_T2}, 0, 1")
        o.append(f"s_lshl_b32 s{S_T0}, s{S_T0}, 10")
        o.append(f"s_lshl_b32 s{S_T1}, s{S_T1}, 8")
        o.append(f"s_add_u32 s{S_T0}, s{S_T0}, s{S_T1}")
        o.append(f"s_lshl_b32 s{S_T1}, s{S_TYPE}, 11")
        o.append(f"s_add_u32 s{S_T0}, s{S_T0}, s{S_T1}")
        o.append(f"s_lshl_b32 s{S_T1}, s{S_R}, 2")
        o.append(f"s_lshr_b32 s{S_T3}, s{S_G}, 1")
        o.append(f"s_add_u32 s{S_T1}, s{S_T1}, s{S_T3}")
        o.append(f"s_lshl_b32 s{S_T1}, s{S_T1}, 12")
        o.append(f"s_add_u32 s{S_T0}, s{S_T0}, s{S_T1}")
        o.append(f"v_lshrrev_b32 v{x1}, s{S_T2}, v{g_}")
        o.append(f"v_and_b32 v{x1}, 1, v{x1}")
        o.append(f"v_lshlrev_b32 v{x1}, 9, v{x1}")
        o.append(f"s_xor_b32 s{S_T2}, s{S_T2}, 1")
        o.append(f"v_lshrrev_b32 v{x2}, s{S_T2}, v{g_}")
        o.append(f"v_and_b32 v{x2}, 1, v{x2}")
        o.append(f"v_lshlrev_b32 v{x2}, 3, v{x2}")
        o.append(f"v_lshlrev_b32 v{ad}, 4, v{c}")
        o.append(f"v_add3_u32 v{ad}, v{ad}, v{x1}, v{x2}")
        o.append(f"s_cmp_lg_u32 s{S_TYPE}, 0")
        o.append(f"s_cselect_b32 s{S_T1}, 1.0, {f32hex(KSCALE)}")
        o.append("s_nop 3")
        for i in range(4): o.append(f"v_mul_f32 v{KVACC+i}, s{S_T1}, v{KVACC+i}")
        o.append(f"v_cvt_pk_bf16_f32 v{KVACC}, v{KVACC}, v{KVACC+1}")
        o.append(f"v_cvt_pk_bf16_f32 v{KVACC+1}, v{KVACC+2}, v{KVACC+3}")
        o.append(f"buffer_store_dwordx2 {vr(KVACC,2)}, v{ad}, s[{SRD_KV}:{SRD_KV+3}], s{S_T0} offen sc1"); vm.issue('kvst')
        return o

    def q_reads(qs, s, fset):
        slot = (qs+4) % NSLOT
        hi = slot >= 2
        so = (slot % 2) * SLOT
        o = []
        xa = (VXAH if hi else VXA) + s
        wa = (VWAH if hi else VWA)
        for cc in range(4):
            o.append(f"ds_read_b64_tr_b16 {vr(FA[fset]+4*cc,2)}, v{wa+cc} offset:{so + (32*s)*256}")
            o.append(f"ds_read_b64_tr_b16 {vr(FA[fset]+4*cc+2,2)}, v{wa+cc} offset:{so + (32*s+4)*256}")
            o.append(f"ds_read_b128 {vr(FB[fset]+4*cc,4)}, v{xa} offset:{so + cc*2048}")
        return o
    def q_mfmas(fset):
        o = []
        for cc in range(4):
            for rt in range(4):
                acc = ACC + (cc*4+rt)*4
                o.append(f"v_mfma_f32_16x16x32_bf16 {vr(acc,4)}, {vr(FA[fset]+4*cc,4)}, {vr(FB[fset]+4*rt,4)}, {vr(acc,4)}")
        return o
    for i in range(64): a(f"v_mov_b32 v{ACC+i}, 0")
    POLL = T+5
    for qs in range(16):
        gs = qs+4
        need = vm.wait_n(('st',gs))
        if qs == 2: need = min(need, vm.wait_n('kvst'))
        if gs == 18: need = min(need, vm.wait_n('poll'))
        a(f"s_waitcnt vmcnt({need}) lgkmcnt(0)")
        a("s_barrier")
        pre = []
        if qs == 0: pre = kv_epilogue()
        if qs == 2:
            a(f"s_cmp_lg_u32 s{S_W}, 0")
            a(f"s_cbranch_scc1 L_nopub")
            a(f"v_mov_b32 v{T}, 0")
            a(f"v_mov_b32 v{T+1}, 1")
            a(f"s_mov_b64 s[{S_SAVE}:{S_SAVE+1}], exec")
            a(f"s_mov_b64 exec, 1")
            a(f"global_atomic_add v{T}, v{T+1}, s[{S_CNT}:{S_CNT+1}] sc1")
            a(f"s_mov_b64 exec, s[{S_SAVE}:{S_SAVE+1}]")
            a.label("L_nopub")
        if gs == 16:
            a(f"v_mov_b32 v{T}, 0")
            a(f"global_load_dword v{POLL}, v{T}, s[{S_CNT}:{S_CNT+1}] sc1"); vm.issue('poll')
        if gs == 18:
            a(f"v_readfirstlane_b32 s{S_T0}, v{POLL}")
            a("s_nop 3")
            a(f"s_cmp_ge_u32 s{S_T0}, 128")
            a(f"s_cbranch_scc1 L_kvready")
            a.label("L_spin")
            a("s_sleep 2")
            a(f"v_mov_b32 v{T}, 0")
            a(f"global_load_dword v{POLL}, v{T}, s[{S_CNT}:{S_CNT+1}] sc1")
            a("s_waitcnt vmcnt(0)")
            a(f"v_readfirstlane_b32 s{S_T0}, v{POLL}")
            a("s_nop 3")
            a(f"s_cmp_lt_u32 s{S_T0}, 128")
            a(f"s_cbranch_scc1 L_spin")
            a.label("L_kvready")
            a(f"v_lshlrev_b32 v{T}, 4, v{V_LANE}")
            a(f"s_lshl_b32 s{S_KVOFF}, s{S_W}, 12")
            for st in range(2):
                a(f"s_add_u32 m0, s{S_M0}, {131072 + st*16384}")
                a(f"s_add_u32 s{S_OFFA}, s{S_KVOFF}, {st*16384}")
                for i in range(4):
                    a(f"buffer_load_dwordx4 v{T}, s[{SRD_KV}:{SRD_KV+3}], s{S_OFFA} offen offset:{i*1024} sc1 lds"); vm.issue(('kv',st))
        a(pre)
        d = dma_stage(gs+3) if gs+3 < 20 else []
        r0 = q_reads(qs, 0, 0)
        if qs == 0:
            a(r0); a(d)
        else:
            a(interleave(q_mfmas(1), r0 + d, lead=3))
        a("s_waitcnt lgkmcnt(0)")
        a(interleave(q_mfmas(0), q_reads(qs, 1, 1), lead=0))
    a("s_waitcnt lgkmcnt(0)")
    a(q_mfmas(1))
    a("s_barrier")

    ONES=4; IDX=8; VA=10; VB=11; VDMA=12; XT=13
    Q=96; O=32; L=128; S=[144,160]; P=[176,184]; K=[192,200]; V=[208,216]
    a(f"v_lshlrev_b32 v{VDMA}, 4, v{V_LANE}")
    a(f"s_mov_b32 m0, s{S_M0}")
    a(f"s_add_u32 s{S_OFFA}, s{S_KVOFF}, {2*16384}")
    for i in range(4):
        a(f"buffer_load_dwordx4 v{VDMA}, s[{SRD_KV}:{SRD_KV+3}], s{S_OFFA} offen offset:{i*1024} sc1 lds"); vm.issue(('kv',2))
    a("s_nop 7")
    for hh in range(2):
        for rb in range(2):
            t = hh*2+rb
            for m in range(2):
                cc = 2*hh+m
                x = ACC + (cc*4+2*rb)*4; y = ACC + (cc*4+2*rb+1)*4
                q = Q + t*8 + m*4
                a(f"v_cvt_pk_bf16_f32 v{q}, v{x}, v{x+1}")
                a(f"v_cvt_pk_bf16_f32 v{q+1}, v{x+2}, v{x+3}")
                a(f"v_cvt_pk_bf16_f32 v{q+2}, v{y}, v{y+1}")
                a(f"v_cvt_pk_bf16_f32 v{q+3}, v{y+2}, v{y+3}")
    a("s_nop 1")
    for t in range(4):
        for m in range(2):
            q = Q + t*8 + m*4
            a(f"v_permlane16_swap_b32 v{q}, v{q+2}")
            a(f"v_permlane16_swap_b32 v{q+1}, v{q+3}")
    if cfg.get('dump_q'):
        a(f"s_lshl_b32 s{S_T0}, s{S_WG}, 15")
        a(f"s_lshl_b32 s{S_T1}, s{S_W}, 13")
        a(f"s_add_u32 s{S_T0}, s{S_T0}, s{S_T1}")
        a(f"s_add_u32 s{S_T0}, s{S_T0}, 0x1000000")
        a(f"s_add_u32 s{S_T2}, s{PTR+24}, s{S_T0}")
        a(f"s_addc_u32 s{S_T3}, s{PTR+25}, 0")
        for t in range(4):
            for m in range(2):
                a(f"v_add_u32 v{XT}, {t*2048+m*1024}, v{VDMA}")
                a(f"global_store_dwordx4 v{XT}, {vr(Q+t*8+m*4,4)}, s[{S_T2}:{S_T3}]"); vm.issue('dump')
    for i in range(64): a(f"v_mov_b32 v{O+i}, 0")
    for i in range(16): a(f"v_mov_b32 v{L+i}, 0")
    for i in range(8): a(f"v_mov_b32 v{P[1]+i}, 0")
    for i in range(8): a(f"v_mov_b32 v{V[1]+i}, 0")
    a(f"v_and_b32 v{XT}, 15, v{V_LANE}")
    a(f"v_mov_b32 v{XT+1}, 0x3f803f80")
    a(f"v_cmp_gt_u32 vcc, 2, v{XT}")
    a("s_nop 1")
    a(f"v_cndmask_b32 v{ONES}, 0, v{XT+1}, vcc")
    a(f"v_cndmask_b32 v{ONES+1}, 0, v{XT+1}, vcc")
    a(f"v_lshrrev_b32 v{XT+2}, 1, v{XT}")
    a(f"v_cmp_eq_u32 vcc, 1, v{XT+2}")
    a("s_nop 1")
    a(f"v_cndmask_b32 v{ONES+2}, 0, v{XT+1}, vcc")
    a(f"v_cndmask_b32 v{ONES+3}, 0, v{XT+1}, vcc")
    a(f"v_and_b32 v{XT+2}, 1, v{XT}")
    a(f"v_cmp_eq_u32 vcc, 1, v{XT+2}")
    a(f"v_mov_b32 v{XT+1}, 0x4444")
    a(f"v_mov_b32 v{XT+2}, 0xeeee")
    a(f"v_cndmask_b32 v{IDX}, v{XT+1}, v{XT+2}, vcc")
    a(f"v_add_u32 v{VA}, 0x20000, v{VDMA}")
    a(f"v_mov_b32 v{VB}, v{VDMA}")
    a(f"s_waitcnt vmcnt({vm.wait_n(('kv',0))})")
    a("s_barrier")
    a(f"ds_read_b128 {vr(K[0],4)}, v{VA} offset:0")
    a(f"ds_read_b128 {vr(K[0]+4,4)}, v{VA} offset:1024")
    a(f"ds_read_b128 {vr(V[0],4)}, v{VA} offset:2048")
    a(f"ds_read_b128 {vr(V[0]+4,4)}, v{VA} offset:3072")
    a(f"ds_read_b128 {vr(K[1],4)}, v{VA} offset:4096")
    a(f"ds_read_b128 {vr(K[1]+4,4)}, v{VA} offset:{4096+1024}")
    a("s_waitcnt lgkmcnt(0)")
    a(f"v_mfma_f32_32x32x16_bf16 {vr(S[0],16)}, {vr(K[0],4)}, {vr(Q,4)}, 0")
    a(f"v_mfma_f32_32x32x16_bf16 {vr(S[0],16)}, {vr(K[0]+4,4)}, {vr(Q+4,4)}, {vr(S[0],16)}")
    a(f"s_add_u32 s{S_KVOFF}, s{S_KVOFF}, {3*16384}")
    a(f"s_add_u32 s{S_KVM0}, s{S_M0}, 16384")
    a(f"s_mov_b32 s{S_LOOP}, 8")
    a("s_nop 7")
    a("s_nop 3")
    a(".p2align 6")
    a.label("L_attn")
    patt = cfg.get('patt', "A e e e c B e e c e C e c e e D c e R e c e e c e e c e S c").split()
    assert patt.count('e') == 16 and patt.count('c') == 8
    NQ = 4
    for step in range(8):
        for t in range(NQ):
            u = step*NQ + t
            un = u+1; stepn = un//NQ; tn = un % NQ
            up = u-1; stepp = up//NQ; tp = up % NQ
            sc = S[u%2]; sn = S[(u+1)%2]; Pp = P[(u-1)%2]; Pc = P[u%2]
            M = {
              'A': f"v_mfma_f32_32x32x16_bf16 {vr(sn,16)}, {vr(K[stepn%2],4)}, {vr(Q+tn*8,4)}, 0",
              'B': f"v_mfma_f32_32x32x16_bf16 {vr(sn,16)}, {vr(K[stepn%2]+4,4)}, {vr(Q+tn*8+4,4)}, {vr(sn,16)}",
              'C': f"v_mfma_f32_32x32x16_bf16 {vr(O+tp*16,16)}, {vr(V[stepp%2],4)}, {vr(Pp,4)}, {vr(O+tp*16,16)}",
              'D': f"v_mfma_f32_32x32x16_bf16 {vr(O+tp*16,16)}, {vr(V[stepp%2]+4,4)}, {vr(Pp+4,4)}, {vr(O+tp*16,16)}",
              'S': f"v_smfmac_f32_16x16x64_bf16 {vr(L+tp*4,4)}, {vr(ONES,4)}, {vr(Pp,8)}, v{IDX}",
            }
            ei = ci = 0
            for tok in patt:
                if tok == 'e': a(f"v_exp_f32 v{sc+ei}, v{sc+ei}"); ei += 1
                elif tok == 'c': a(f"v_cvt_pk_bf16_f32 v{Pc+ci}, v{sc+2*ci}, v{sc+2*ci+1}"); ci += 1
                elif tok == 'x': a("s_nop 0")
                elif tok == 'R':
                    if t == NQ-1:
                        if step % 4 == 2:
                            a("s_waitcnt vmcnt(4)")
                            a("s_barrier")
                            a(f"s_mov_b32 m0, s{S_KVM0}")
                            for i in range(4):
                                a(f"buffer_load_dwordx4 v{VDMA}, s[{SRD_KV}:{SRD_KV+3}], s{S_KVOFF} offen offset:{i*1024} sc1 lds")
                            a(f"s_add_u32 s{S_KVOFF}, s{S_KVOFF}, 16384")
                            if step == 2:
                                a(f"s_xor_b32 s{S_KVM0}, s{S_KVM0}, {0x20000 ^ 0x4000}")
                            else:
                                a(f"s_xor_b32 s{S_KVM0}, s{S_KVM0}, 0x4000")
                        def addr(st):
                            return (VA, st*4096) if st < 8 else (VB, (st-8)*4096)
                        rv, ov = addr(step+1); rk, ok = addr(step+2)
                        a(f"ds_read_b128 {vr(V[(step+1)%2],4)}, v{rv} offset:{ov+2048}")
                        a(f"ds_read_b128 {vr(V[(step+1)%2]+4,4)}, v{rv} offset:{ov+3072}")
                        a(f"ds_read_b128 {vr(K[step%2],4)}, v{rk} offset:{ok}")
                        a(f"ds_read_b128 {vr(K[step%2]+4,4)}, v{rk} offset:{ok+1024}")
                else:
                    if tok == 'A' and tn == 0: a("s_waitcnt lgkmcnt(0)")
                    if tok == 'C' and tp == 0: a("s_waitcnt lgkmcnt(2)")
                    a(M[tok])
    a(f"v_xor_b32 v{VA}, 0x20000, v{VA}")
    a(f"v_xor_b32 v{VB}, 0x20000, v{VB}")
    a(f"s_sub_u32 s{S_LOOP}, s{S_LOOP}, 1")
    a(f"s_cmp_lg_u32 s{S_LOOP}, 0")
    a(f"s_cbranch_scc1 L_attn")
    a("s_nop 1")
    a(f"v_mfma_f32_32x32x16_bf16 {vr(O+48,16)}, {vr(V[1],4)}, {vr(P[1],4)}, {vr(O+48,16)}")
    a(f"v_mfma_f32_32x32x16_bf16 {vr(O+48,16)}, {vr(V[1]+4,4)}, {vr(P[1]+4,4)}, {vr(O+48,16)}")
    a(f"v_smfmac_f32_16x16x64_bf16 {vr(L+12,4)}, {vr(ONES,4)}, {vr(P[1],8)}, v{IDX}")
    a("s_nop 15")
    a("s_waitcnt vmcnt(0) lgkmcnt(0)")
    LS = 144
    def lsum():
        for t in range(4):
            a(f"v_add_f32 v{XT+2*t}, v{L+4*t}, v{L+4*t+1}")
            a(f"v_add_f32 v{XT+2*t+1}, v{L+4*t+2}, v{L+4*t+3}")
        a("s_nop 1")
        for t in range(4): a(f"v_permlane16_swap_b32 v{XT+2*t}, v{XT+2*t+1}")
        a("s_nop 1")
        for t in range(4): a(f"v_mov_b32 v{LS+t}, v{XT+2*t}")
        a("s_nop 1")
        for t in range(4): a(f"v_permlane32_swap_b32 v{LS+t}, v{XT+2*t}")
        a("s_nop 1")
    lsum()
    if not cfg.get('nocheck'):
        a(f"s_mov_b32 s{S_T0}, 0x71800000")
        a(f"s_mov_b32 s{S_T1}, 0x7f800000")
        a(f"s_mov_b64 s[{S_MASK}:{S_MASK+1}], exec")
        for t in range(4):
            a(f"v_cmp_le_f32 vcc, 1.0, v{LS+t}")
            a(f"v_cmp_ge_f32 s[{S_MASK2}:{S_MASK2+1}], s{S_T0}, v{LS+t}")
            a(f"v_add_f32 v{XT}, |v{O+16*t}|, |v{O+16*t+1}|")
            for i in range(2,16): a(f"v_add_f32 v{XT}, v{XT}, |v{O+16*t+i}|")
            a(f"s_and_b64 s[{S_MASK}:{S_MASK+1}], s[{S_MASK}:{S_MASK+1}], vcc")
            a(f"s_and_b64 s[{S_MASK}:{S_MASK+1}], s[{S_MASK}:{S_MASK+1}], s[{S_MASK2}:{S_MASK2+1}]")
            a(f"v_cmp_gt_f32 vcc, s{S_T1}, v{XT}")
            a("s_nop 4")
            a(f"s_and_b64 s[{S_MASK}:{S_MASK+1}], s[{S_MASK}:{S_MASK+1}], vcc")
        a(f"s_cmp_eq_u64 s[{S_MASK}:{S_MASK+1}], exec")
        if cfg.get('force_fallback'):
            a("s_cmp_eq_u32 s2, 0x7fffffff")
        a(f"s_cbranch_scc1 L_norm")
        NEG = 144
        SS = 160; MX = XT; KF = K[0]; VF = V[0]; PP = P[0]
        a(f"v_lshlrev_b32 v{VDMA}, 4, v{V_LANE}")
        for t in range(4):
            a(f"v_mov_b32 v{MX}, 0xff800000")
            a(f"s_mov_b32 s{S_T2}, 0")
            a.label(f"L_fb1_{t}")
            a(f"buffer_load_dwordx4 {vr(KF,4)}, v{VDMA}, s[{SRD_KV}:{SRD_KV+3}], s{S_T2} offen sc1")
            a(f"buffer_load_dwordx4 {vr(KF+4,4)}, v{VDMA}, s[{SRD_KV}:{SRD_KV+3}], s{S_T2} offen offset:1024 sc1")
            a("s_waitcnt vmcnt(0)")
            a(f"v_mfma_f32_32x32x16_bf16 {vr(SS,16)}, {vr(KF,4)}, {vr(Q+t*8,4)}, 0")
            a(f"v_mfma_f32_32x32x16_bf16 {vr(SS,16)}, {vr(KF+4,4)}, {vr(Q+t*8+4,4)}, {vr(SS,16)}")
            a("s_nop 15")
            for i in range(8): a(f"v_max3_f32 v{MX}, v{SS+2*i}, v{SS+2*i+1}, v{MX}")
            a(f"s_add_u32 s{S_T2}, s{S_T2}, 4096")
            a(f"s_cmp_lt_u32 s{S_T2}, 262144")
            a(f"s_cbranch_scc1 L_fb1_{t}")
            a(f"v_mov_b32 v{MX+1}, v{MX}")
            a("s_nop 1")
            a(f"v_permlane32_swap_b32 v{MX}, v{MX+1}")
            a("s_nop 1")
            a(f"v_max_f32 v{MX}, v{MX}, v{MX+1}")
            for i in range(16): a(f"v_sub_f32 v{NEG+i}, 0, v{MX}")
            for i in range(16): a(f"v_mov_b32 v{O+16*t+i}, 0")
            for i in range(4): a(f"v_mov_b32 v{L+4*t+i}, 0")
            a(f"s_mov_b32 s{S_T2}, 0")
            a.label(f"L_fb2_{t}")
            a(f"buffer_load_dwordx4 {vr(KF,4)}, v{VDMA}, s[{SRD_KV}:{SRD_KV+3}], s{S_T2} offen sc1")
            a(f"buffer_load_dwordx4 {vr(KF+4,4)}, v{VDMA}, s[{SRD_KV}:{SRD_KV+3}], s{S_T2} offen offset:1024 sc1")
            a(f"buffer_load_dwordx4 {vr(VF,4)}, v{VDMA}, s[{SRD_KV}:{SRD_KV+3}], s{S_T2} offen offset:2048 sc1")
            a(f"buffer_load_dwordx4 {vr(VF+4,4)}, v{VDMA}, s[{SRD_KV}:{SRD_KV+3}], s{S_T2} offen offset:3072 sc1")
            a("s_waitcnt vmcnt(0)")
            a(f"v_mfma_f32_32x32x16_bf16 {vr(SS,16)}, {vr(KF,4)}, {vr(Q+t*8,4)}, {vr(NEG,16)}")
            a(f"v_mfma_f32_32x32x16_bf16 {vr(SS,16)}, {vr(KF+4,4)}, {vr(Q+t*8+4,4)}, {vr(SS,16)}")
            a("s_nop 15")
            for i in range(16): a(f"v_exp_f32 v{SS+i}, v{SS+i}")
            a("s_nop 1")
            for i in range(8): a(f"v_cvt_pk_bf16_f32 v{PP+i}, v{SS+2*i}, v{SS+2*i+1}")
            a("s_nop 2")
            a(f"v_mfma_f32_32x32x16_bf16 {vr(O+16*t,16)}, {vr(VF,4)}, {vr(PP,4)}, {vr(O+16*t,16)}")
            a(f"v_mfma_f32_32x32x16_bf16 {vr(O+16*t,16)}, {vr(VF+4,4)}, {vr(PP+4,4)}, {vr(O+16*t,16)}")
            a(f"v_smfmac_f32_16x16x64_bf16 {vr(L+4*t,4)}, {vr(ONES,4)}, {vr(PP,8)}, v{IDX}")
            a("s_nop 15")
            a(f"s_add_u32 s{S_T2}, s{S_T2}, 4096")
            a(f"s_cmp_lt_u32 s{S_T2}, 262144")
            a(f"s_cbranch_scc1 L_fb2_{t}")
        a("s_nop 7")
        lsum()
        a.label("L_norm")
    a(f"v_and_b32 v{XT}, 15, v{V_LANE}")
    a(f"v_lshlrev_b32 v{XT}, 4, v{XT}")
    a(f"v_bfe_u32 v{XT+1}, v{V_LANE}, 4, 1")
    a(f"v_lshlrev_b32 v{XT+1}, 15, v{XT+1}")
    a(f"v_lshrrev_b32 v{XT+2}, 5, v{V_LANE}")
    a(f"v_lshlrev_b32 v{XT+2}, 8, v{XT+2}")
    a(f"v_add3_u32 v{XT}, v{XT}, v{XT+1}, v{XT+2}")
    a(f"s_lshl_b32 s{S_T0}, s{S_R}, 3")
    a(f"s_lshl_b32 s{S_T1}, s{S_WM}, 2")
    a(f"s_add_u32 s{S_T0}, s{S_T0}, s{S_T1}")
    a(f"s_lshl_b32 s{S_T0}, s{S_T0}, 5")
    a(f"s_lshl_b32 s{S_T1}, s{S_G}, 2")
    a(f"s_add_u32 s{S_T0}, s{S_T0}, s{S_T1}")
    a(f"s_lshl_b32 s{S_T1}, s{S_WN}, 1")
    a(f"s_add_u32 s{S_T0}, s{S_T0}, s{S_T1}")
    a(f"s_lshl_b32 s{S_OST}, s{S_T0}, 10")
    for t in range(4): a(f"v_rcp_f32 v{LS+t}, v{LS+t}")
    a("s_nop 0")
    for t in range(4):
        hh, rb = t>>1, t&1
        for i in range(16): a(f"v_mul_f32 v{O+16*t+i}, v{O+16*t+i}, v{LS+t}")
        R = P[0]
        R = 160 + 8*t
        for i in range(8): a(f"v_cvt_pk_bf16_f32 v{R+i}, v{O+16*t+2*i}, v{O+16*t+2*i+1}")
        a(f"s_add_u32 s{S_T0}, s{S_OST}, {(2*rb*32 + hh)*1024}")
        a(f"buffer_store_dwordx4 {vr(R,4)}, v{XT}, s[{SRD_O}:{SRD_O+3}], s{S_T0} offen")
        a(f"buffer_store_dwordx4 {vr(R+4,4)}, v{XT}, s[{SRD_O}:{SRD_O+3}], s{S_T0} offen offset:512")
    a.label("L_k1_end")
    a("s_endpgm")
    return a

def gen_k2(cfg):
    a = Asm()
    kname = cfg['k2']
    a(f".globl {kname}\n.p2align 8\n.type {kname},@function")
    a.label(kname)
    a(f"s_cmp_ge_u32 s{S_WG}, 256")
    a(f"s_cbranch_scc1 L_k2_end")
    load_ptrs(a)
    decode_ids(a)
    SRD_WO=4; SRD_OUT=8; SRD_OI=20
    V_LANE=0; VOW=2; VB0=6; VWA=8; T=16
    ACC=32; FA=[96,128]; BR=160
    NSLOT=4; SLOT=16384
    a(f"v_lshrrev_b32 v{T}, 6, v0")
    a(f"v_and_b32 v{V_LANE}, 63, v0")
    a("s_nop 0")
    a(f"v_readfirstlane_b32 s{S_W}, v{T}")
    L4=T+1; X1=T+2; X2=T+3; X3=T+4
    a(f"v_lshrrev_b32 v{L4}, 4, v{V_LANE}")
    for j in range(4):
        a(f"v_and_b32 v{X1}, 15, v{V_LANE}")
        a(f"v_lshrrev_b32 v{X2}, 1, v{X1}")
        a(f"v_or_b32 v{X3}, {(j&1)<<2}, v{L4}")
        a(f"v_xor_b32 v{X2}, v{X2}, v{X3}")
        a(f"v_lshlrev_b32 v{X2}, 5, v{X2}")
        a(f"v_and_b32 v{X1}, 1, v{X1}")
        a(f"v_lshlrev_b32 v{X1}, 4, v{X1}")
        a(f"v_add_u32 v{X1}, v{X1}, v{X2}")
        a(f"v_lshlrev_b32 v{X2}, 11, v{L4}")
        a(f"v_add_u32 v{X1}, v{X1}, v{X2}")
        a(f"v_add_u32 v{VOW+j}, {4*j*2048 - j*1024}, v{X1}")
    a(f"v_lshlrev_b32 v{VB0}, 4, v{V_LANE}")
    a(f"v_and_b32 v{X1}, 15, v{V_LANE}")
    a(f"v_lshrrev_b32 v{X2}, 2, v{X1}")
    a(f"v_and_b32 v{X3}, 1, v{L4}")
    a(f"v_lshlrev_b32 v{X3}, 2, v{X3}")
    a(f"v_add_u32 v{X3}, v{X3}, v{X2}")
    a(f"v_lshrrev_b32 v{T}, 1, v{L4}")
    a(f"v_lshlrev_b32 v{T}, 4, v{T}")
    a(f"v_add_u32 v{T}, v{T}, v{X3}")
    a(f"v_lshlrev_b32 v{T}, 8, v{T}")
    a(f"v_and_b32 v{X1}, 3, v{X1}")
    a(f"v_lshlrev_b32 v{X1}, 3, v{X1}")
    a(f"v_add_u32 v{T}, v{T}, v{X1}")
    for c in range(8):
        a(f"v_xor_b32 v{X2}, {c}, v{X3}")
        a(f"v_lshlrev_b32 v{X2}, 5, v{X2}")
        a(f"v_add_u32 v{VWA+c}, v{X2}, v{T}")
    a(f"s_lshl_b32 s{S_T1}, s{S_W}, 15")
    a(f"s_lshl_b32 s{S_T2}, s{S_G}, 8")
    a(f"s_add_u32 s{S_WQ}, s{S_T1}, s{S_T2}")
    a(f"s_lshl_b32 s{S_T0}, s{S_R}, 3")
    a(f"s_lshl_b32 s{S_T1}, s{S_W}, 1")
    a(f"s_add_u32 s{S_T0}, s{S_T0}, s{S_T1}")
    a(f"s_lshl_b32 s{S_XQ}, s{S_T0}, 15")
    a(f"s_lshl_b32 s{S_M0}, s{S_W}, 12")
    a("s_waitcnt lgkmcnt(0)")
    a(f"s_cmp_lg_u32 s{S_B}, 0")
    sel_ptr(a, SRD_WO, 8, 18)
    srd_tail(a, SRD_WO, 1024*2048)
    a(f"s_mov_b32 s{SRD_OUT}, s{PTR+20}")
    a(f"s_mov_b32 s{SRD_OUT+1}, s{PTR+21}")
    srd_tail(a, SRD_OUT, 2048*4096)
    a(f"s_lshl_b32 s{S_T0}, s{S_B}, 22")
    a(f"s_add_u32 s{S_T0}, s{S_T0}, {WS_O}")
    a(f"s_add_u32 s{SRD_OI}, s{PTR+24}, s{S_T0}")
    a(f"s_addc_u32 s{SRD_OI+1}, s{PTR+25}, 0")
    srd_tail(a, SRD_OI, 4*1024*1024)
    vm = VM()
    def dma_stage(st):
        o = []
        slot = st % NSLOT
        o.append(f"s_add_u32 m0, s{S_M0}, {slot*SLOT}")
        o.append(f"s_add_u32 s{S_OFFB}, s{S_WQ}, {st*131072}")
        for j in range(4):
            o.append(f"buffer_load_dwordx4 v{VOW+j}, s[{SRD_WO}:{SRD_WO+3}], s{S_OFFB} offen offset:{j*1024} lds"); vm.issue(('st',st))
        o.append(f"s_add_u32 s{S_OFFA}, s{S_XQ}, {st*2048}")
        o.append(f"s_add_u32 s{S_T0}, s{S_XQ}, {st*2048+32768}")
        for s in range(2):
            o.append(f"buffer_load_dwordx4 {vr(BR+slot*16+(s*2+0)*4,4)}, v{VB0}, s[{SRD_OI}:{SRD_OI+3}], s{S_OFFA} offen offset:{s*1024}"); vm.issue(('st',st))
            o.append(f"buffer_load_dwordx4 {vr(BR+slot*16+(s*2+1)*4,4)}, v{VB0}, s[{SRD_OI}:{SRD_OI+3}], s{S_T0} offen offset:{s*1024}"); vm.issue(('st',st))
        return o
    def reads(st, s, fset):
        slot = st % NSLOT
        o = []
        for c in range(8):
            o.append(f"ds_read_b64_tr_b16 {vr(FA[fset]+4*c,2)}, v{VWA+c} offset:{slot*SLOT + (32*s)*256}")
            o.append(f"ds_read_b64_tr_b16 {vr(FA[fset]+4*c+2,2)}, v{VWA+c} offset:{slot*SLOT + (32*s+8)*256}")
        return o
    def mfmas(st, s, fset):
        slot = st % NSLOT
        o = []
        for c in range(8):
            for rt in range(2):
                acc = ACC + (c*2+rt)*4
                o.append(f"v_mfma_f32_16x16x32_bf16 {vr(acc,4)}, {vr(FA[fset]+4*c,4)}, {vr(BR+slot*16+(s*2+rt)*4,4)}, {vr(acc,4)}")
        return o
    a(dma_stage(0)); a(dma_stage(1)); a(dma_stage(2))
    for i in range(64): a(f"v_mov_b32 v{ACC+i}, 0")
    for st in range(16):
        a(f"s_waitcnt vmcnt({vm.wait_n(('st',st))}) lgkmcnt(0)")
        a("s_barrier")
        r0 = reads(st, 0, 0)
        if st == 0:
            a(r0); a(dma_stage(3))
        else:
            a(interleave(mfmas(st-1, 1, 1), r0, lead=4))
            if st+3 < 16: d = dma_stage(st+3)
            else: d = []
        a("s_waitcnt lgkmcnt(0)")
        if st == 0: d = []
        a(interleave(mfmas(st, 0, 0), d + reads(st, 1, 1), lead=0))
    a("s_waitcnt lgkmcnt(0)")
    a(mfmas(15, 1, 1))
    a(f"v_and_b32 v{X1}, 15, v{V_LANE}")
    a(f"v_lshlrev_b32 v{X1}, 12, v{X1}")
    a(f"v_and_b32 v{X2}, 1, v{L4}")
    a(f"v_lshlrev_b32 v{X2}, 5, v{X2}")
    a(f"v_lshrrev_b32 v{X3}, 1, v{L4}")
    a(f"v_lshlrev_b32 v{X3}, 4, v{X3}")
    a(f"v_add3_u32 v{X1}, v{X1}, v{X2}, v{X3}")
    a(f"s_lshl_b32 s{S_T0}, s{S_R}, 19")
    a(f"s_lshl_b32 s{S_T1}, s{S_W}, 17")
    a(f"s_add_u32 s{S_T0}, s{S_T0}, s{S_T1}")
    a(f"s_lshl_b32 s{S_T1}, s{S_B}, 11")
    a(f"s_add_u32 s{S_T0}, s{S_T0}, s{S_T1}")
    a(f"s_lshl_b32 s{S_T1}, s{S_G}, 8")
    a(f"s_add_u32 s{S_OST}, s{S_T0}, s{S_T1}")
    a("s_nop 7")
    R = 96
    k = 0
    for rt in range(2):
        for cp in range(4):
            x = ACC + ((2*cp)*2+rt)*4; y = ACC + ((2*cp+1)*2+rt)*4
            q = R + 4*k; k += 1
            a(f"v_cvt_pk_bf16_f32 v{q}, v{x}, v{x+1}")
            a(f"v_cvt_pk_bf16_f32 v{q+1}, v{x+2}, v{x+3}")
            a(f"v_cvt_pk_bf16_f32 v{q+2}, v{y}, v{y+1}")
            a(f"v_cvt_pk_bf16_f32 v{q+3}, v{y+2}, v{y+3}")
    a("s_nop 1")
    k = 0
    for rt in range(2):
        a(f"s_add_u32 s{S_T0}, s{S_OST}, {rt*16*4096}")
        for cp in range(4):
            q = R + 4*k; k += 1
            a(f"v_permlane16_swap_b32 v{q}, v{q+2}")
            a(f"v_permlane16_swap_b32 v{q+1}, v{q+3}")
            a("s_nop 1")
            a(f"buffer_store_dwordx4 {vr(q,4)}, v{X1}, s[{SRD_OUT}:{SRD_OUT+3}], s{S_T0} offen offset:{cp*64}")
    a.label("L_k2_end")
    a("s_endpgm")
    return a

def kd(name, nv, ns):
    return f""".amdhsa_kernel {name}
  .amdhsa_next_free_vgpr {nv}
  .amdhsa_next_free_sgpr {ns}
  .amdhsa_accum_offset {nv}
  .amdhsa_group_segment_fixed_size 0
  .amdhsa_kernarg_size 104
  .amdhsa_user_sgpr_count 2
  .amdhsa_user_sgpr_kernarg_segment_ptr 1
  .amdhsa_system_sgpr_workgroup_id_x 1
.end_amdhsa_kernel"""

def build(cfg):
    cfg = dict(cfg)
    cfg.setdefault('k1', 'mqa_attn_kernel'); cfg.setdefault('k2', 'mqa_oproj_kernel')
    hdr = open('cdna_kernels/' + NAME + '.s.ref').read().split('\n')
    head = [l for l in hdr if l.startswith(';') and '@launch' not in l and 'Override launch' not in l and 'grid=ceil' not in l]
    out = head[:15]
    out.append(f"; @launch kernel={cfg['k1']} grid=(256,1,1) block=(256,1,1) lds=163840")
    out.append(f"; @launch kernel={cfg['k2']} grid=(256,1,1) block=(256,1,1) lds=65536")
    out.append('.amdgcn_target "amdgcn-amd-amdhsa--gfx950"')
    out.append('.text')
    out.append(gen_k1(cfg).text())
    out.append(gen_k2(cfg).text())
    out.append('.section .rodata,"a"')
    out.append('.p2align 6'); out.append(kd(cfg['k1'], 232, 96))
    out.append('.p2align 6'); out.append(kd(cfg['k2'], 224, 96))
    return "\n".join(out) + "\n"

if __name__ == "__main__":
    cfg = {}
    outfn = 'cdna_kernels/' + NAME + '.s'
    for arg in sys.argv[1:]:
        if arg.startswith('-o'): outfn = arg[2:]
        elif '=' in arg:
            k, v = arg.split('=', 1); cfg[k] = v
        else: cfg[arg] = True
    open(outfn, 'w').write(build(cfg))
    print("wrote", outfn)
```

```python
import sys, math

NAME = "concat_heads__grouped_kv_mqa__grouped_kv_mqa__prompt"

class Asm:
    def __init__(self): self.l = []
    def __call__(self, s=""):
        if isinstance(s, (list, tuple)):
            for x in s: self(x)
        else: self.l.append("  " + s if s and not s.endswith(":") else s)
    def label(self, s): self.l.append(s + ":")
    def text(self): return "\n".join(self.l)

def vr(b, n=1): return f"v{b}" if n == 1 else f"v[{b}:{b+n-1}]"
def sr(b, n=1): return f"s{b}" if n == 1 else f"s[{b}:{b+n-1}]"

def interleave(main, others, lead=0, per=None):
    out = list(others[:lead]); rest = list(others[lead:])
    n = len(main)
    if n == 0: return out + rest
    for i, m in enumerate(main):
        out.append(m)
        if per is not None:
            k = min(per, len(rest))
        else:
            left = n - i
            k = -(-len(rest) // left)
        out += rest[:k]; rest = rest[k:]
    return out + rest

class VM:
    def __init__(self): self.ops = []
    def issue(self, tag): self.ops.append(tag)
    def wait_n(self, tag):
        idx = [i for i, t in enumerate(self.ops) if t == tag]
        assert idx, tag
        n = len(self.ops) - 1 - idx[-1]
        assert n <= 63
        return n

WS_KV = 0
WS_O  = 0x100000
KSCALE = (32 ** -0.5) * math.log2(math.e)
def f32hex(x):
    import struct
    return "0x%08x" % struct.unpack("<I", struct.pack("<f", x))[0]

S_WG=2
SRD_X=4; SRD_WQ=8; SRD_WKV=12; SRD_KV=16; SRD_O=20
S_CNT=24
S_W=26; S_B=27; S_R=28; S_G=29
S_T0=30; S_T1=31; S_T2=32; S_T3=33; S_T4=34; S_T5=35
PTR=36
S_XQ=62; S_WQ=63; S_XKV=64; S_WKV=65; S_M0=66; S_OFFA=67; S_OFFB=68; S_LOOP=69; S_KVOFF=70; S_KVM0=71
S_WM=72; S_WN=73; S_OST=74; S_SAVE=76
S_MASK=78
S_MASK2=80
S_TYPE=82

def decode_ids(a):
    a(f"s_and_b32 s{S_T0}, s{S_WG}, 7")
    a(f"s_lshr_b32 s{S_T1}, s{S_WG}, 3")
    a(f"s_lshr_b32 s{S_B}, s{S_T0}, 2")
    a(f"s_and_b32 s{S_T0}, s{S_T0}, 3")
    a(f"s_lshl_b32 s{S_T0}, s{S_T0}, 2")
    a(f"s_lshr_b32 s{S_R}, s{S_T1}, 3")
    a(f"s_add_u32 s{S_R}, s{S_R}, s{S_T0}")
    a(f"s_and_b32 s{S_G}, s{S_T1}, 7")

def load_ptrs(a):
    a(f"s_load_dwordx16 s[{PTR}:{PTR+15}], s[0:1], 0")
    a(f"s_load_dwordx8 s[{PTR+16}:{PTR+23}], s[0:1], 64")
    a(f"s_load_dwordx2 s[{PTR+24}:{PTR+25}], s[0:1], 96")
def sel_ptr(a, dst, idxA, idxB):
    a(f"s_cselect_b32 s{dst}, s{PTR+idxB}, s{PTR+idxA}")
    a(f"s_cselect_b32 s{dst+1}, s{PTR+idxB+1}, s{PTR+idxA+1}")
def srd_tail(a, srd, nbytes):
    a(f"s_and_b32 s{srd+1}, s{srd+1}, 0xffff")
    a(f"s_mov_b32 s{srd+2}, {nbytes}")
    a(f"s_mov_b32 s{srd+3}, 0x00020000")

ST0=84
def stamp(a, cfg, i):
    if cfg.get('stamps'):
        a(f"s_memrealtime s[{ST0+2*i}:{ST0+2*i+1}]")
        a("s_waitcnt lgkmcnt(0)")
def stamp_store(a, cfg, n, kidx, lab):
    if not cfg.get('stamps'): return
    a(f"s_cmp_lg_u32 s{S_W}, 0")
    a(f"s_cbranch_scc1 {lab}")
    a(f"s_lshl_b32 s{S_T0}, s{S_WG}, 7")
    a(f"s_add_u32 s{S_T0}, s{S_T0}, {0x3000000 + kidx*0x10000}")
    a(f"s_add_u32 s{S_T2}, s{PTR+24}, s{S_T0}")
    a(f"s_addc_u32 s{S_T3}, s{PTR+25}, 0")
    a("v_mov_b32 v2, 0")
    for i in range(n):
        a(f"v_mov_b32 v4, s{ST0+2*i}")
        a(f"v_mov_b32 v5, s{ST0+2*i+1}")
        a(f"global_store_dwordx2 v2, v[4:5], s[{S_T2}:{S_T3}] offset:{8*i}")
        a("s_nop 1")
    a.label(lab)

def gen_k1(cfg):
    a = Asm()
    kname = cfg['k1']
    a(f".globl {kname}\n.p2align 8\n.type {kname},@function")
    a.label(kname)
    a(f"s_cmp_ge_u32 s{S_WG}, 256")
    a(f"s_cbranch_scc1 L_k1_end")
    stamp(a, cfg, 0)
    load_ptrs(a)
    decode_ids(a)
    V_LANE=0; VOX=2; VOW=6; VOWKV=10; VXA=11; VXAH=13; VWA=15; VWAH=19; VKXA=23; VKWA=25; T=26
    ACC=32; FA=[96,128]; FB=[112,144]; KVACC=160; KVX=164; KVW=196
    a(f"v_lshrrev_b32 v{T}, 6, v0")
    a(f"v_and_b32 v{V_LANE}, 63, v0")
    a(f"s_nop 0")
    a(f"v_readfirstlane_b32 s{S_W}, v{T}")
    L3=T+1; L4=T+2; X1=T+3; X2=T+4; X3=T+5
    a(f"v_lshrrev_b32 v{L3}, 3, v{V_LANE}")
    a(f"v_lshrrev_b32 v{L4}, 4, v{V_LANE}")
    for i in range(4):
        a(f"v_add_u32 v{X1}, {4*i}, v{L4}")
        a(f"v_and_b32 v{X1}, 7, v{X1}")
        a(f"v_and_b32 v{X2}, 7, v{V_LANE}")
        a(f"v_xor_b32 v{X1}, v{X1}, v{X2}")
        a(f"v_lshlrev_b32 v{X1}, 4, v{X1}")
        a(f"v_lshlrev_b32 v{X2}, 11, v{L3}")
        a(f"v_add_u32 v{X1}, v{X1}, v{X2}")
        a(f"v_add_u32 v{VOX+i}, {8*i*2048 - i*1024}, v{X1}")
    for j in range(4):
        a(f"v_and_b32 v{X1}, 15, v{V_LANE}")
        a(f"v_lshrrev_b32 v{X2}, 1, v{X1}")
        a(f"v_or_b32 v{X3}, {((j>>1)&1)<<2}, v{L4}")
        a(f"v_xor_b32 v{X2}, v{X2}, v{X3}")
        a(f"v_lshlrev_b32 v{X2}, 5, v{X2}")
        a(f"v_and_b32 v{X1}, 1, v{X1}")
        a(f"v_lshlrev_b32 v{X1}, 4, v{X1}")
        a(f"v_add_u32 v{X1}, v{X1}, v{X2}")
        a(f"v_lshlrev_b32 v{X2}, 11, v{L4}")
        a(f"v_add_u32 v{X1}, v{X1}, v{X2}")
        a(f"v_add_u32 v{VOW+j}, {4*j*2048 - j*1024}, v{X1}")
    a(f"v_lshrrev_b32 v{X1}, 5, v{V_LANE}")
    a(f"v_lshlrev_b32 v{X1}, 1, v{X1}")
    a(f"v_and_b32 v{X2}, 3, v{V_LANE}")
    a(f"v_xor_b32 v{X1}, v{X1}, v{X2}")
    a(f"v_lshlrev_b32 v{X1}, 4, v{X1}")
    a(f"v_lshrrev_b32 v{X2}, 2, v{V_LANE}")
    a(f"v_lshlrev_b32 v{X2}, 6, v{X2}")
    a(f"v_add_u32 v{VOWKV}, v{X1}, v{X2}")
    a(f"s_and_b32 s{S_WN}, s{S_W}, 1")
    a(f"s_lshr_b32 s{S_WM}, s{S_W}, 1")
    a(f"v_and_b32 v{X1}, 15, v{V_LANE}")
    a(f"v_lshrrev_b32 v{X2}, 1, v{X1}")
    a(f"v_lshlrev_b32 v{X3}, 7, v{X1}")
    a(f"s_lshl_b32 s{S_T0}, s{S_WM}, 13")
    a(f"s_lshl_b32 s{S_T1}, s{S_WM}, 11")
    for s in range(2):
        a(f"v_add_u32 v{L3}, {4*s}, v{L4}")
        a(f"v_xor_b32 v{L3}, v{L3}, v{X2}")
        a(f"v_lshlrev_b32 v{L3}, 4, v{L3}")
        a(f"v_add_u32 v{L3}, v{L3}, v{X3}")
        a(f"v_add_u32 v{VXA+s}, s{S_T0}, v{L3}")
        a(f"v_add_u32 v{VXAH+s}, 0x10000, v{VXA+s}")
        a(f"v_add_u32 v{VKXA+s}, s{S_T1}, v{L3}")
    a(f"v_lshrrev_b32 v{X2}, 2, v{X1}")
    a(f"v_and_b32 v{L3}, 1, v{L4}")
    a(f"v_lshlrev_b32 v{X3}, 2, v{L3}")
    a(f"v_or_b32 v{X3}, v{X3}, v{X2}")
    a(f"v_lshlrev_b32 v{T}, 3, v{L4}")
    a(f"v_add_u32 v{T}, v{T}, v{X2}")
    a(f"v_and_b32 v{X1}, 3, v{X1}")
    a(f"v_lshlrev_b32 v{X1}, 3, v{X1}")
    a(f"s_lshl_b32 s{S_T0}, s{S_WN}, 2")
    a(f"v_xor_b32 v{L3}, s{S_WN}, v{L3}")
    a(f"v_lshlrev_b32 v{L3}, 5, v{L3}")
    a(f"v_lshlrev_b32 v{X2}, 6, v{T}")
    a(f"v_add3_u32 v{VKWA}, v{L3}, v{X2}, v{X1}")
    a(f"v_add_u32 v{VKWA}, 16384, v{VKWA}")
    a(f"v_lshlrev_b32 v{T}, 8, v{T}")
    a(f"v_add_u32 v{T}, v{T}, v{X1}")
    a(f"v_add_u32 v{T}, 16384, v{T}")
    for cc in range(4):
        a(f"s_add_u32 s{S_T1}, s{S_T0}, {cc}")
        a(f"v_xor_b32 v{X2}, s{S_T1}, v{X3}")
        a(f"v_lshlrev_b32 v{X2}, 5, v{X2}")
        a(f"v_add_u32 v{VWA+cc}, v{X2}, v{T}")
        a(f"v_add_u32 v{VWAH+cc}, 0x10000, v{VWA+cc}")
    a(f"s_lshl_b32 s{S_T0}, s{S_R}, 18")
    a(f"s_lshl_b32 s{S_T1}, s{S_W}, 16")
    a(f"s_add_u32 s{S_XQ}, s{S_T0}, s{S_T1}")
    a(f"s_lshl_b32 s{S_T1}, s{S_W}, 15")
    a(f"s_lshl_b32 s{S_T2}, s{S_G}, 8")
    a(f"s_add_u32 s{S_WQ}, s{S_T1}, s{S_T2}")
    a(f"s_lshr_b32 s{S_T1}, s{S_G}, 1")
    a(f"s_lshl_b32 s{S_T1}, s{S_T1}, 16")
    a(f"s_add_u32 s{S_XKV}, s{S_T0}, s{S_T1}")
    a(f"s_lshl_b32 s{S_T1}, s{S_W}, 7")
    a(f"s_add_u32 s{S_XKV}, s{S_XKV}, s{S_T1}")
    a(f"s_lshl_b32 s{S_M0}, s{S_W}, 12")
    a(f"s_and_b32 s{S_TYPE}, s{S_G}, 1")
    a("s_waitcnt lgkmcnt(0)")
    a(f"s_cmp_lg_u32 s{S_B}, 0")
    sel_ptr(a, SRD_X, 0, 10)
    sel_ptr(a, SRD_WQ, 2, 12)
    sel_ptr(a, S_T0, 4, 14)
    sel_ptr(a, S_T2, 6, 16)
    a(f"s_cmp_lg_u32 s{S_TYPE}, 0")
    a(f"s_cselect_b32 s{SRD_WKV}, s{S_T2}, s{S_T0}")
    a(f"s_cselect_b32 s{SRD_WKV+1}, s{S_T2+1}, s{S_T0+1}")
    srd_tail(a, SRD_X, 2048*2048)
    srd_tail(a, SRD_WQ, 1024*2048)
    srd_tail(a, SRD_WKV, 1024*64)
    a(f"s_lshl_b32 s{S_T0}, s{S_B}, 18")
    a(f"s_add_u32 s{SRD_KV}, s{PTR+24}, s{S_T0}")
    a(f"s_addc_u32 s{SRD_KV+1}, s{PTR+25}, 0")
    srd_tail(a, SRD_KV, 262144)
    a(f"s_lshl_b32 s{S_T0}, s{S_B}, 22")
    a(f"s_add_u32 s{S_T0}, s{S_T0}, {WS_O}")
    a(f"s_add_u32 s{SRD_O}, s{PTR+24}, s{S_T0}")
    a(f"s_addc_u32 s{SRD_O+1}, s{PTR+25}, 0")
    srd_tail(a, SRD_O, 4*1024*1024)
    a(f"s_lshl_b32 s{S_T0}, s{S_B}, 7")
    a(f"s_add_u32 s{S_CNT}, s{PTR+22}, s{S_T0}")
    a(f"s_addc_u32 s{S_CNT+1}, s{PTR+23}, 0")

    vm = VM()
    NSLOT=4; SLOT=32768
    def dma_stage(gs):
        o = []
        slot = gs % NSLOT
        if gs < 4:
            j = gs
            o.append(f"s_add_u32 m0, s{S_M0}, {slot*SLOT}")
            o.append(f"s_add_u32 s{S_OFFA}, s{S_XKV}, {j*512}")
            for i in range(4):
                o.append(f"buffer_load_dwordx4 v{VOX+i}, s[{SRD_X}:{SRD_X+3}], s{S_OFFA} offen offset:{i*1024} lds"); vm.issue(('st',gs))
            o.append(f"s_add_u32 m0, s{S_M0}, {slot*SLOT+16384}")
            o.append(f"s_add_u32 s{S_OFFB}, s{S_M0}, {j*16384}")
            for i in range(4):
                o.append(f"buffer_load_dwordx4 v{VOWKV}, s[{SRD_WKV}:{SRD_WKV+3}], s{S_OFFB} offen offset:{i*1024} lds"); vm.issue(('st',gs))
        else:
            qs = gs-4
            o.append(f"s_add_u32 m0, s{S_M0}, {slot*SLOT}")
            o.append(f"s_add_u32 s{S_OFFA}, s{S_XQ}, {qs*128}")
            for i in range(4):
                o.append(f"buffer_load_dwordx4 v{VOX+i}, s[{SRD_X}:{SRD_X+3}], s{S_OFFA} offen offset:{i*1024} lds"); vm.issue(('st',gs))
            o.append(f"s_add_u32 m0, s{S_M0}, {slot*SLOT+16384}")
            o.append(f"s_add_u32 s{S_OFFB}, s{S_WQ}, {qs*131072}")
            for j in range(4):
                o.append(f"buffer_load_dwordx4 v{VOW+j}, s[{SRD_WQ}:{SRD_WQ+3}], s{S_OFFB} offen offset:{j*1024} lds"); vm.issue(('st',gs))
        return o

    stamp(a, cfg, 1)
    a(dma_stage(0)); a(dma_stage(1)); a(dma_stage(2))
    for i in range(4): a(f"v_mov_b32 v{KVACC+i}, 0")
    for gs in range(4):
        a(f"s_waitcnt vmcnt({vm.wait_n(('st',gs))})")
        a("s_barrier")
        a(dma_stage(gs+3))
        hi = (gs >= 2)
        so = (gs % 2) * SLOT
        if gs == 2:
            for r_ in (VKXA, VKXA+1, VKWA): a(f"v_add_u32 v{r_}, 0x10000, v{r_}")
        for s in range(8):
            a(f"ds_read_b128 {vr(KVX+4*s,4)}, v{VKXA+(s&1)} offset:{so + (s>>1)*4096}")
            a(f"ds_read_b64_tr_b16 {vr(KVW+4*s,2)}, v{VKWA} offset:{so + (32*s)*64}")
            a(f"ds_read_b64_tr_b16 {vr(KVW+4*s+2,2)}, v{VKWA} offset:{so + (32*s+4)*64}")
        a("s_waitcnt lgkmcnt(0)")
        a(f"s_cmp_lg_u32 s{S_TYPE}, 0")
        a(f"s_cbranch_scc1 L_kv_v{gs}")
        for s in range(8):
            a(f"v_mfma_f32_16x16x32_bf16 {vr(KVACC,4)}, {vr(KVW+4*s,4)}, {vr(KVX+4*s,4)}, {vr(KVACC,4)}")
        a(f"s_branch L_kv_e{gs}")
        a.label(f"L_kv_v{gs}")
        for s in range(8):
            a(f"v_mfma_f32_16x16x32_bf16 {vr(KVACC,4)}, {vr(KVX+4*s,4)}, {vr(KVW+4*s,4)}, {vr(KVACC,4)}")
        a.label(f"L_kv_e{gs}")

    def kv_epilogue():
        o = []
        c=T; g_=T+1; x1=T+2; x2=T+3; ad=T+4
        o.append(f"v_and_b32 v{c}, 15, v{V_LANE}")
        o.append(f"v_lshrrev_b32 v{g_}, 4, v{V_LANE}")
        o.append(f"s_cmp_lg_u32 s{S_TYPE}, 0")
        o.append(f"s_cselect_b32 s{S_T0}, s{S_WM}, s{S_WN}")
        o.append(f"s_cselect_b32 s{S_T1}, s{S_WN}, s{S_WM}")
        o.append(f"s_cselect_b32 s{S_T2}, 0, 1")
        o.append(f"s_lshl_b32 s{S_T0}, s{S_T0}, 10")
        o.append(f"s_lshl_b32 s{S_T1}, s{S_T1}, 8")
        o.append(f"s_add_u32 s{S_T0}, s{S_T0}, s{S_T1}")
        o.append(f"s_lshl_b32 s{S_T1}, s{S_TYPE}, 11")
        o.append(f"s_add_u32 s{S_T0}, s{S_T0}, s{S_T1}")
        o.append(f"s_lshl_b32 s{S_T1}, s{S_R}, 2")
        o.append(f"s_lshr_b32 s{S_T3}, s{S_G}, 1")
        o.append(f"s_add_u32 s{S_T1}, s{S_T1}, s{S_T3}")
        o.append(f"s_lshl_b32 s{S_T1}, s{S_T1}, 12")
        o.append(f"s_add_u32 s{S_T0}, s{S_T0}, s{S_T1}")
        o.append(f"v_lshrrev_b32 v{x1}, s{S_T2}, v{g_}")
        o.append(f"v_and_b32 v{x1}, 1, v{x1}")
        o.append(f"v_lshlrev_b32 v{x1}, 9, v{x1}")
        o.append(f"s_xor_b32 s{S_T2}, s{S_T2}, 1")
        o.append(f"v_lshrrev_b32 v{x2}, s{S_T2}, v{g_}")
        o.append(f"v_and_b32 v{x2}, 1, v{x2}")
        o.append(f"v_lshlrev_b32 v{x2}, 3, v{x2}")
        o.append(f"v_lshlrev_b32 v{ad}, 4, v{c}")
        o.append(f"v_add3_u32 v{ad}, v{ad}, v{x1}, v{x2}")
        o.append(f"s_cmp_lg_u32 s{S_TYPE}, 0")
        o.append(f"s_cselect_b32 s{S_T1}, 1.0, {f32hex(KSCALE)}")
        o.append("s_nop 3")
        for i in range(4): o.append(f"v_mul_f32 v{KVACC+i}, s{S_T1}, v{KVACC+i}")
        o.append(f"v_cvt_pk_bf16_f32 v{KVACC}, v{KVACC}, v{KVACC+1}")
        o.append(f"v_cvt_pk_bf16_f32 v{KVACC+1}, v{KVACC+2}, v{KVACC+3}")
        o.append(f"buffer_store_dwordx2 {vr(KVACC,2)}, v{ad}, s[{SRD_KV}:{SRD_KV+3}], s{S_T0} offen sc1"); vm.issue('kvst')
        return o

    def q_reads(qs, s, fset):
        slot = (qs+4) % NSLOT
        hi = slot >= 2
        so = (slot % 2) * SLOT
        o = []
        xa = (VXAH if hi else VXA) + s
        wa = (VWAH if hi else VWA)
        for cc in range(4):
            o.append(f"ds_read_b64_tr_b16 {vr(FA[fset]+4*cc,2)}, v{wa+cc} offset:{so + (32*s)*256}")
            o.append(f"ds_read_b64_tr_b16 {vr(FA[fset]+4*cc+2,2)}, v{wa+cc} offset:{so + (32*s+4)*256}")
            o.append(f"ds_read_b128 {vr(FB[fset]+4*cc,4)}, v{xa} offset:{so + cc*2048}")
        return o
    def q_mfmas(fset):
        o = []
        for cc in range(4):
            for rt in range(4):
                acc = ACC + (cc*4+rt)*4
                o.append(f"v_mfma_f32_16x16x32_bf16 {vr(acc,4)}, {vr(FA[fset]+4*cc,4)}, {vr(FB[fset]+4*rt,4)}, {vr(acc,4)}")
        return o
    stamp(a, cfg, 2)
    for i in range(64): a(f"v_mov_b32 v{ACC+i}, 0")
    POLL = T+5
    for qs in range(16):
        gs = qs+4
        need = vm.wait_n(('st',gs))
        if qs == 2: need = min(need, vm.wait_n('kvst'))
        if gs == 18: need = min(need, vm.wait_n('poll'))
        a(f"s_waitcnt vmcnt({need}) lgkmcnt(0)")
        a("s_barrier")
        pre = []
        if qs == 0: pre = kv_epilogue()
        if qs == 2:
            a(f"s_cmp_lg_u32 s{S_W}, 0")
            a(f"s_cbranch_scc1 L_nopub")
            a(f"v_mov_b32 v{T}, 0")
            a(f"v_mov_b32 v{T+1}, 1")
            a(f"s_mov_b64 s[{S_SAVE}:{S_SAVE+1}], exec")
            a(f"s_mov_b64 exec, 1")
            a(f"global_atomic_add v{T}, v{T+1}, s[{S_CNT}:{S_CNT+1}] sc1")
            a(f"s_mov_b64 exec, s[{S_SAVE}:{S_SAVE+1}]")
            a.label("L_nopub")
        if gs == 16:
            a(f"v_mov_b32 v{T}, 0")
            a(f"global_load_dword v{POLL}, v{T}, s[{S_CNT}:{S_CNT+1}] sc1"); vm.issue('poll')
        if gs == 18:
            a(f"v_readfirstlane_b32 s{S_T0}, v{POLL}")
            a("s_nop 3")
            a(f"s_cmp_ge_u32 s{S_T0}, 128")
            a(f"s_cbranch_scc1 L_kvready")
            a.label("L_spin")
            a("s_sleep 2")
            a(f"v_mov_b32 v{T}, 0")
            a(f"global_load_dword v{POLL}, v{T}, s[{S_CNT}:{S_CNT+1}] sc1")
            a("s_waitcnt vmcnt(0)")
            a(f"v_readfirstlane_b32 s{S_T0}, v{POLL}")
            a("s_nop 3")
            a(f"s_cmp_lt_u32 s{S_T0}, 128")
            a(f"s_cbranch_scc1 L_spin")
            a.label("L_kvready")
            a(f"v_lshlrev_b32 v{T}, 4, v{V_LANE}")
            a(f"s_lshl_b32 s{S_KVOFF}, s{S_W}, 12")
            for st in range(2):
                a(f"s_add_u32 m0, s{S_M0}, {131072 + st*16384}")
                a(f"s_add_u32 s{S_OFFA}, s{S_KVOFF}, {st*16384}")
                for i in range(4):
                    a(f"buffer_load_dwordx4 v{T}, s[{SRD_KV}:{SRD_KV+3}], s{S_OFFA} offen offset:{i*1024} sc1 lds"); vm.issue(('kv',st))
        a(pre)
        d = dma_stage(gs+3) if gs+3 < 20 else []
        r0 = q_reads(qs, 0, 0)
        if qs == 0:
            a(r0); a(d)
        else:
            a(interleave(q_mfmas(1), r0 + d, lead=3))
        a("s_waitcnt lgkmcnt(0)")
        a(interleave(q_mfmas(0), q_reads(qs, 1, 1), lead=0))
    a("s_waitcnt lgkmcnt(0)")
    a(q_mfmas(1))
    a("s_barrier")
    stamp(a, cfg, 3)

    ONES=4; IDX=8; VA=10; VB=11; VDMA=12; XT=13
    Q=96; O=32; L=128; S=[144,160]; P=[176,184]; K=[192,200]; V=[208,216]
    a(f"v_lshlrev_b32 v{VDMA}, 4, v{V_LANE}")
    a(f"s_mov_b32 m0, s{S_M0}")
    a(f"s_add_u32 s{S_OFFA}, s{S_KVOFF}, {2*16384}")
    for i in range(4):
        a(f"buffer_load_dwordx4 v{VDMA}, s[{SRD_KV}:{SRD_KV+3}], s{S_OFFA} offen offset:{i*1024} sc1 lds"); vm.issue(('kv',2))
    a("s_nop 7")
    for hh in range(2):
        for rb in range(2):
            t = hh*2+rb
            for m in range(2):
                cc = 2*hh+m
                x = ACC + (cc*4+2*rb)*4; y = ACC + (cc*4+2*rb+1)*4
                q = Q + t*8 + m*4
                a(f"v_cvt_pk_bf16_f32 v{q}, v{x}, v{x+1}")
                a(f"v_cvt_pk_bf16_f32 v{q+1}, v{x+2}, v{x+3}")
                a(f"v_cvt_pk_bf16_f32 v{q+2}, v{y}, v{y+1}")
                a(f"v_cvt_pk_bf16_f32 v{q+3}, v{y+2}, v{y+3}")
    a("s_nop 1")
    for t in range(4):
        for m in range(2):
            q = Q + t*8 + m*4
            a(f"v_permlane16_swap_b32 v{q}, v{q+2}")
            a(f"v_permlane16_swap_b32 v{q+1}, v{q+3}")
    if cfg.get('dump_q'):
        a(f"s_lshl_b32 s{S_T0}, s{S_WG}, 15")
        a(f"s_lshl_b32 s{S_T1}, s{S_W}, 13")
        a(f"s_add_u32 s{S_T0}, s{S_T0}, s{S_T1}")
        a(f"s_add_u32 s{S_T0}, s{S_T0}, 0x1000000")
        a(f"s_add_u32 s{S_T2}, s{PTR+24}, s{S_T0}")
        a(f"s_addc_u32 s{S_T3}, s{PTR+25}, 0")
        for t in range(4):
            for m in range(2):
                a(f"v_add_u32 v{XT}, {t*2048+m*1024}, v{VDMA}")
                a(f"global_store_dwordx4 v{XT}, {vr(Q+t*8+m*4,4)}, s[{S_T2}:{S_T3}]"); vm.issue('dump')
    for i in range(64): a(f"v_mov_b32 v{O+i}, 0")
    for i in range(16): a(f"v_mov_b32 v{L+i}, 0")
    for i in range(8): a(f"v_mov_b32 v{P[1]+i}, 0")
    for i in range(8): a(f"v_mov_b32 v{V[1]+i}, 0")
    a(f"v_and_b32 v{XT}, 15, v{V_LANE}")
    a(f"v_mov_b32 v{XT+1}, 0x3f803f80")
    a(f"v_cmp_gt_u32 vcc, 2, v{XT}")
    a("s_nop 1")
    a(f"v_cndmask_b32 v{ONES}, 0, v{XT+1}, vcc")
    a(f"v_cndmask_b32 v{ONES+1}, 0, v{XT+1}, vcc")
    a(f"v_lshrrev_b32 v{XT+2}, 1, v{XT}")
    a(f"v_cmp_eq_u32 vcc, 1, v{XT+2}")
    a("s_nop 1")
    a(f"v_cndmask_b32 v{ONES+2}, 0, v{XT+1}, vcc")
    a(f"v_cndmask_b32 v{ONES+3}, 0, v{XT+1}, vcc")
    a(f"v_and_b32 v{XT+2}, 1, v{XT}")
    a(f"v_cmp_eq_u32 vcc, 1, v{XT+2}")
    a(f"v_mov_b32 v{XT+1}, 0x4444")
    a(f"v_mov_b32 v{XT+2}, 0xeeee")
    a(f"v_cndmask_b32 v{IDX}, v{XT+1}, v{XT+2}, vcc")
    a(f"v_add_u32 v{VA}, 0x20000, v{VDMA}")
    a(f"v_mov_b32 v{VB}, v{VDMA}")
    a(f"s_waitcnt vmcnt({vm.wait_n(('kv',0))})")
    a("s_barrier")
    a(f"ds_read_b128 {vr(K[0],4)}, v{VA} offset:0")
    a(f"ds_read_b128 {vr(K[0]+4,4)}, v{VA} offset:1024")
    a(f"ds_read_b128 {vr(V[0],4)}, v{VA} offset:2048")
    a(f"ds_read_b128 {vr(V[0]+4,4)}, v{VA} offset:3072")
    a(f"ds_read_b128 {vr(K[1],4)}, v{VA} offset:4096")
    a(f"ds_read_b128 {vr(K[1]+4,4)}, v{VA} offset:{4096+1024}")
    a("s_waitcnt lgkmcnt(0)")
    a(f"v_mfma_f32_32x32x16_bf16 {vr(S[0],16)}, {vr(K[0],4)}, {vr(Q,4)}, 0")
    a(f"v_mfma_f32_32x32x16_bf16 {vr(S[0],16)}, {vr(K[0]+4,4)}, {vr(Q+4,4)}, {vr(S[0],16)}")
    a(f"s_add_u32 s{S_KVOFF}, s{S_KVOFF}, {3*16384}")
    a(f"s_add_u32 s{S_KVM0}, s{S_M0}, 16384")
    stamp(a, cfg, 4)
    a(f"s_mov_b32 s{S_LOOP}, 8")
    a("s_nop 7")
    a("s_nop 3")
    a(".p2align 6")
    a.label("L_attn")
    patt = cfg.get('patt', "A e e e c B e e c e C e c e e D c e R e c e e c e e c e S c").split()
    assert patt.count('e') == 16 and patt.count('c') == 8
    NQ = 4
    for step in range(8):
        for t in range(NQ):
            u = step*NQ + t
            un = u+1; stepn = un//NQ; tn = un % NQ
            up = u-1; stepp = up//NQ; tp = up % NQ
            sc = S[u%2]; sn = S[(u+1)%2]; Pp = P[(u-1)%2]; Pc = P[u%2]
            M = {
              'A': f"v_mfma_f32_32x32x16_bf16 {vr(sn,16)}, {vr(K[stepn%2],4)}, {vr(Q+tn*8,4)}, 0",
              'B': f"v_mfma_f32_32x32x16_bf16 {vr(sn,16)}, {vr(K[stepn%2]+4,4)}, {vr(Q+tn*8+4,4)}, {vr(sn,16)}",
              'C': f"v_mfma_f32_32x32x16_bf16 {vr(O+tp*16,16)}, {vr(V[stepp%2],4)}, {vr(Pp,4)}, {vr(O+tp*16,16)}",
              'D': f"v_mfma_f32_32x32x16_bf16 {vr(O+tp*16,16)}, {vr(V[stepp%2]+4,4)}, {vr(Pp+4,4)}, {vr(O+tp*16,16)}",
              'S': f"v_smfmac_f32_16x16x64_bf16 {vr(L+tp*4,4)}, {vr(ONES,4)}, {vr(Pp,8)}, v{IDX}",
            }
            ei = ci = 0
            for tok in patt:
                if tok == 'e': a(f"v_exp_f32 v{sc+ei}, v{sc+ei}"); ei += 1
                elif tok == 'c': a(f"v_cvt_pk_bf16_f32 v{Pc+ci}, v{sc+2*ci}, v{sc+2*ci+1}"); ci += 1
                elif tok == 'x': a("s_nop 0")
                elif tok == 'R':
                    if t == NQ-1:
                        if step % 4 == 2:
                            a("s_waitcnt vmcnt(4)")
                            a("s_barrier")
                            a(f"s_mov_b32 m0, s{S_KVM0}")
                            for i in range(4):
                                a(f"buffer_load_dwordx4 v{VDMA}, s[{SRD_KV}:{SRD_KV+3}], s{S_KVOFF} offen offset:{i*1024} sc1 lds")
                            a(f"s_add_u32 s{S_KVOFF}, s{S_KVOFF}, 16384")
                            if step == 2:
                                a(f"s_xor_b32 s{S_KVM0}, s{S_KVM0}, {0x20000 ^ 0x4000}")
                            else:
                                a(f"s_xor_b32 s{S_KVM0}, s{S_KVM0}, 0x4000")
                        def addr(st):
                            return (VA, st*4096) if st < 8 else (VB, (st-8)*4096)
                        rv, ov = addr(step+1); rk, ok = addr(step+2)
                        a(f"ds_read_b128 {vr(V[(step+1)%2],4)}, v{rv} offset:{ov+2048}")
                        a(f"ds_read_b128 {vr(V[(step+1)%2]+4,4)}, v{rv} offset:{ov+3072}")
                        a(f"ds_read_b128 {vr(K[step%2],4)}, v{rk} offset:{ok}")
                        a(f"ds_read_b128 {vr(K[step%2]+4,4)}, v{rk} offset:{ok+1024}")
                else:
                    if tok == 'A' and tn == 0: a("s_waitcnt lgkmcnt(0)")
                    if tok == 'C' and tp == 0: a("s_waitcnt lgkmcnt(2)")
                    a(M[tok])
    a(f"v_xor_b32 v{VA}, 0x20000, v{VA}")
    a(f"v_xor_b32 v{VB}, 0x20000, v{VB}")
    a(f"s_sub_u32 s{S_LOOP}, s{S_LOOP}, 1")
    a(f"s_cmp_lg_u32 s{S_LOOP}, 0")
    a(f"s_cbranch_scc1 L_attn")
    a("s_nop 1")
    a(f"v_mfma_f32_32x32x16_bf16 {vr(O+48,16)}, {vr(V[1],4)}, {vr(P[1],4)}, {vr(O+48,16)}")
    a(f"v_mfma_f32_32x32x16_bf16 {vr(O+48,16)}, {vr(V[1]+4,4)}, {vr(P[1]+4,4)}, {vr(O+48,16)}")
    a(f"v_smfmac_f32_16x16x64_bf16 {vr(L+12,4)}, {vr(ONES,4)}, {vr(P[1],8)}, v{IDX}")
    a("s_nop 15")
    a("s_waitcnt vmcnt(0) lgkmcnt(0)")
    stamp(a, cfg, 5)
    LS = 144
    def lsum():
        for t in range(4):
            a(f"v_add_f32 v{XT+2*t}, v{L+4*t}, v{L+4*t+1}")
            a(f"v_add_f32 v{XT+2*t+1}, v{L+4*t+2}, v{L+4*t+3}")
        a("s_nop 1")
        for t in range(4): a(f"v_permlane16_swap_b32 v{XT+2*t}, v{XT+2*t+1}")
        a("s_nop 1")
        for t in range(4): a(f"v_mov_b32 v{LS+t}, v{XT+2*t}")
        a("s_nop 1")
        for t in range(4): a(f"v_permlane32_swap_b32 v{LS+t}, v{XT+2*t}")
        a("s_nop 1")
    lsum()
    if not cfg.get('nocheck'):
        a(f"s_mov_b32 s{S_T0}, 0x71800000")
        a(f"s_mov_b32 s{S_T1}, 0x7f800000")
        a(f"s_mov_b64 s[{S_MASK}:{S_MASK+1}], exec")
        for t in range(4):
            a(f"v_cmp_le_f32 vcc, 1.0, v{LS+t}")
            a(f"v_cmp_ge_f32 s[{S_MASK2}:{S_MASK2+1}], s{S_T0}, v{LS+t}")
            a(f"v_add_f32 v{XT}, |v{O+16*t}|, |v{O+16*t+1}|")
            for i in range(2,16): a(f"v_add_f32 v{XT}, v{XT}, |v{O+16*t+i}|")
            a(f"s_and_b64 s[{S_MASK}:{S_MASK+1}], s[{S_MASK}:{S_MASK+1}], vcc")
            a(f"s_and_b64 s[{S_MASK}:{S_MASK+1}], s[{S_MASK}:{S_MASK+1}], s[{S_MASK2}:{S_MASK2+1}]")
            a(f"v_cmp_gt_f32 vcc, s{S_T1}, v{XT}")
            a("s_nop 4")
            a(f"s_and_b64 s[{S_MASK}:{S_MASK+1}], s[{S_MASK}:{S_MASK+1}], vcc")
        a(f"s_cmp_eq_u64 s[{S_MASK}:{S_MASK+1}], exec")
        if cfg.get('force_fallback'):
            a("s_cmp_eq_u32 s2, 0x7fffffff")
        a(f"s_cbranch_scc1 L_norm")
        NEG = 144
        SS = 160; MX = XT; KF = K[0]; VF = V[0]; PP = P[0]
        a(f"v_lshlrev_b32 v{VDMA}, 4, v{V_LANE}")
        for t in range(4):
            a(f"v_mov_b32 v{MX}, 0xff800000")
            a(f"s_mov_b32 s{S_T2}, 0")
            a.label(f"L_fb1_{t}")
            a(f"buffer_load_dwordx4 {vr(KF,4)}, v{VDMA}, s[{SRD_KV}:{SRD_KV+3}], s{S_T2} offen sc1")
            a(f"buffer_load_dwordx4 {vr(KF+4,4)}, v{VDMA}, s[{SRD_KV}:{SRD_KV+3}], s{S_T2} offen offset:1024 sc1")
            a("s_waitcnt vmcnt(0)")
            a(f"v_mfma_f32_32x32x16_bf16 {vr(SS,16)}, {vr(KF,4)}, {vr(Q+t*8,4)}, 0")
            a(f"v_mfma_f32_32x32x16_bf16 {vr(SS,16)}, {vr(KF+4,4)}, {vr(Q+t*8+4,4)}, {vr(SS,16)}")
            a("s_nop 15")
            for i in range(8): a(f"v_max3_f32 v{MX}, v{SS+2*i}, v{SS+2*i+1}, v{MX}")
            a(f"s_add_u32 s{S_T2}, s{S_T2}, 4096")
            a(f"s_cmp_lt_u32 s{S_T2}, 262144")
            a(f"s_cbranch_scc1 L_fb1_{t}")
            a(f"v_mov_b32 v{MX+1}, v{MX}")
            a("s_nop 1")
            a(f"v_permlane32_swap_b32 v{MX}, v{MX+1}")
            a("s_nop 1")
            a(f"v_max_f32 v{MX}, v{MX}, v{MX+1}")
            for i in range(16): a(f"v_sub_f32 v{NEG+i}, 0, v{MX}")
            for i in range(16): a(f"v_mov_b32 v{O+16*t+i}, 0")
            for i in range(4): a(f"v_mov_b32 v{L+4*t+i}, 0")
            a(f"s_mov_b32 s{S_T2}, 0")
            a.label(f"L_fb2_{t}")
            a(f"buffer_load_dwordx4 {vr(KF,4)}, v{VDMA}, s[{SRD_KV}:{SRD_KV+3}], s{S_T2} offen sc1")
            a(f"buffer_load_dwordx4 {vr(KF+4,4)}, v{VDMA}, s[{SRD_KV}:{SRD_KV+3}], s{S_T2} offen offset:1024 sc1")
            a(f"buffer_load_dwordx4 {vr(VF,4)}, v{VDMA}, s[{SRD_KV}:{SRD_KV+3}], s{S_T2} offen offset:2048 sc1")
            a(f"buffer_load_dwordx4 {vr(VF+4,4)}, v{VDMA}, s[{SRD_KV}:{SRD_KV+3}], s{S_T2} offen offset:3072 sc1")
            a("s_waitcnt vmcnt(0)")
            a(f"v_mfma_f32_32x32x16_bf16 {vr(SS,16)}, {vr(KF,4)}, {vr(Q+t*8,4)}, {vr(NEG,16)}")
            a(f"v_mfma_f32_32x32x16_bf16 {vr(SS,16)}, {vr(KF+4,4)}, {vr(Q+t*8+4,4)}, {vr(SS,16)}")
            a("s_nop 15")
            for i in range(16): a(f"v_exp_f32 v{SS+i}, v{SS+i}")
            a("s_nop 1")
            for i in range(8): a(f"v_cvt_pk_bf16_f32 v{PP+i}, v{SS+2*i}, v{SS+2*i+1}")
            a("s_nop 2")
            a(f"v_mfma_f32_32x32x16_bf16 {vr(O+16*t,16)}, {vr(VF,4)}, {vr(PP,4)}, {vr(O+16*t,16)}")
            a(f"v_mfma_f32_32x32x16_bf16 {vr(O+16*t,16)}, {vr(VF+4,4)}, {vr(PP+4,4)}, {vr(O+16*t,16)}")
            a(f"v_smfmac_f32_16x16x64_bf16 {vr(L+4*t,4)}, {vr(ONES,4)}, {vr(PP,8)}, v{IDX}")
            a("s_nop 15")
            a(f"s_add_u32 s{S_T2}, s{S_T2}, 4096")
            a(f"s_cmp_lt_u32 s{S_T2}, 262144")
            a(f"s_cbranch_scc1 L_fb2_{t}")
        a("s_nop 7")
        lsum()
        a.label("L_norm")
    a(f"v_and_b32 v{XT}, 15, v{V_LANE}")
    a(f"v_lshlrev_b32 v{XT}, 4, v{XT}")
    a(f"v_bfe_u32 v{XT+1}, v{V_LANE}, 4, 1")
    a(f"v_lshlrev_b32 v{XT+1}, 15, v{XT+1}")
    a(f"v_lshrrev_b32 v{XT+2}, 5, v{V_LANE}")
    a(f"v_lshlrev_b32 v{XT+2}, 8, v{XT+2}")
    a(f"v_add3_u32 v{XT}, v{XT}, v{XT+1}, v{XT+2}")
    a(f"s_lshl_b32 s{S_T0}, s{S_R}, 3")
    a(f"s_lshl_b32 s{S_T1}, s{S_WM}, 2")
    a(f"s_add_u32 s{S_T0}, s{S_T0}, s{S_T1}")
    a(f"s_lshl_b32 s{S_T0}, s{S_T0}, 5")
    a(f"s_lshl_b32 s{S_T1}, s{S_G}, 2")
    a(f"s_add_u32 s{S_T0}, s{S_T0}, s{S_T1}")
    a(f"s_lshl_b32 s{S_T1}, s{S_WN}, 1")
    a(f"s_add_u32 s{S_T0}, s{S_T0}, s{S_T1}")
    a(f"s_lshl_b32 s{S_OST}, s{S_T0}, 10")
    for t in range(4): a(f"v_rcp_f32 v{LS+t}, v{LS+t}")
    a("s_nop 0")
    for t in range(4):
        hh, rb = t>>1, t&1
        for i in range(16): a(f"v_mul_f32 v{O+16*t+i}, v{O+16*t+i}, v{LS+t}")
        R = P[0]
        R = 160 + 8*t
        for i in range(8): a(f"v_cvt_pk_bf16_f32 v{R+i}, v{O+16*t+2*i}, v{O+16*t+2*i+1}")
        a(f"s_add_u32 s{S_T0}, s{S_OST}, {(2*rb*32 + hh)*1024}")
        a(f"buffer_store_dwordx4 {vr(R,4)}, v{XT}, s[{SRD_O}:{SRD_O+3}], s{S_T0} offen")
        a(f"buffer_store_dwordx4 {vr(R+4,4)}, v{XT}, s[{SRD_O}:{SRD_O+3}], s{S_T0} offen offset:512")
    if cfg.get('stamps'):
        a("s_waitcnt vmcnt(0)")
        stamp(a, cfg, 6)
        stamp_store(a, cfg, 7, 0, "L_k1_ss")
    a.label("L_k1_end")
    a("s_endpgm")
    return a

def gen_k2(cfg):
    a = Asm()
    kname = cfg['k2']
    a(f".globl {kname}\n.p2align 8\n.type {kname},@function")
    a.label(kname)
    a(f"s_cmp_ge_u32 s{S_WG}, 256")
    a(f"s_cbranch_scc1 L_k2_end")
    stamp(a, cfg, 0)
    load_ptrs(a)
    decode_ids(a)
    SRD_WO=4; SRD_OUT=8; SRD_OI=20
    V_LANE=0; VOW=2; VB0=6; VWA=8; T=16
    ACC=32; FA=[96,128]; BR=160
    NSLOT=4; SLOT=16384
    a(f"v_lshrrev_b32 v{T}, 6, v0")
    a(f"v_and_b32 v{V_LANE}, 63, v0")
    a("s_nop 0")
    a(f"v_readfirstlane_b32 s{S_W}, v{T}")
    L4=T+1; X1=T+2; X2=T+3; X3=T+4
    a(f"v_lshrrev_b32 v{L4}, 4, v{V_LANE}")
    for j in range(4):
        a(f"v_and_b32 v{X1}, 15, v{V_LANE}")
        a(f"v_lshrrev_b32 v{X2}, 1, v{X1}")
        a(f"v_or_b32 v{X3}, {(j&1)<<2}, v{L4}")
        a(f"v_xor_b32 v{X2}, v{X2}, v{X3}")
        a(f"v_lshlrev_b32 v{X2}, 5, v{X2}")
        a(f"v_and_b32 v{X1}, 1, v{X1}")
        a(f"v_lshlrev_b32 v{X1}, 4, v{X1}")
        a(f"v_add_u32 v{X1}, v{X1}, v{X2}")
        a(f"v_lshlrev_b32 v{X2}, 11, v{L4}")
        a(f"v_add_u32 v{X1}, v{X1}, v{X2}")
        a(f"v_add_u32 v{VOW+j}, {4*j*2048 - j*1024}, v{X1}")
    a(f"v_lshlrev_b32 v{VB0}, 4, v{V_LANE}")
    a(f"v_and_b32 v{X1}, 15, v{V_LANE}")
    a(f"v_lshrrev_b32 v{X2}, 2, v{X1}")
    a(f"v_and_b32 v{X3}, 1, v{L4}")
    a(f"v_lshlrev_b32 v{X3}, 2, v{X3}")
    a(f"v_add_u32 v{X3}, v{X3}, v{X2}")
    a(f"v_lshrrev_b32 v{T}, 1, v{L4}")
    a(f"v_lshlrev_b32 v{T}, 4, v{T}")
    a(f"v_add_u32 v{T}, v{T}, v{X3}")
    a(f"v_lshlrev_b32 v{T}, 8, v{T}")
    a(f"v_and_b32 v{X1}, 3, v{X1}")
    a(f"v_lshlrev_b32 v{X1}, 3, v{X1}")
    a(f"v_add_u32 v{T}, v{T}, v{X1}")
    for c in range(8):
        a(f"v_xor_b32 v{X2}, {c}, v{X3}")
        a(f"v_lshlrev_b32 v{X2}, 5, v{X2}")
        a(f"v_add_u32 v{VWA+c}, v{X2}, v{T}")
    a(f"s_lshl_b32 s{S_T1}, s{S_W}, 15")
    a(f"s_lshl_b32 s{S_T2}, s{S_G}, 8")
    a(f"s_add_u32 s{S_WQ}, s{S_T1}, s{S_T2}")
    a(f"s_lshl_b32 s{S_T0}, s{S_R}, 3")
    a(f"s_lshl_b32 s{S_T1}, s{S_W}, 1")
    a(f"s_add_u32 s{S_T0}, s{S_T0}, s{S_T1}")
    a(f"s_lshl_b32 s{S_XQ}, s{S_T0}, 15")
    a(f"s_lshl_b32 s{S_M0}, s{S_W}, 12")
    a("s_waitcnt lgkmcnt(0)")
    a(f"s_cmp_lg_u32 s{S_B}, 0")
    sel_ptr(a, SRD_WO, 8, 18)
    srd_tail(a, SRD_WO, 1024*2048)
    a(f"s_mov_b32 s{SRD_OUT}, s{PTR+20}")
    a(f"s_mov_b32 s{SRD_OUT+1}, s{PTR+21}")
    srd_tail(a, SRD_OUT, 2048*4096)
    a(f"s_lshl_b32 s{S_T0}, s{S_B}, 22")
    a(f"s_add_u32 s{S_T0}, s{S_T0}, {WS_O}")
    a(f"s_add_u32 s{SRD_OI}, s{PTR+24}, s{S_T0}")
    a(f"s_addc_u32 s{SRD_OI+1}, s{PTR+25}, 0")
    srd_tail(a, SRD_OI, 4*1024*1024)
    vm = VM()
    def dma_stage(st):
        o = []
        slot = st % NSLOT
        o.append(f"s_add_u32 m0, s{S_M0}, {slot*SLOT}")
        o.append(f"s_add_u32 s{S_OFFB}, s{S_WQ}, {st*131072}")
        for j in range(4):
            o.append(f"buffer_load_dwordx4 v{VOW+j}, s[{SRD_WO}:{SRD_WO+3}], s{S_OFFB} offen offset:{j*1024} lds"); vm.issue(('st',st))
        o.append(f"s_add_u32 s{S_OFFA}, s{S_XQ}, {st*2048}")
        o.append(f"s_add_u32 s{S_T0}, s{S_XQ}, {st*2048+32768}")
        for s in range(2):
            o.append(f"buffer_load_dwordx4 {vr(BR+slot*16+(s*2+0)*4,4)}, v{VB0}, s[{SRD_OI}:{SRD_OI+3}], s{S_OFFA} offen offset:{s*1024}"); vm.issue(('st',st))
            o.append(f"buffer_load_dwordx4 {vr(BR+slot*16+(s*2+1)*4,4)}, v{VB0}, s[{SRD_OI}:{SRD_OI+3}], s{S_T0} offen offset:{s*1024}"); vm.issue(('st',st))
        return o
    def reads(st, s, fset):
        slot = st % NSLOT
        o = []
        for c in range(8):
            o.append(f"ds_read_b64_tr_b16 {vr(FA[fset]+4*c,2)}, v{VWA+c} offset:{slot*SLOT + (32*s)*256}")
            o.append(f"ds_read_b64_tr_b16 {vr(FA[fset]+4*c+2,2)}, v{VWA+c} offset:{slot*SLOT + (32*s+8)*256}")
        return o
    def mfmas(st, s, fset):
        slot = st % NSLOT
        o = []
        for c in range(8):
            for rt in range(2):
                acc = ACC + (c*2+rt)*4
                o.append(f"v_mfma_f32_16x16x32_bf16 {vr(acc,4)}, {vr(FA[fset]+4*c,4)}, {vr(BR+slot*16+(s*2+rt)*4,4)}, {vr(acc,4)}")
        return o
    a(dma_stage(0)); a(dma_stage(1)); a(dma_stage(2))
    for i in range(64): a(f"v_mov_b32 v{ACC+i}, 0")
    for st in range(16):
        a(f"s_waitcnt vmcnt({vm.wait_n(('st',st))}) lgkmcnt(0)")
        a("s_barrier")
        if st == 0: stamp(a, cfg, 1)
        r0 = reads(st, 0, 0)
        if st == 0:
            a(r0); a(dma_stage(3))
        else:
            a(interleave(mfmas(st-1, 1, 1), r0, lead=4))
            if st+3 < 16: d = dma_stage(st+3)
            else: d = []
        a("s_waitcnt lgkmcnt(0)")
        if st == 0: d = []
        a(interleave(mfmas(st, 0, 0), d + reads(st, 1, 1), lead=0))
    a("s_waitcnt lgkmcnt(0)")
    a(mfmas(15, 1, 1))
    stamp(a, cfg, 2)
    a(f"v_and_b32 v{X1}, 15, v{V_LANE}")
    a(f"v_lshlrev_b32 v{X1}, 12, v{X1}")
    a(f"v_and_b32 v{X2}, 1, v{L4}")
    a(f"v_lshlrev_b32 v{X2}, 5, v{X2}")
    a(f"v_lshrrev_b32 v{X3}, 1, v{L4}")
    a(f"v_lshlrev_b32 v{X3}, 4, v{X3}")
    a(f"v_add3_u32 v{X1}, v{X1}, v{X2}, v{X3}")
    a(f"s_lshl_b32 s{S_T0}, s{S_R}, 19")
    a(f"s_lshl_b32 s{S_T1}, s{S_W}, 17")
    a(f"s_add_u32 s{S_T0}, s{S_T0}, s{S_T1}")
    a(f"s_lshl_b32 s{S_T1}, s{S_B}, 11")
    a(f"s_add_u32 s{S_T0}, s{S_T0}, s{S_T1}")
    a(f"s_lshl_b32 s{S_T1}, s{S_G}, 8")
    a(f"s_add_u32 s{S_OST}, s{S_T0}, s{S_T1}")
    a("s_nop 7")
    R = 96
    k = 0
    for rt in range(2):
        for cp in range(4):
            x = ACC + ((2*cp)*2+rt)*4; y = ACC + ((2*cp+1)*2+rt)*4
            q = R + 4*k; k += 1
            a(f"v_cvt_pk_bf16_f32 v{q}, v{x}, v{x+1}")
            a(f"v_cvt_pk_bf16_f32 v{q+1}, v{x+2}, v{x+3}")
            a(f"v_cvt_pk_bf16_f32 v{q+2}, v{y}, v{y+1}")
            a(f"v_cvt_pk_bf16_f32 v{q+3}, v{y+2}, v{y+3}")
    a("s_nop 1")
    k = 0
    for rt in range(2):
        a(f"s_add_u32 s{S_T0}, s{S_OST}, {rt*16*4096}")
        for cp in range(4):
            q = R + 4*k; k += 1
            a(f"v_permlane16_swap_b32 v{q}, v{q+2}")
            a(f"v_permlane16_swap_b32 v{q+1}, v{q+3}")
            a("s_nop 1")
            a(f"buffer_store_dwordx4 {vr(q,4)}, v{X1}, s[{SRD_OUT}:{SRD_OUT+3}], s{S_T0} offen offset:{cp*64}")
    if cfg.get('stamps'):
        a("s_waitcnt vmcnt(0)")
        stamp(a, cfg, 3)
        stamp_store(a, cfg, 4, 1, "L_k2_ss")
    a.label("L_k2_end")
    a("s_endpgm")
    return a

def kd(name, nv, ns):
    return f""".amdhsa_kernel {name}
  .amdhsa_next_free_vgpr {nv}
  .amdhsa_next_free_sgpr {ns}
  .amdhsa_accum_offset {nv}
  .amdhsa_group_segment_fixed_size 0
  .amdhsa_kernarg_size 104
  .amdhsa_user_sgpr_count 2
  .amdhsa_user_sgpr_kernarg_segment_ptr 1
  .amdhsa_system_sgpr_workgroup_id_x 1
.end_amdhsa_kernel"""

def build(cfg):
    cfg = dict(cfg)
    cfg.setdefault('k1', 'mqa_attn_kernel'); cfg.setdefault('k2', 'mqa_oproj_kernel')
    hdr = open('cdna_kernels/' + NAME + '.s.ref').read().split('\n')
    head = [l for l in hdr if l.startswith(';') and '@launch' not in l and 'Override launch' not in l and 'grid=ceil' not in l]
    out = head[:15]
    out.append(f"; @launch kernel={cfg['k1']} grid=(256,1,1) block=(256,1,1) lds=163840")
    out.append(f"; @launch kernel={cfg['k2']} grid=(256,1,1) block=(256,1,1) lds=65536")
    out.append('.amdgcn_target "amdgcn-amd-amdhsa--gfx950"')
    out.append('.text')
    out.append(gen_k1(cfg).text())
    out.append(gen_k2(cfg).text())
    out.append('.section .rodata,"a"')
    out.append('.p2align 6'); out.append(kd(cfg['k1'], 232, 102))
    out.append('.p2align 6'); out.append(kd(cfg['k2'], 224, 102))
    return "\n".join(out) + "\n"

if __name__ == "__main__":
    cfg = {}
    outfn = 'cdna_kernels/' + NAME + '.s'
    for arg in sys.argv[1:]:
        if arg.startswith('-o'): outfn = arg[2:]
        elif '=' in arg:
            k, v = arg.split('=', 1); cfg[k] = v
        else: cfg[arg] = True
    open(outfn, 'w').write(build(cfg))
    print("wrote", outfn)
```

```python
import sys, math

NAME = "concat_heads__grouped_kv_mqa__grouped_kv_mqa__prompt"

class Asm:
    def __init__(self): self.l = []
    def __call__(self, s=""):
        if isinstance(s, (list, tuple)):
            for x in s: self(x)
        else: self.l.append("  " + s if s and not s.endswith(":") else s)
    def label(self, s): self.l.append(s + ":")
    def text(self): return "\n".join(self.l)

def vr(b, n=1): return f"v{b}" if n == 1 else f"v[{b}:{b+n-1}]"
def sr(b, n=1): return f"s{b}" if n == 1 else f"s[{b}:{b+n-1}]"

def interleave(main, others, lead=0, per=None):
    out = list(others[:lead]); rest = list(others[lead:])
    n = len(main)
    if n == 0: return out + rest
    for i, m in enumerate(main):
        out.append(m)
        if per is not None:
            k = min(per, len(rest))
        else:
            left = n - i
            k = -(-len(rest) // left)
        out += rest[:k]; rest = rest[k:]
    return out + rest

class VM:
    def __init__(self): self.ops = []
    def issue(self, tag): self.ops.append(tag)
    def wait_n(self, tag):
        idx = [i for i, t in enumerate(self.ops) if t == tag]
        assert idx, tag
        n = len(self.ops) - 1 - idx[-1]
        assert n <= 63
        return n

WS_KV = 0
WS_O  = 0x100000
KSCALE = (32 ** -0.5) * math.log2(math.e)
def f32hex(x):
    import struct
    return "0x%08x" % struct.unpack("<I", struct.pack("<f", x))[0]

S_WG=2
SRD_X=4; SRD_WQ=8; SRD_WKV=12; SRD_KV=16; SRD_O=20
S_CNT=24
S_W=26; S_B=27; S_R=28; S_G=29
S_T0=30; S_T1=31; S_T2=32; S_T3=33; S_T4=34; S_T5=35
PTR=36
S_XQ=62; S_WQ=63; S_XKV=64; S_WKV=65; S_M0=66; S_OFFA=67; S_OFFB=68; S_LOOP=69; S_KVOFF=70; S_KVM0=71
S_WM=72; S_WN=73; S_OST=74; S_SAVE=76
S_MASK=78
S_MASK2=80
S_TYPE=82; S_W8=83

def decode_ids(a):
    a(f"s_and_b32 s{S_T0}, s{S_WG}, 7")
    a(f"s_lshr_b32 s{S_T1}, s{S_WG}, 3")
    a(f"s_lshr_b32 s{S_B}, s{S_T0}, 2")
    a(f"s_and_b32 s{S_T0}, s{S_T0}, 3")
    a(f"s_lshl_b32 s{S_T0}, s{S_T0}, 2")
    a(f"s_lshr_b32 s{S_R}, s{S_T1}, 3")
    a(f"s_add_u32 s{S_R}, s{S_R}, s{S_T0}")
    a(f"s_and_b32 s{S_G}, s{S_T1}, 7")

def load_ptrs(a):
    a(f"s_load_dwordx16 s[{PTR}:{PTR+15}], s[0:1], 0")
    a(f"s_load_dwordx8 s[{PTR+16}:{PTR+23}], s[0:1], 64")
    a(f"s_load_dwordx2 s[{PTR+24}:{PTR+25}], s[0:1], 96")
def sel_ptr(a, dst, idxA, idxB):
    a(f"s_cselect_b32 s{dst}, s{PTR+idxB}, s{PTR+idxA}")
    a(f"s_cselect_b32 s{dst+1}, s{PTR+idxB+1}, s{PTR+idxA+1}")
def srd_tail(a, srd, nbytes):
    a(f"s_and_b32 s{srd+1}, s{srd+1}, 0xffff")
    a(f"s_mov_b32 s{srd+2}, {nbytes}")
    a(f"s_mov_b32 s{srd+3}, 0x00020000")

ST0=84
def stamp(a, cfg, i):
    if cfg.get('stamps'):
        a(f"s_memrealtime s[{ST0+2*i}:{ST0+2*i+1}]")
        a("s_waitcnt lgkmcnt(0)")
def stamp_store(a, cfg, n, kidx, lab):
    if not cfg.get('stamps'): return
    a(f"s_cmp_lg_u32 s{S_W}, 0")
    a(f"s_cbranch_scc1 {lab}")
    a(f"s_lshl_b32 s{S_T0}, s{S_WG}, 7")
    a(f"s_add_u32 s{S_T0}, s{S_T0}, {0x3000000 + kidx*0x10000}")
    a(f"s_add_u32 s{S_T2}, s{PTR+24}, s{S_T0}")
    a(f"s_addc_u32 s{S_T3}, s{PTR+25}, 0")
    a("v_mov_b32 v2, 0")
    for i in range(n):
        a(f"v_mov_b32 v4, s{ST0+2*i}")
        a(f"v_mov_b32 v5, s{ST0+2*i+1}")
        a(f"global_store_dwordx2 v2, v[4:5], s[{S_T2}:{S_T3}] offset:{8*i}")
        a("s_nop 1")
    a.label(lab)


def lane_wave(a, T):
    a(f"v_lshrrev_b32 v{T}, 6, v0")
    a(f"v_and_b32 v0, 63, v0")
    a(f"s_nop 0")
    a(f"v_readfirstlane_b32 s{S_W8}, v{T}")
    a("s_nop 3")
    a(f"s_and_b32 s{S_W}, s{S_W8}, 3")

def gen_vox(a, VOX, T):
    L3=T; L4=T+1; X1=T+2; X2=T+3
    a(f"v_lshrrev_b32 v{L3}, 3, v0")
    a(f"v_lshrrev_b32 v{L4}, 4, v0")
    for i in range(4):
        a(f"v_add_u32 v{X1}, {4*i}, v{L4}")
        a(f"v_and_b32 v{X1}, 7, v{X1}")
        a(f"v_and_b32 v{X2}, 7, v0")
        a(f"v_xor_b32 v{X1}, v{X1}, v{X2}")
        a(f"v_lshlrev_b32 v{X1}, 4, v{X1}")
        a(f"v_lshlrev_b32 v{X2}, 11, v{L3}")
        a(f"v_add_u32 v{X1}, v{X1}, v{X2}")
        a(f"v_add_u32 v{VOX+i}, {8*i*2048 - i*1024}, v{X1}")

def gen_vow(a, VOW, T, bit):
    L4=T+1; X1=T+2; X2=T+3; X3=T+4
    a(f"v_lshrrev_b32 v{L4}, 4, v0")
    for j in range(4):
        a(f"v_and_b32 v{X1}, 15, v0")
        a(f"v_lshrrev_b32 v{X2}, 1, v{X1}")
        a(f"v_or_b32 v{X3}, {bit(j)<<2}, v{L4}")
        a(f"v_xor_b32 v{X2}, v{X2}, v{X3}")
        a(f"v_lshlrev_b32 v{X2}, 5, v{X2}")
        a(f"v_and_b32 v{X1}, 1, v{X1}")
        a(f"v_lshlrev_b32 v{X1}, 4, v{X1}")
        a(f"v_add_u32 v{X1}, v{X1}, v{X2}")
        a(f"v_lshlrev_b32 v{X2}, 11, v{L4}")
        a(f"v_add_u32 v{X1}, v{X1}, v{X2}")
        a(f"v_add_u32 v{VOW+j}, {4*j*2048 - j*1024}, v{X1}")

def gemm_mfmas(ACC, FA, FB, fset):
    o = []
    for cc in range(4):
        for rt in range(4):
            acc = ACC + (cc*4+rt)*4
            o.append(f"v_mfma_f32_16x16x32_bf16 {vr(acc,4)}, {vr(FA[fset]+4*cc,4)}, {vr(FB[fset]+4*rt,4)}, {vr(acc,4)}")
    return o


WS_F = 0xA00000

def gen_fused(cfg):
    a = Asm()
    kname = cfg['k1']
    a(f".globl {kname}\n.p2align 8\n.type {kname},@function")
    a.label(kname)
    a(f"s_cmp_ge_u32 s{S_WG}, 256")
    a(f"s_cbranch_scc1 L_end")
    stamp(a, cfg, 0)
    load_ptrs(a)
    decode_ids(a)
    T=26
    lane_wave(a, T)
    a(f"s_and_b32 s{S_WN}, s{S_W}, 1")
    a(f"s_lshr_b32 s{S_WM}, s{S_W}, 1")
    a(f"s_and_b32 s{S_TYPE}, s{S_G}, 1")
    a(f"s_lshl_b32 s{S_M0}, s{S_W}, 12")
    a(f"s_cmp_ge_u32 s{S_W8}, 4")
    a(f"s_cbranch_scc1 L_loader")
    NSLOT=5; SLOT=32768
    def slot_set(slot):
        return slot // 2, (slot % 2) * SLOT
    VXA=2
    VWA=8
    VKXA=20; VKWA=22
    ACC=32; FA=[96,128]; FB=[112,144]; KVACC=160; KVX=164; KVW=196
    L3=T+1; L4=T+2; X1=T+3; X2=T+4; X3=T+5
    a(f"v_lshrrev_b32 v{L4}, 4, v0")
    a(f"v_and_b32 v{X1}, 15, v0")
    a(f"v_lshrrev_b32 v{X2}, 1, v{X1}")
    a(f"v_lshlrev_b32 v{X3}, 7, v{X1}")
    a(f"s_lshl_b32 s{S_T0}, s{S_WM}, 13")
    a(f"s_lshl_b32 s{S_T1}, s{S_WM}, 11")
    for s in range(2):
        a(f"v_add_u32 v{L3}, {4*s}, v{L4}")
        a(f"v_xor_b32 v{L3}, v{L3}, v{X2}")
        a(f"v_lshlrev_b32 v{L3}, 4, v{L3}")
        a(f"v_add_u32 v{L3}, v{L3}, v{X3}")
        a(f"v_add_u32 v{VXA+s}, s{S_T0}, v{L3}")
        a(f"v_add_u32 v{VXA+2+s}, 0x10000, v{VXA+s}")
        a(f"v_add_u32 v{VXA+4+s}, 0x20000, v{VXA+s}")
        a(f"v_add_u32 v{VKXA+s}, s{S_T1}, v{L3}")
    a(f"v_lshrrev_b32 v{X2}, 2, v{X1}")
    a(f"v_and_b32 v{L3}, 1, v{L4}")
    a(f"v_lshlrev_b32 v{X3}, 2, v{L3}")
    a(f"v_or_b32 v{X3}, v{X3}, v{X2}")
    a(f"v_lshlrev_b32 v{T}, 3, v{L4}")
    a(f"v_add_u32 v{T}, v{T}, v{X2}")
    a(f"v_and_b32 v{X1}, 3, v{X1}")
    a(f"v_lshlrev_b32 v{X1}, 3, v{X1}")
    a(f"s_lshl_b32 s{S_T0}, s{S_WN}, 2")
    a(f"v_xor_b32 v{L3}, s{S_WN}, v{L3}")
    a(f"v_lshlrev_b32 v{L3}, 5, v{L3}")
    a(f"v_lshlrev_b32 v{X2}, 6, v{T}")
    a(f"v_add3_u32 v{VKWA}, v{L3}, v{X2}, v{X1}")
    a(f"v_add_u32 v{VKWA}, 16384, v{VKWA}")
    a(f"v_lshlrev_b32 v{T}, 8, v{T}")
    a(f"v_add_u32 v{T}, v{T}, v{X1}")
    a(f"v_add_u32 v{T}, 16384, v{T}")
    for cc in range(4):
        a(f"s_add_u32 s{S_T1}, s{S_T0}, {cc}")
        a(f"v_xor_b32 v{X2}, s{S_T1}, v{X3}")
        a(f"v_lshlrev_b32 v{X2}, 5, v{X2}")
        a(f"v_add_u32 v{VWA+cc}, v{X2}, v{T}")
        a(f"v_add_u32 v{VWA+4+cc}, 0x10000, v{VWA+cc}")
        a(f"v_add_u32 v{VWA+8+cc}, 0x20000, v{VWA+cc}")
    for i in range(4): a(f"v_mov_b32 v{KVACC+i}, 0")
    for i in range(64): a(f"v_mov_b32 v{ACC+i}, 0")
    a("s_waitcnt lgkmcnt(0)")
    a(f"s_lshl_b32 s{S_T0}, s{S_B}, 18")
    a(f"s_add_u32 s{SRD_KV}, s{PTR+24}, s{S_T0}")
    a(f"s_addc_u32 s{SRD_KV+1}, s{PTR+25}, 0")
    srd_tail(a, SRD_KV, 262144)
    a(f"s_lshl_b32 s{S_T0}, s{S_B}, 22")
    a(f"s_add_u32 s{S_T0}, s{S_T0}, {WS_O}")
    a(f"s_add_u32 s{SRD_O}, s{PTR+24}, s{S_T0}")
    a(f"s_addc_u32 s{SRD_O+1}, s{PTR+25}, 0")
    srd_tail(a, SRD_O, 4*1024*1024)
    a(f"s_lshl_b32 s{S_T0}, s{S_B}, 7")
    a(f"s_add_u32 s{S_CNT}, s{PTR+22}, s{S_T0}")
    a(f"s_addc_u32 s{S_CNT+1}, s{PTR+23}, 0")
    SRD_OUT=4
    a(f"s_mov_b32 s{SRD_OUT}, s{PTR+20}")
    a(f"s_mov_b32 s{SRD_OUT+1}, s{PTR+21}")
    srd_tail(a, SRD_OUT, 2048*4096)
    stamp(a, cfg, 1)
    for gs in range(4):
        a("s_barrier")
        so = (gs % 2) * SLOT
        if gs == 2:
            for r_ in (VKXA, VKXA+1, VKWA): a(f"v_add_u32 v{r_}, 0x10000, v{r_}")
        for s in range(8):
            a(f"ds_read_b128 {vr(KVX+4*s,4)}, v{VKXA+(s&1)} offset:{so + (s>>1)*4096}")
            a(f"ds_read_b64_tr_b16 {vr(KVW+4*s,2)}, v{VKWA} offset:{so + (32*s)*64}")
            a(f"ds_read_b64_tr_b16 {vr(KVW+4*s+2,2)}, v{VKWA} offset:{so + (32*s+4)*64}")
        a(f"s_cmp_lg_u32 s{S_TYPE}, 0")
        a(f"s_cbranch_scc1 L_kv_v{gs}")
        for s in range(8):
            if s in (0,4): a(f"s_waitcnt lgkmcnt({12 if s==0 else 0})")
            a(f"v_mfma_f32_16x16x32_bf16 {vr(KVACC,4)}, {vr(KVW+4*s,4)}, {vr(KVX+4*s,4)}, {vr(KVACC,4)}")
        a(f"s_branch L_kv_e{gs}")
        a.label(f"L_kv_v{gs}")
        for s in range(8):
            if s in (0,4): a(f"s_waitcnt lgkmcnt({12 if s==0 else 0})")
            a(f"v_mfma_f32_16x16x32_bf16 {vr(KVACC,4)}, {vr(KVX+4*s,4)}, {vr(KVW+4*s,4)}, {vr(KVACC,4)}")
        a.label(f"L_kv_e{gs}")
    stamp(a, cfg, 2)

    def kv_epilogue():
        o = []
        c=T; g_=T+1; x1=T+2; x2=T+3; ad=T+4
        o.append(f"v_and_b32 v{c}, 15, v0")
        o.append(f"v_lshrrev_b32 v{g_}, 4, v0")
        o.append(f"s_cmp_lg_u32 s{S_TYPE}, 0")
        o.append(f"s_cselect_b32 s{S_T0}, s{S_WM}, s{S_WN}")
        o.append(f"s_cselect_b32 s{S_T1}, s{S_WN}, s{S_WM}")
        o.append(f"s_cselect_b32 s{S_T2}, 0, 1")
        o.append(f"s_lshl_b32 s{S_T0}, s{S_T0}, 10")
        o.append(f"s_lshl_b32 s{S_T1}, s{S_T1}, 8")
        o.append(f"s_add_u32 s{S_T0}, s{S_T0}, s{S_T1}")
        o.append(f"s_lshl_b32 s{S_T1}, s{S_TYPE}, 11")
        o.append(f"s_add_u32 s{S_T0}, s{S_T0}, s{S_T1}")
        o.append(f"s_lshl_b32 s{S_T1}, s{S_R}, 2")
        o.append(f"s_lshr_b32 s{S_T3}, s{S_G}, 1")
        o.append(f"s_add_u32 s{S_T1}, s{S_T1}, s{S_T3}")
        o.append(f"s_lshl_b32 s{S_T1}, s{S_T1}, 12")
        o.append(f"s_add_u32 s{S_T0}, s{S_T0}, s{S_T1}")
        o.append(f"v_lshrrev_b32 v{x1}, s{S_T2}, v{g_}")
        o.append(f"v_and_b32 v{x1}, 1, v{x1}")
        o.append(f"v_lshlrev_b32 v{x1}, 9, v{x1}")
        o.append(f"s_xor_b32 s{S_T2}, s{S_T2}, 1")
        o.append(f"v_lshrrev_b32 v{x2}, s{S_T2}, v{g_}")
        o.append(f"v_and_b32 v{x2}, 1, v{x2}")
        o.append(f"v_lshlrev_b32 v{x2}, 3, v{x2}")
        o.append(f"v_lshlrev_b32 v{ad}, 4, v{c}")
        o.append(f"v_add3_u32 v{ad}, v{ad}, v{x1}, v{x2}")
        o.append(f"s_cmp_lg_u32 s{S_TYPE}, 0")
        o.append(f"s_cselect_b32 s{S_T1}, 1.0, {f32hex(KSCALE)}")
        o.append("s_nop 3")
        for i in range(4): o.append(f"v_mul_f32 v{KVACC+i}, s{S_T1}, v{KVACC+i}")
        o.append(f"v_cvt_pk_bf16_f32 v{KVACC}, v{KVACC}, v{KVACC+1}")
        o.append(f"v_cvt_pk_bf16_f32 v{KVACC+1}, v{KVACC+2}, v{KVACC+3}")
        o.append(f"buffer_store_dwordx2 {vr(KVACC,2)}, v{ad}, s[{SRD_KV}:{SRD_KV+3}], s{S_T0} offen sc1")
        return o

    def q_reads(qs, s, fset):
        st_, so = slot_set((qs+4) % NSLOT)
        o = []
        xa = VXA + 2*st_ + s
        wa = VWA + 4*st_
        for cc in range(4):
            o.append(f"ds_read_b64_tr_b16 {vr(FA[fset]+4*cc,2)}, v{wa+cc} offset:{so + (32*s)*256}")
            o.append(f"ds_read_b64_tr_b16 {vr(FA[fset]+4*cc+2,2)}, v{wa+cc} offset:{so + (32*s+4)*256}")
            o.append(f"ds_read_b128 {vr(FB[fset]+4*cc,4)}, v{xa} offset:{so + cc*2048}")
        return o
    PER = int(cfg.get('per', 2)); LEAD = int(cfg.get('lead', 2))
    PUB = int(cfg.get('pub', 7))
    a("s_nop 7")
    a(kv_epilogue())
    for qs in range(16):
        gs = qs+4
        if gs == PUB: a("s_waitcnt vmcnt(0) lgkmcnt(0)")
        else: a("s_waitcnt lgkmcnt(0)")
        a("s_barrier")
        if gs == PUB:
            a(f"s_cmp_lg_u32 s{S_W}, 0")
            a(f"s_cbranch_scc1 L_nopub")
            a(f"v_mov_b32 v{T}, 0")
            a(f"v_mov_b32 v{T+1}, 1")
            a(f"s_mov_b64 s[{S_SAVE}:{S_SAVE+1}], exec")
            a(f"s_mov_b64 exec, 1")
            a(f"global_atomic_add v{T}, v{T+1}, s[{S_CNT}:{S_CNT+1}] sc1")
            a(f"s_mov_b64 exec, s[{S_SAVE}:{S_SAVE+1}]")
            a.label("L_nopub")
        r0 = q_reads(qs, 0, 0); r1 = q_reads(qs, 1, 1)
        m1_ = gemm_mfmas(ACC,FA,FB,1); m0_ = gemm_mfmas(ACC,FA,FB,0)
        if cfg.get('q_noreads'): r0 = []; r1 = []
        if cfg.get('q_nomfma'): m0_ = []; m1_ = []
        if qs == 0: a(r0)
        else: a(interleave(m1_, r0, lead=LEAD, per=PER))
        a("s_waitcnt lgkmcnt(0)")
        a(interleave(m0_, r1, lead=0, per=PER))
    a("s_waitcnt lgkmcnt(0)")
    a(gemm_mfmas(ACC,FA,FB,1))
    a("s_barrier")
    stamp(a, cfg, 3)

    ONES=4; IDX=8; VA=10; VB=11; VDMA=12; XT=13
    Q=96; O=32; L=128; S=[144,160]; P=[176,184]; K=[192,200]; V=[208,216]
    a(f"v_lshlrev_b32 v{VDMA}, 4, v0")
    a(f"v_mov_b32 v{VA}, v{VDMA}")
    a(f"v_add_u32 v{VB}, 0x8000, v{VDMA}")
    a(f"ds_read_b128 {vr(K[0],4)}, v{VA} offset:0")
    a(f"ds_read_b128 {vr(K[0]+4,4)}, v{VA} offset:1024")
    a(f"ds_read_b128 {vr(V[0],4)}, v{VA} offset:2048")
    a(f"ds_read_b128 {vr(V[0]+4,4)}, v{VA} offset:3072")
    a(f"ds_read_b128 {vr(K[1],4)}, v{VA} offset:4096")
    a(f"ds_read_b128 {vr(K[1]+4,4)}, v{VA} offset:{4096+1024}")
    a("s_nop 4")
    for hh in range(2):
        for rb in range(2):
            t = hh*2+rb
            for m in range(2):
                cc = 2*hh+m
                x = ACC + (cc*4+2*rb)*4; y = ACC + (cc*4+2*rb+1)*4
                q = Q + t*8 + m*4
                a(f"v_cvt_pk_bf16_f32 v{q}, v{x}, v{x+1}")
                a(f"v_cvt_pk_bf16_f32 v{q+1}, v{x+2}, v{x+3}")
                a(f"v_cvt_pk_bf16_f32 v{q+2}, v{y}, v{y+1}")
                a(f"v_cvt_pk_bf16_f32 v{q+3}, v{y+2}, v{y+3}")
    a("s_nop 1")
    for t in range(4):
        for m in range(2):
            q = Q + t*8 + m*4
            a(f"v_permlane16_swap_b32 v{q}, v{q+2}")
            a(f"v_permlane16_swap_b32 v{q+1}, v{q+3}")
    a("s_waitcnt lgkmcnt(0)")
    a(f"v_mfma_f32_32x32x16_bf16 {vr(S[0],16)}, {vr(K[0],4)}, {vr(Q,4)}, 0")
    a(f"v_mfma_f32_32x32x16_bf16 {vr(S[0],16)}, {vr(K[0]+4,4)}, {vr(Q+4,4)}, {vr(S[0],16)}")
    for i in range(64): a(f"v_mov_b32 v{O+i}, 0")
    for i in range(16): a(f"v_mov_b32 v{L+i}, 0")
    for i in range(8): a(f"v_mov_b32 v{P[1]+i}, 0")
    for i in range(8): a(f"v_mov_b32 v{V[1]+i}, 0")
    a(f"v_and_b32 v{XT}, 15, v0")
    a(f"v_mov_b32 v{XT+1}, 0x3f803f80")
    a(f"v_cmp_gt_u32 vcc, 2, v{XT}")
    a("s_nop 1")
    a(f"v_cndmask_b32 v{ONES}, 0, v{XT+1}, vcc")
    a(f"v_cndmask_b32 v{ONES+1}, 0, v{XT+1}, vcc")
    a(f"v_lshrrev_b32 v{XT+2}, 1, v{XT}")
    a(f"v_cmp_eq_u32 vcc, 1, v{XT+2}")
    a("s_nop 1")
    a(f"v_cndmask_b32 v{ONES+2}, 0, v{XT+1}, vcc")
    a(f"v_cndmask_b32 v{ONES+3}, 0, v{XT+1}, vcc")
    a(f"v_and_b32 v{XT+2}, 1, v{XT}")
    a(f"v_cmp_eq_u32 vcc, 1, v{XT+2}")
    a(f"v_mov_b32 v{XT+1}, 0x4444")
    a(f"v_mov_b32 v{XT+2}, 0xeeee")
    a(f"v_cndmask_b32 v{IDX}, v{XT+1}, v{XT+2}, vcc")
    stamp(a, cfg, 4)
    NSTEP = int(cfg.get('nstep', 8))
    a(f"s_mov_b32 s{S_LOOP}, {64//NSTEP}")
    a("s_nop 1")
    a(".p2align 6")
    a.label("L_attn")
    patt = cfg.get('patt', "A e e e c B e e c e C e c e e D c e R e c e e c e e c e S c").split()
    assert patt.count('e') == 16 and patt.count('c') == 8
    NQ = 4
    for step in range(NSTEP):
        for t in range(NQ):
            u = step*NQ + t
            un = u+1; stepn = un//NQ; tn = un % NQ
            up = u-1; stepp = up//NQ; tp = up % NQ
            sc = S[u%2]; sn = S[(u+1)%2]; Pp = P[(u-1)%2]; Pc = P[u%2]
            M = {
              'A': f"v_mfma_f32_32x32x16_bf16 {vr(sn,16)}, {vr(K[stepn%2],4)}, {vr(Q+tn*8,4)}, 0",
              'B': f"v_mfma_f32_32x32x16_bf16 {vr(sn,16)}, {vr(K[stepn%2]+4,4)}, {vr(Q+tn*8+4,4)}, {vr(sn,16)}",
              'C': f"v_mfma_f32_32x32x16_bf16 {vr(O+tp*16,16)}, {vr(V[stepp%2],4)}, {vr(Pp,4)}, {vr(O+tp*16,16)}",
              'D': f"v_mfma_f32_32x32x16_bf16 {vr(O+tp*16,16)}, {vr(V[stepp%2]+4,4)}, {vr(Pp+4,4)}, {vr(O+tp*16,16)}",
              'S': f"v_smfmac_f32_16x16x64_bf16 {vr(L+tp*4,4)}, {vr(ONES,4)}, {vr(Pp,8)}, v{IDX}",
            }
            ei = ci = 0
            for tok in patt:
                if tok == 'e': a(f"v_exp_f32 v{sc+ei}, v{sc+ei}"); ei += 1
                elif tok == 'c': a(f"v_cvt_pk_bf16_f32 v{Pc+ci}, v{sc+2*ci}, v{sc+2*ci+1}"); ci += 1
                elif tok == 'x': a("s_nop 0")
                elif tok == 'R':
                    if t == NQ-1:
                        if step % 4 == 2: a("s_barrier")
                        def addr(st):
                            if NSTEP == 16: return (VA, (st % 16)*4096)
                            return (VA, st*4096) if st < 8 else (VB, (st-8)*4096)
                        rv, ov = addr(step+1); rk, ok = addr(step+2)
                        a(f"ds_read_b128 {vr(V[(step+1)%2],4)}, v{rv} offset:{ov+2048}")
                        a(f"ds_read_b128 {vr(V[(step+1)%2]+4,4)}, v{rv} offset:{ov+3072}")
                        a(f"ds_read_b128 {vr(K[step%2],4)}, v{rk} offset:{ok}")
                        a(f"ds_read_b128 {vr(K[step%2]+4,4)}, v{rk} offset:{ok+1024}")
                else:
                    if tok == 'A' and tn == 0: a("s_waitcnt lgkmcnt(0)")
                    if tok == 'C' and tp == 0: a("s_waitcnt lgkmcnt(2)")
                    a(M[tok])
    if NSTEP == 8:
        a(f"v_xor_b32 v{VA}, 0x8000, v{VA}")
        a(f"v_xor_b32 v{VB}, 0x8000, v{VB}")
    a(f"s_sub_u32 s{S_LOOP}, s{S_LOOP}, 1")
    a(f"s_cmp_lg_u32 s{S_LOOP}, 0")
    a(f"s_cbranch_scc1 L_attn")
    a("s_nop 1")
    a(f"v_mfma_f32_32x32x16_bf16 {vr(O+48,16)}, {vr(V[1],4)}, {vr(P[1],4)}, {vr(O+48,16)}")
    a(f"v_mfma_f32_32x32x16_bf16 {vr(O+48,16)}, {vr(V[1]+4,4)}, {vr(P[1]+4,4)}, {vr(O+48,16)}")
    a(f"v_smfmac_f32_16x16x64_bf16 {vr(L+12,4)}, {vr(ONES,4)}, {vr(P[1],8)}, v{IDX}")
    a("s_nop 15")
    a("s_waitcnt lgkmcnt(0)")
    stamp(a, cfg, 5)
    LS = 144
    def lsum():
        for t in range(4):
            a(f"v_add_f32 v{XT+2*t}, v{L+4*t}, v{L+4*t+1}")
            a(f"v_add_f32 v{XT+2*t+1}, v{L+4*t+2}, v{L+4*t+3}")
        a("s_nop 1")
        for t in range(4): a(f"v_permlane16_swap_b32 v{XT+2*t}, v{XT+2*t+1}")
        a("s_nop 1")
        for t in range(4): a(f"v_mov_b32 v{LS+t}, v{XT+2*t}")
        a("s_nop 1")
        for t in range(4): a(f"v_permlane32_swap_b32 v{LS+t}, v{XT+2*t}")
        a("s_nop 1")
    lsum()
    a(f"s_mov_b32 s{S_T0}, 0x71800000")
    a(f"s_mov_b32 s{S_T1}, 0x7f800000")
    a(f"s_mov_b64 s[{S_MASK}:{S_MASK+1}], exec")
    for t in range(4):
        a(f"v_cmp_le_f32 vcc, 1.0, v{LS+t}")
        a(f"v_cmp_ge_f32 s[{S_MASK2}:{S_MASK2+1}], s{S_T0}, v{LS+t}")
        a(f"v_add_f32 v{XT}, |v{O+16*t}|, |v{O+16*t+1}|")
        for i in range(2,16): a(f"v_add_f32 v{XT}, v{XT}, |v{O+16*t+i}|")
        a(f"s_and_b64 s[{S_MASK}:{S_MASK+1}], s[{S_MASK}:{S_MASK+1}], vcc")
        a(f"s_and_b64 s[{S_MASK}:{S_MASK+1}], s[{S_MASK}:{S_MASK+1}], s[{S_MASK2}:{S_MASK2+1}]")
        a(f"v_cmp_gt_f32 vcc, s{S_T1}, v{XT}")
        a("s_nop 4")
        a(f"s_and_b64 s[{S_MASK}:{S_MASK+1}], s[{S_MASK}:{S_MASK+1}], vcc")
    a(f"s_cmp_eq_u64 s[{S_MASK}:{S_MASK+1}], exec")
    if cfg.get('force_fallback'):
        a("s_cmp_eq_u32 s2, 0x7fffffff")
    a(f"s_cbranch_scc1 L_norm")
    NEG = 144; SS = 160; MX = XT; KF = K[0]; VF = V[0]; PP = P[0]
    for t in range(4):
        a(f"v_mov_b32 v{MX}, 0xff800000")
        a(f"s_mov_b32 s{S_T2}, 0")
        a.label(f"L_fb1_{t}")
        a(f"buffer_load_dwordx4 {vr(KF,4)}, v{VDMA}, s[{SRD_KV}:{SRD_KV+3}], s{S_T2} offen sc1")
        a(f"buffer_load_dwordx4 {vr(KF+4,4)}, v{VDMA}, s[{SRD_KV}:{SRD_KV+3}], s{S_T2} offen offset:1024 sc1")
        a("s_waitcnt vmcnt(0)")
        a(f"v_mfma_f32_32x32x16_bf16 {vr(SS,16)}, {vr(KF,4)}, {vr(Q+t*8,4)}, 0")
        a(f"v_mfma_f32_32x32x16_bf16 {vr(SS,16)}, {vr(KF+4,4)}, {vr(Q+t*8+4,4)}, {vr(SS,16)}")
        a("s_nop 15")
        for i in range(8): a(f"v_max3_f32 v{MX}, v{SS+2*i}, v{SS+2*i+1}, v{MX}")
        a(f"s_add_u32 s{S_T2}, s{S_T2}, 4096")
        a(f"s_cmp_lt_u32 s{S_T2}, 262144")
        a(f"s_cbranch_scc1 L_fb1_{t}")
        a(f"v_mov_b32 v{MX+1}, v{MX}")
        a("s_nop 1")
        a(f"v_permlane32_swap_b32 v{MX}, v{MX+1}")
        a("s_nop 1")
        a(f"v_max_f32 v{MX}, v{MX}, v{MX+1}")
        for i in range(16): a(f"v_sub_f32 v{NEG+i}, 0, v{MX}")
        for i in range(16): a(f"v_mov_b32 v{O+16*t+i}, 0")
        for i in range(4): a(f"v_mov_b32 v{L+4*t+i}, 0")
        a(f"s_mov_b32 s{S_T2}, 0")
        a.label(f"L_fb2_{t}")
        a(f"buffer_load_dwordx4 {vr(KF,4)}, v{VDMA}, s[{SRD_KV}:{SRD_KV+3}], s{S_T2} offen sc1")
        a(f"buffer_load_dwordx4 {vr(KF+4,4)}, v{VDMA}, s[{SRD_KV}:{SRD_KV+3}], s{S_T2} offen offset:1024 sc1")
        a(f"buffer_load_dwordx4 {vr(VF,4)}, v{VDMA}, s[{SRD_KV}:{SRD_KV+3}], s{S_T2} offen offset:2048 sc1")
        a(f"buffer_load_dwordx4 {vr(VF+4,4)}, v{VDMA}, s[{SRD_KV}:{SRD_KV+3}], s{S_T2} offen offset:3072 sc1")
        a("s_waitcnt vmcnt(0)")
        a(f"v_mfma_f32_32x32x16_bf16 {vr(SS,16)}, {vr(KF,4)}, {vr(Q+t*8,4)}, {vr(NEG,16)}")
        a(f"v_mfma_f32_32x32x16_bf16 {vr(SS,16)}, {vr(KF+4,4)}, {vr(Q+t*8+4,4)}, {vr(SS,16)}")
        a("s_nop 15")
        for i in range(16): a(f"v_exp_f32 v{SS+i}, v{SS+i}")
        a("s_nop 1")
        for i in range(8): a(f"v_cvt_pk_bf16_f32 v{PP+i}, v{SS+2*i}, v{SS+2*i+1}")
        a("s_nop 2")
        a(f"v_mfma_f32_32x32x16_bf16 {vr(O+16*t,16)}, {vr(VF,4)}, {vr(PP,4)}, {vr(O+16*t,16)}")
        a(f"v_mfma_f32_32x32x16_bf16 {vr(O+16*t,16)}, {vr(VF+4,4)}, {vr(PP+4,4)}, {vr(O+16*t,16)}")
        a(f"v_smfmac_f32_16x16x64_bf16 {vr(L+4*t,4)}, {vr(ONES,4)}, {vr(PP,8)}, v{IDX}")
        a("s_nop 15")
        a(f"s_add_u32 s{S_T2}, s{S_T2}, 4096")
        a(f"s_cmp_lt_u32 s{S_T2}, 262144")
        a(f"s_cbranch_scc1 L_fb2_{t}")
    a("s_nop 7")
    lsum()
    a.label("L_norm")
    a(f"v_and_b32 v{XT}, 15, v0")
    a(f"v_lshlrev_b32 v{XT}, 4, v{XT}")
    a(f"v_bfe_u32 v{XT+1}, v0, 4, 1")
    a(f"v_lshlrev_b32 v{XT+1}, 15, v{XT+1}")
    a(f"v_lshrrev_b32 v{XT+2}, 5, v0")
    a(f"v_lshlrev_b32 v{XT+2}, 8, v{XT+2}")
    a(f"v_add3_u32 v{XT}, v{XT}, v{XT+1}, v{XT+2}")
    a(f"s_lshl_b32 s{S_T0}, s{S_R}, 3")
    a(f"s_lshl_b32 s{S_T1}, s{S_WM}, 2")
    a(f"s_add_u32 s{S_T0}, s{S_T0}, s{S_T1}")
    a(f"s_lshl_b32 s{S_T0}, s{S_T0}, 5")
    a(f"s_lshl_b32 s{S_T1}, s{S_G}, 2")
    a(f"s_add_u32 s{S_T0}, s{S_T0}, s{S_T1}")
    a(f"s_lshl_b32 s{S_T1}, s{S_WN}, 1")
    a(f"s_add_u32 s{S_T0}, s{S_T0}, s{S_T1}")
    a(f"s_lshl_b32 s{S_OST}, s{S_T0}, 10")
    for t in range(4): a(f"v_rcp_f32 v{LS+t}, v{LS+t}")
    a("s_nop 0")
    for t in range(4):
        hh, rb = t>>1, t&1
        for i in range(16): a(f"v_mul_f32 v{O+16*t+i}, v{O+16*t+i}, v{LS+t}")
        R = 160 + 8*t
        for i in range(8): a(f"v_cvt_pk_bf16_f32 v{R+i}, v{O+16*t+2*i}, v{O+16*t+2*i+1}")
        a(f"s_add_u32 s{S_T0}, s{S_OST}, {(2*rb*32 + hh)*1024}")
        a(f"buffer_store_dwordx4 {vr(R,4)}, v{XT}, s[{SRD_O}:{SRD_O+3}], s{S_T0} offen sc1")
        a(f"buffer_store_dwordx4 {vr(R+4,4)}, v{XT}, s[{SRD_O}:{SRD_O+3}], s{S_T0} offen offset:512 sc1")
    OXA=2; OWA=8
    L4=T+1; X1=T+2; X2=T+3; X3=T+4
    a(f"v_lshrrev_b32 v{L4}, 4, v0")
    a(f"s_lshl_b32 s{S_T0}, s{S_WM}, 13")
    a(f"v_lshlrev_b32 v{X1}, 4, v0")
    a(f"v_add_u32 v{OXA}, s{S_T0}, v{X1}")
    a(f"v_and_b32 v{X1}, 15, v0")
    a(f"v_lshrrev_b32 v{X2}, 2, v{X1}")
    a(f"v_and_b32 v{X3}, 1, v{L4}")
    a(f"v_lshlrev_b32 v{X3}, 2, v{X3}")
    a(f"v_add_u32 v{X3}, v{X3}, v{X2}")
    a(f"v_lshrrev_b32 v{T}, 1, v{L4}")
    a(f"v_lshlrev_b32 v{T}, 4, v{T}")
    a(f"v_add_u32 v{T}, v{T}, v{X3}")
    a(f"v_lshlrev_b32 v{T}, 8, v{T}")
    a(f"v_and_b32 v{X1}, 3, v{X1}")
    a(f"v_lshlrev_b32 v{X1}, 3, v{X1}")
    a(f"v_add_u32 v{T}, v{T}, v{X1}")
    a(f"v_add_u32 v{T}, 0x10000, v{T}")
    a(f"s_lshl_b32 s{S_T0}, s{S_WN}, 2")
    for cc in range(4):
        a(f"s_add_u32 s{S_T1}, s{S_T0}, {cc}")
        a(f"v_xor_b32 v{X2}, s{S_T1}, v{X3}")
        a(f"v_lshlrev_b32 v{X2}, 5, v{X2}")
        a(f"v_add_u32 v{OWA+cc}, v{X2}, v{T}")
        a(f"v_add_u32 v{OWA+4+cc}, {3*16384}, v{OWA+cc}")
    a("s_waitcnt vmcnt(0)")
    a("s_barrier")
    stamp(a, cfg, 6)
    for i in range(64): a(f"v_mov_b32 v{ACC+i}, 0")
    def o_reads(st, s, fset):
        wslot = st % 6
        wa = OWA + 4*(wslot // 3); wo_ = (wslot % 3)*16384
        oo = (st % 4)*16384
        o = []
        for cc in range(4):
            o.append(f"ds_read_b64_tr_b16 {vr(FA[fset]+4*cc,2)}, v{wa+cc} offset:{wo_ + (32*s)*256}")
            o.append(f"ds_read_b64_tr_b16 {vr(FA[fset]+4*cc+2,2)}, v{wa+cc} offset:{wo_ + (32*s+8)*256}")
            o.append(f"ds_read_b128 {vr(FB[fset]+4*cc,4)}, v{OXA} offset:{oo + cc*2048 + s*1024}")
        return o
    for st in range(16):
        a("s_waitcnt lgkmcnt(0)")
        a("s_barrier")
        if st == 0: stamp(a, cfg, 7)
        r0 = o_reads(st, 0, 0)
        if st == 0: a(r0)
        else: a(interleave(gemm_mfmas(ACC,FA,FB,1), r0, lead=LEAD, per=PER))
        a("s_waitcnt lgkmcnt(0)")
        a(interleave(gemm_mfmas(ACC,FA,FB,0), o_reads(st, 1, 1), lead=0, per=PER))
    a("s_waitcnt lgkmcnt(0)")
    a(gemm_mfmas(ACC,FA,FB,1))
    a(f"v_and_b32 v{X1}, 15, v0")
    a(f"v_lshlrev_b32 v{X1}, 12, v{X1}")
    a(f"v_and_b32 v{X2}, 1, v{L4}")
    a(f"v_lshlrev_b32 v{X2}, 5, v{X2}")
    a(f"v_lshrrev_b32 v{X3}, 1, v{L4}")
    a(f"v_lshlrev_b32 v{X3}, 4, v{X3}")
    a(f"v_add3_u32 v{X1}, v{X1}, v{X2}, v{X3}")
    a(f"s_lshl_b32 s{S_T0}, s{S_R}, 19")
    a(f"s_lshl_b32 s{S_T1}, s{S_WM}, 18")
    a(f"s_add_u32 s{S_T0}, s{S_T0}, s{S_T1}")
    a(f"s_lshl_b32 s{S_T1}, s{S_B}, 11")
    a(f"s_add_u32 s{S_T0}, s{S_T0}, s{S_T1}")
    a(f"s_lshl_b32 s{S_T1}, s{S_G}, 8")
    a(f"s_add_u32 s{S_T0}, s{S_T0}, s{S_T1}")
    a(f"s_lshl_b32 s{S_T1}, s{S_WN}, 7")
    a(f"s_add_u32 s{S_OST}, s{S_T0}, s{S_T1}")
    a("s_nop 7")
    R = 96
    k = 0
    for rt in range(4):
        for cp in range(2):
            x = ACC + ((2*cp)*4+rt)*4; y = ACC + ((2*cp+1)*4+rt)*4
            q = R + 4*k; k += 1
            a(f"v_cvt_pk_bf16_f32 v{q}, v{x}, v{x+1}")
            a(f"v_cvt_pk_bf16_f32 v{q+1}, v{x+2}, v{x+3}")
            a(f"v_cvt_pk_bf16_f32 v{q+2}, v{y}, v{y+1}")
            a(f"v_cvt_pk_bf16_f32 v{q+3}, v{y+2}, v{y+3}")
    a("s_nop 1")
    k = 0
    OUTF = cfg.get('outflags', '')
    for rt in range(4):
        a(f"s_add_u32 s{S_T0}, s{S_OST}, {rt*16*4096}")
        for cp in range(2):
            q = R + 4*k; k += 1
            a(f"v_permlane16_swap_b32 v{q}, v{q+2}")
            a(f"v_permlane16_swap_b32 v{q+1}, v{q+3}")
            a("s_nop 1")
            a(f"buffer_store_dwordx4 {vr(q,4)}, v{X1}, s[{SRD_OUT}:{SRD_OUT+3}], s{S_T0} offen offset:{cp*64} {OUTF}")
    if cfg.get('stamps'):
        a("s_waitcnt vmcnt(0)")
        stamp(a, cfg, 8)
        stamp_store(a, cfg, 9, 0, "L_k1_ss")
    a("s_endpgm")

    a.label("L_loader")
    VOX=2; VOW=6; VOWKV=10; VL=11; POLL=12; VOWO=13; VOB=17; WREG=40
    SRD_WO=12; S_FLAG=74
    gen_vox(a, VOX, T)
    gen_vow(a, VOW, T, lambda j: (j>>1)&1)
    gen_vow(a, VOWO, T, lambda j: j&1)
    X1=T+2; X2=T+3
    a(f"v_lshrrev_b32 v{X1}, 5, v0")
    a(f"v_lshlrev_b32 v{X1}, 1, v{X1}")
    a(f"v_and_b32 v{X2}, 3, v0")
    a(f"v_xor_b32 v{X1}, v{X1}, v{X2}")
    a(f"v_lshlrev_b32 v{X1}, 4, v{X1}")
    a(f"v_lshrrev_b32 v{X2}, 2, v0")
    a(f"v_lshlrev_b32 v{X2}, 6, v{X2}")
    a(f"v_add_u32 v{VOWKV}, v{X1}, v{X2}")
    a(f"v_lshlrev_b32 v{VL}, 4, v0")
    a(f"v_lshlrev_b32 v{VOB}, 4, v0")
    a(f"v_add_u32 v{VOB+1}, {32768-2048}, v{VOB}")
    a(f"s_lshl_b32 s{S_T0}, s{S_R}, 18")
    a(f"s_lshl_b32 s{S_T1}, s{S_W}, 16")
    a(f"s_add_u32 s{S_XQ}, s{S_T0}, s{S_T1}")
    a(f"s_lshl_b32 s{S_T1}, s{S_W}, 15")
    a(f"s_lshl_b32 s{S_T2}, s{S_G}, 8")
    a(f"s_add_u32 s{S_WQ}, s{S_T1}, s{S_T2}")
    a(f"s_lshr_b32 s{S_T1}, s{S_G}, 1")
    a(f"s_lshl_b32 s{S_T1}, s{S_T1}, 16")
    a(f"s_add_u32 s{S_XKV}, s{S_T0}, s{S_T1}")
    a(f"s_lshl_b32 s{S_T1}, s{S_W}, 7")
    a(f"s_add_u32 s{S_XKV}, s{S_XKV}, s{S_T1}")
    a("s_waitcnt lgkmcnt(0)")
    a(f"s_cmp_lg_u32 s{S_B}, 0")
    sel_ptr(a, SRD_X, 0, 10)
    sel_ptr(a, SRD_WQ, 2, 12)
    sel_ptr(a, S_T0, 4, 14)
    sel_ptr(a, S_T2, 6, 16)
    a(f"s_cmp_lg_u32 s{S_TYPE}, 0")
    a(f"s_cselect_b32 s{SRD_WKV}, s{S_T2}, s{S_T0}")
    a(f"s_cselect_b32 s{SRD_WKV+1}, s{S_T2+1}, s{S_T0+1}")
    srd_tail(a, SRD_X, 2048*2048)
    srd_tail(a, SRD_WKV, 1024*64)
    srd_tail(a, SRD_WQ, 1024*2048)
    vm = VM()
    def dma_stage(gs):
        o = []
        slot = gs % NSLOT
        if gs < 4:
            j = gs
            o.append(f"s_add_u32 m0, s{S_M0}, {slot*SLOT}")
            o.append(f"s_add_u32 s{S_OFFA}, s{S_XKV}, {j*512}")
            for i in range(4):
                o.append(f"buffer_load_dwordx4 v{VOX+i}, s[{SRD_X}:{SRD_X+3}], s{S_OFFA} offen offset:{i*1024} lds"); vm.issue(('st',gs))
            o.append(f"s_add_u32 m0, s{S_M0}, {slot*SLOT+16384}")
            o.append(f"s_add_u32 s{S_OFFB}, s{S_M0}, {j*16384}")
            for i in range(4):
                o.append(f"buffer_load_dwordx4 v{VOWKV}, s[{SRD_WKV}:{SRD_WKV+3}], s{S_OFFB} offen offset:{i*1024} lds"); vm.issue(('st',gs))
        else:
            qs = gs-4
            o.append(f"s_add_u32 m0, s{S_M0}, {slot*SLOT}")
            o.append(f"s_add_u32 s{S_OFFA}, s{S_XQ}, {qs*128}")
            for i in range(4):
                o.append(f"buffer_load_dwordx4 v{VOX+i}, s[{SRD_X}:{SRD_X+3}], s{S_OFFA} offen offset:{i*1024} lds"); vm.issue(('st',gs))
            o.append(f"s_add_u32 m0, s{S_M0}, {slot*SLOT+16384}")
            o.append(f"s_add_u32 s{S_OFFB}, s{S_WQ}, {qs*131072}")
            for j in range(4):
                o.append(f"buffer_load_dwordx4 v{VOW+j}, s[{SRD_WQ}:{SRD_WQ+3}], s{S_OFFB} offen offset:{j*1024} lds"); vm.issue(('st',gs))
        return o
    for gs in range(5): a(dma_stage(gs))
    a(f"s_lshl_b32 s{S_T0}, s{S_B}, 18")
    a(f"s_add_u32 s{SRD_KV}, s{PTR+24}, s{S_T0}")
    a(f"s_addc_u32 s{SRD_KV+1}, s{PTR+25}, 0")
    srd_tail(a, SRD_KV, 262144)
    a(f"s_lshl_b32 s{S_T0}, s{S_B}, 22")
    a(f"s_add_u32 s{S_T0}, s{S_T0}, {WS_O}")
    a(f"s_add_u32 s{SRD_O}, s{PTR+24}, s{S_T0}")
    a(f"s_addc_u32 s{SRD_O+1}, s{PTR+25}, 0")
    srd_tail(a, SRD_O, 4*1024*1024)
    a(f"s_lshl_b32 s{S_T0}, s{S_B}, 7")
    a(f"s_add_u32 s{S_CNT}, s{PTR+22}, s{S_T0}")
    a(f"s_addc_u32 s{S_CNT+1}, s{PTR+23}, 0")
    a(f"s_lshl_b32 s{S_T0}, s{S_B}, 4")
    a(f"s_add_u32 s{S_T0}, s{S_T0}, s{S_R}")
    a(f"s_lshl_b32 s{S_T0}, s{S_T0}, 7")
    a(f"s_add_u32 s{S_T0}, s{S_T0}, {WS_F}")
    a(f"s_add_u32 s{S_FLAG}, s{PTR+24}, s{S_T0}")
    a(f"s_addc_u32 s{S_FLAG+1}, s{PTR+25}, 0")
    a(f"s_lshl_b32 s{S_T0}, s{S_G}, 2")
    a(f"v_mov_b32 v{T}, s{S_T0}")
    a(f"v_mov_b32 v{T+1}, 0")
    a(f"s_cmp_lg_u32 s{S_W}, 0")
    a(f"s_cbranch_scc1 L_nozero")
    a(f"s_mov_b64 exec, 1")
    a(f"global_store_dword v{T}, v{T+1}, s[{S_FLAG}:{S_FLAG+1}] sc1")
    a(f"s_mov_b64 exec, -1")
    a.label("L_nozero")
    zero_pos = len(vm.ops)
    def kv_dma(st):
        o = [f"s_add_u32 m0, s{S_M0}, {(st%4)*16384}", f"s_add_u32 s{S_OFFA}, s{S_M0}, {st*16384}"]
        for i in range(4):
            o.append(f"buffer_load_dwordx4 v{VL}, s[{SRD_KV}:{SRD_KV+3}], s{S_OFFA} offen offset:{i*1024} sc1 lds"); vm.issue(('kv',st))
        return o
    POLLAT = int(cfg.get('pollat', 14))
    for gs in range(20):
        need = vm.wait_n(('st',gs))
        if gs == PUB: need = min(need, len(vm.ops) - zero_pos)
        if gs == 16: need = min(need, vm.wait_n('poll'))
        a(f"s_waitcnt vmcnt({need})")
        a("s_barrier")
        if gs == POLLAT:
            a(f"v_mov_b32 v{T}, 0")
            a(f"global_load_dword v{POLL}, v{T}, s[{S_CNT}:{S_CNT+1}] sc1"); vm.issue('poll')
        if gs >= 1 and gs+4 < 20:
            d = dma_stage(gs+4)
            if cfg.get('q_nodma') and gs >= 3: d = [x for x in d if 'buffer_load' not in x]
            if cfg.get('q_nox') and gs >= 3: d = [x for x in d if f"s[{SRD_X}:" not in x]
            if cfg.get('q_now') and gs >= 3: d = [x for x in d if f"s[{SRD_WQ}:" not in x]
            a(d)
        if gs == 16:
            a(f"v_readfirstlane_b32 s{S_T0}, v{POLL}")
            a("s_nop 3")
            a(f"s_cmp_ge_u32 s{S_T0}, 128")
            a(f"s_cbranch_scc1 L_kvready")
            a.label("L_spin")
            a("s_sleep 2")
            a(f"v_mov_b32 v{T}, 0")
            a(f"global_load_dword v{POLL}, v{T}, s[{S_CNT}:{S_CNT+1}] sc1")
            a("s_waitcnt vmcnt(0)")
            a(f"v_readfirstlane_b32 s{S_T0}, v{POLL}")
            a("s_nop 3")
            a(f"s_cmp_lt_u32 s{S_T0}, 128")
            a(f"s_cbranch_scc1 L_spin")
            a.label("L_kvready")
            a(kv_dma(0)); a(kv_dma(1))
        if gs == 17: a(kv_dma(2))
    a(f"s_waitcnt vmcnt({vm.wait_n(('kv',0))})")
    a("s_barrier")
    a(f"s_cmp_lg_u32 s{S_B}, 0")
    sel_ptr(a, SRD_WO, 8, 18)
    srd_tail(a, SRD_WO, 1024*2048)
    def wo_load(st):
        o = [f"s_add_u32 s{S_OFFB}, s{S_WQ}, {st*131072}"]
        if st < 6:
            o.append(f"s_add_u32 m0, s{S_M0}, {65536 + st*16384}")
            for j in range(4):
                o.append(f"buffer_load_dwordx4 v{VOWO+j}, s[{SRD_WO}:{SRD_WO+3}], s{S_OFFB} offen offset:{j*1024} lds"); vm.issue(('wo',st))
        else:
            for j in range(4):
                o.append(f"buffer_load_dwordx4 {vr(WREG+(st-6)*16+4*j,4)}, v{VOWO+j}, s[{SRD_WO}:{SRD_WO+3}], s{S_OFFB} offen offset:{j*1024}"); vm.issue(('wo',st))
        return o
    for s in range(1, 17):
        if s <= 15: a(f"s_waitcnt vmcnt({vm.wait_n(('kv',s))})")
        a("s_barrier")
        if s+2 <= 15: a(kv_dma(s+2))
        a(wo_load(s-1))
    a("s_barrier")
    a(f"s_lshl_b32 s{S_T0}, s{S_G}, 2")
    a(f"v_mov_b32 v{T}, s{S_T0}")
    a(f"v_mov_b32 v{T+1}, 1")
    a(f"s_cmp_lg_u32 s{S_W}, 0")
    a(f"s_cbranch_scc1 L_noflag")
    a(f"s_mov_b64 exec, 1")
    a(f"global_store_dword v{T}, v{T+1}, s[{S_FLAG}:{S_FLAG+1}] sc1")
    a(f"s_mov_b64 exec, -1")
    a.label("L_noflag")
    a(f"v_and_b32 v{T}, 7, v0")
    a(f"v_lshlrev_b32 v{T}, 2, v{T}")
    a.label("L_ospin")
    a(f"global_load_dword v{POLL}, v{T}, s[{S_FLAG}:{S_FLAG+1}] sc1")
    a("s_waitcnt vmcnt(0)")
    a(f"v_cmp_eq_u32 vcc, 1, v{POLL}")
    a("s_nop 4")
    a(f"s_cmp_eq_u64 vcc, exec")
    a(f"s_cbranch_scc1 L_oready")
    a("s_sleep 1")
    a("s_branch L_ospin")
    a.label("L_oready")
    vm.ops = []
    a(f"s_lshl_b32 s{S_T0}, s{S_R}, 3")
    a(f"s_lshl_b32 s{S_T1}, s{S_W}, 1")
    a(f"s_add_u32 s{S_T0}, s{S_T0}, s{S_T1}")
    a(f"s_lshl_b32 s{S_XQ}, s{S_T0}, 15")
    def o_dma(st):
        o = [f"s_add_u32 m0, s{S_M0}, {(st%4)*16384}", f"s_add_u32 s{S_OFFA}, s{S_XQ}, {st*2048}"]
        for i in range(4):
            o.append(f"buffer_load_dwordx4 v{VOB+(i>>1)}, s[{SRD_O}:{SRD_O+3}], s{S_OFFA} offen offset:{i*1024} sc1 lds"); vm.issue(('o',st))
        return o
    a(o_dma(0)); a(o_dma(1)); a(o_dma(2))
    VW=T+2
    a(f"v_lshlrev_b32 v{VW}, 4, v0")
    a(f"v_add_u32 v{VW}, s{S_M0}, v{VW}")
    a(f"v_add_u32 v{VW}, 0x10000, v{VW}")
    a(f"v_add_u32 v{VW+1}, {3*16384}, v{VW}")
    for st in range(16):
        a(f"s_waitcnt vmcnt({vm.wait_n(('o',st))}) lgkmcnt(0)")
        a("s_barrier")
        if st+3 < 16: a(o_dma(st+3))
        wn = st+5
        if st >= 1 and 6 <= wn <= 15:
            slot = wn % 6
            base = VW + (slot // 3); off = (slot % 3)*16384
            for j in range(4):
                a(f"ds_write_b128 v{base}, {vr(WREG+(wn-6)*16+4*j,4)} offset:{off + j*1024}")
    a.label("L_end")
    a("s_endpgm")
    return a

def kd(name, nv, ns):
    return f""".amdhsa_kernel {name}
  .amdhsa_next_free_vgpr {nv}
  .amdhsa_next_free_sgpr {ns}
  .amdhsa_accum_offset {nv}
  .amdhsa_group_segment_fixed_size 0
  .amdhsa_kernarg_size 104
  .amdhsa_user_sgpr_count 2
  .amdhsa_user_sgpr_kernarg_segment_ptr 1
  .amdhsa_system_sgpr_workgroup_id_x 1
.end_amdhsa_kernel"""

def build(cfg):
    cfg = dict(cfg)
    cfg.setdefault('k1', NAME + '_kernel')
    hdr = open('cdna_kernels/' + NAME + '.s.ref').read().split('\n')
    head = [l for l in hdr if l.startswith(';') and '@launch' not in l and 'Override launch' not in l and 'grid=ceil' not in l]
    out = head[:15]
    out.append("; @launch grid=(256,1,1) block=(512,1,1) lds=163840")
    out.append('.amdgcn_target "amdgcn-amd-amdhsa--gfx950"')
    out.append('.text')
    out.append(gen_fused(cfg).text())
    out.append('.section .rodata,"a"')
    out.append('.p2align 6'); out.append(kd(cfg['k1'], 232, 102))
    return "\n".join(out) + "\n"

if __name__ == "__main__":
    cfg = {}
    outfn = 'cdna_kernels/' + NAME + '.s'
    for arg in sys.argv[1:]:
        if arg.startswith('-o'): outfn = arg[2:]
        elif '=' in arg:
            k, v = arg.split('=', 1); cfg[k] = v
        else: cfg[arg] = True
    open(outfn, 'w').write(build(cfg))
    print("wrote", outfn)
```

```python
import sys, math

NAME = "concat_heads__grouped_kv_mqa__grouped_kv_mqa__prompt"

class Asm:
    def __init__(self): self.l = []
    def __call__(self, s=""):
        if isinstance(s, (list, tuple)):
            for x in s: self(x)
        else: self.l.append("  " + s if s and not s.endswith(":") else s)
    def label(self, s): self.l.append(s + ":")
    def text(self): return "\n".join(self.l)

def vr(b, n=1): return f"v{b}" if n == 1 else f"v[{b}:{b+n-1}]"
def sr(b, n=1): return f"s{b}" if n == 1 else f"s[{b}:{b+n-1}]"

def interleave(main, others, lead=0, per=None):
    out = list(others[:lead]); rest = list(others[lead:])
    n = len(main)
    if n == 0: return out + rest
    for i, m in enumerate(main):
        out.append(m)
        if per is not None:
            k = min(per, len(rest))
        else:
            left = n - i
            k = -(-len(rest) // left)
        out += rest[:k]; rest = rest[k:]
    return out + rest

class VM:
    def __init__(self): self.ops = []
    def issue(self, tag): self.ops.append(tag)
    def wait_n(self, tag):
        idx = [i for i, t in enumerate(self.ops) if t == tag]
        assert idx, tag
        n = len(self.ops) - 1 - idx[-1]
        assert n <= 63
        return n

WS_KV = 0
WS_O  = 0x100000
KSCALE = (32 ** -0.5) * math.log2(math.e)
def f32hex(x):
    import struct
    return "0x%08x" % struct.unpack("<I", struct.pack("<f", x))[0]

S_WG=2
SRD_X=4; SRD_WQ=8; SRD_WKV=12; SRD_KV=16; SRD_O=20
S_CNT=24
S_W=26; S_B=27; S_R=28; S_G=29
S_T0=30; S_T1=31; S_T2=32; S_T3=33; S_T4=34; S_T5=35
PTR=36
S_XQ=62; S_WQ=63; S_XKV=64; S_WKV=65; S_M0=66; S_OFFA=67; S_OFFB=68; S_LOOP=69; S_KVOFF=70; S_KVM0=71
S_WM=72; S_WN=73; S_OST=74; S_SAVE=76
S_MASK=78
S_MASK2=80
S_TYPE=82; S_W8=83

def decode_ids(a):
    a(f"s_and_b32 s{S_T0}, s{S_WG}, 7")
    a(f"s_lshr_b32 s{S_T1}, s{S_WG}, 3")
    a(f"s_lshr_b32 s{S_B}, s{S_T0}, 2")
    a(f"s_and_b32 s{S_T0}, s{S_T0}, 3")
    a(f"s_lshl_b32 s{S_T0}, s{S_T0}, 2")
    a(f"s_lshr_b32 s{S_R}, s{S_T1}, 3")
    a(f"s_add_u32 s{S_R}, s{S_R}, s{S_T0}")
    a(f"s_and_b32 s{S_G}, s{S_T1}, 7")

def load_ptrs(a):
    a(f"s_load_dwordx16 s[{PTR}:{PTR+15}], s[0:1], 0")
    a(f"s_load_dwordx8 s[{PTR+16}:{PTR+23}], s[0:1], 64")
    a(f"s_load_dwordx2 s[{PTR+24}:{PTR+25}], s[0:1], 96")
def sel_ptr(a, dst, idxA, idxB):
    a(f"s_cselect_b32 s{dst}, s{PTR+idxB}, s{PTR+idxA}")
    a(f"s_cselect_b32 s{dst+1}, s{PTR+idxB+1}, s{PTR+idxA+1}")
def srd_tail(a, srd, nbytes):
    a(f"s_and_b32 s{srd+1}, s{srd+1}, 0xffff")
    a(f"s_mov_b32 s{srd+2}, {nbytes}")
    a(f"s_mov_b32 s{srd+3}, 0x00020000")

ST0=84
def stamp(a, cfg, i):
    if cfg.get('stamps'):
        a(f"{'s_memtime' if cfg.get('cyc') else 's_memrealtime'} s[{ST0+2*i}:{ST0+2*i+1}]")
        a("s_waitcnt lgkmcnt(0)")
def stamp_store(a, cfg, n, kidx, lab):
    if not cfg.get('stamps'): return
    a(f"s_cmp_lg_u32 s{S_W}, 0")
    a(f"s_cbranch_scc1 {lab}")
    a(f"s_lshl_b32 s{S_T0}, s{S_WG}, 7")
    a(f"s_add_u32 s{S_T0}, s{S_T0}, {0x3000000 + kidx*0x10000}")
    a(f"s_add_u32 s{S_T2}, s{PTR+24}, s{S_T0}")
    a(f"s_addc_u32 s{S_T3}, s{PTR+25}, 0")
    a("v_mov_b32 v2, 0")
    for i in range(n):
        a(f"v_mov_b32 v4, s{ST0+2*i}")
        a(f"v_mov_b32 v5, s{ST0+2*i+1}")
        a(f"global_store_dwordx2 v2, v[4:5], s[{S_T2}:{S_T3}] offset:{8*i}")
        a("s_nop 1")
    a.label(lab)


def lane_wave(a, T):
    a(f"v_lshrrev_b32 v{T}, 6, v0")
    a(f"v_and_b32 v0, 63, v0")
    a(f"s_nop 0")
    a(f"v_readfirstlane_b32 s{S_W8}, v{T}")
    a("s_nop 3")
    a(f"s_and_b32 s{S_W}, s{S_W8}, 3")

def gen_vox(a, VOX, T):
    L3=T; L4=T+1; X1=T+2; X2=T+3
    a(f"v_lshrrev_b32 v{L3}, 3, v0")
    a(f"v_lshrrev_b32 v{L4}, 4, v0")
    for i in range(4):
        a(f"v_add_u32 v{X1}, {4*i}, v{L4}")
        a(f"v_and_b32 v{X1}, 7, v{X1}")
        a(f"v_and_b32 v{X2}, 7, v0")
        a(f"v_xor_b32 v{X1}, v{X1}, v{X2}")
        a(f"v_lshlrev_b32 v{X1}, 4, v{X1}")
        a(f"v_lshlrev_b32 v{X2}, 11, v{L3}")
        a(f"v_add_u32 v{X1}, v{X1}, v{X2}")
        a(f"v_add_u32 v{VOX+i}, {8*i*2048 - i*1024}, v{X1}")

def gen_vow(a, VOW, T, bit):
    L4=T+1; X1=T+2; X2=T+3; X3=T+4
    a(f"v_lshrrev_b32 v{L4}, 4, v0")
    for j in range(4):
        a(f"v_and_b32 v{X1}, 15, v0")
        a(f"v_lshrrev_b32 v{X2}, 1, v{X1}")
        a(f"v_or_b32 v{X3}, {bit(j)<<2}, v{L4}")
        a(f"v_xor_b32 v{X2}, v{X2}, v{X3}")
        a(f"v_lshlrev_b32 v{X2}, 5, v{X2}")
        a(f"v_and_b32 v{X1}, 1, v{X1}")
        a(f"v_lshlrev_b32 v{X1}, 4, v{X1}")
        a(f"v_add_u32 v{X1}, v{X1}, v{X2}")
        a(f"v_lshlrev_b32 v{X2}, 11, v{L4}")
        a(f"v_add_u32 v{X1}, v{X1}, v{X2}")
        a(f"v_add_u32 v{VOW+j}, {4*j*2048 - j*1024}, v{X1}")

def gemm_mfmas(ACC, FA, FB, fset):
    o = []
    for cc in range(4):
        for rt in range(4):
            acc = ACC + (cc*4+rt)*4
            o.append(f"v_mfma_f32_16x16x32_bf16 {vr(acc,4)}, {vr(FA[fset]+4*cc,4)}, {vr(FB[fset]+4*rt,4)}, {vr(acc,4)}")
    return o


WS_F = 0xA00000

def gen_fused(cfg):
    a = Asm()
    kname = cfg['k1']
    a(f".globl {kname}\n.p2align 8\n.type {kname},@function")
    a.label(kname)
    a(f"s_cmp_ge_u32 s{S_WG}, 256")
    a(f"s_cbranch_scc1 L_end")
    stamp(a, cfg, 0)
    load_ptrs(a)
    decode_ids(a)
    T=26
    lane_wave(a, T)
    a(f"s_and_b32 s{S_WN}, s{S_W}, 1")
    a(f"s_lshr_b32 s{S_WM}, s{S_W}, 1")
    a(f"s_and_b32 s{S_TYPE}, s{S_G}, 1")
    a(f"s_lshl_b32 s{S_M0}, s{S_W}, 12")
    a(f"s_cmp_ge_u32 s{S_W8}, 4")
    a(f"s_cbranch_scc1 L_loader")
    NSLOT=5; SLOT=32768
    def slot_set(slot):
        return slot // 2, (slot % 2) * SLOT
    VXA=2
    VWA=8
    VKXA=20; VKWA=22
    ACC=32; FA=[96,128]; FB=[112,144]; KVACC=160; KVX=164; KVW=196
    L3=T+1; L4=T+2; X1=T+3; X2=T+4; X3=T+5
    a(f"v_lshrrev_b32 v{L4}, 4, v0")
    a(f"v_and_b32 v{X1}, 15, v0")
    a(f"v_lshrrev_b32 v{X2}, 1, v{X1}")
    a(f"v_lshlrev_b32 v{X3}, 7, v{X1}")
    a(f"s_lshl_b32 s{S_T0}, s{S_WM}, 13")
    a(f"s_lshl_b32 s{S_T1}, s{S_WM}, 11")
    for s in range(2):
        a(f"v_add_u32 v{L3}, {4*s}, v{L4}")
        a(f"v_xor_b32 v{L3}, v{L3}, v{X2}")
        a(f"v_lshlrev_b32 v{L3}, 4, v{L3}")
        a(f"v_add_u32 v{L3}, v{L3}, v{X3}")
        a(f"v_add_u32 v{VXA+s}, s{S_T0}, v{L3}")
        a(f"v_add_u32 v{VXA+2+s}, 0x10000, v{VXA+s}")
        a(f"v_add_u32 v{VXA+4+s}, 0x20000, v{VXA+s}")
        a(f"v_add_u32 v{VKXA+s}, s{S_T1}, v{L3}")
    a(f"v_lshrrev_b32 v{X2}, 2, v{X1}")
    a(f"v_and_b32 v{L3}, 1, v{L4}")
    a(f"v_lshlrev_b32 v{X3}, 2, v{L3}")
    a(f"v_or_b32 v{X3}, v{X3}, v{X2}")
    a(f"v_lshlrev_b32 v{T}, 3, v{L4}")
    a(f"v_add_u32 v{T}, v{T}, v{X2}")
    a(f"v_and_b32 v{X1}, 3, v{X1}")
    a(f"v_lshlrev_b32 v{X1}, 3, v{X1}")
    a(f"s_lshl_b32 s{S_T0}, s{S_WN}, 2")
    a(f"v_xor_b32 v{L3}, s{S_WN}, v{L3}")
    a(f"v_lshlrev_b32 v{L3}, 5, v{L3}")
    a(f"v_lshlrev_b32 v{X2}, 6, v{T}")
    a(f"v_add3_u32 v{VKWA}, v{L3}, v{X2}, v{X1}")
    a(f"v_add_u32 v{VKWA}, 16384, v{VKWA}")
    a(f"v_lshlrev_b32 v{T}, 8, v{T}")
    a(f"v_add_u32 v{T}, v{T}, v{X1}")
    a(f"v_add_u32 v{T}, 16384, v{T}")
    for cc in range(4):
        a(f"s_add_u32 s{S_T1}, s{S_T0}, {cc}")
        a(f"v_xor_b32 v{X2}, s{S_T1}, v{X3}")
        a(f"v_lshlrev_b32 v{X2}, 5, v{X2}")
        a(f"v_add_u32 v{VWA+cc}, v{X2}, v{T}")
        a(f"v_add_u32 v{VWA+4+cc}, 0x10000, v{VWA+cc}")
        a(f"v_add_u32 v{VWA+8+cc}, 0x20000, v{VWA+cc}")
    for i in range(4): a(f"v_mov_b32 v{KVACC+i}, 0")
    for i in range(64): a(f"v_mov_b32 v{ACC+i}, 0")
    a("s_waitcnt lgkmcnt(0)")
    a(f"s_lshl_b32 s{S_T0}, s{S_B}, 18")
    a(f"s_add_u32 s{SRD_KV}, s{PTR+24}, s{S_T0}")
    a(f"s_addc_u32 s{SRD_KV+1}, s{PTR+25}, 0")
    srd_tail(a, SRD_KV, 262144)
    a(f"s_lshl_b32 s{S_T0}, s{S_B}, 22")
    a(f"s_add_u32 s{S_T0}, s{S_T0}, {WS_O}")
    a(f"s_add_u32 s{SRD_O}, s{PTR+24}, s{S_T0}")
    a(f"s_addc_u32 s{SRD_O+1}, s{PTR+25}, 0")
    srd_tail(a, SRD_O, 4*1024*1024)
    a(f"s_lshl_b32 s{S_T0}, s{S_B}, 7")
    a(f"s_add_u32 s{S_CNT}, s{PTR+22}, s{S_T0}")
    a(f"s_addc_u32 s{S_CNT+1}, s{PTR+23}, 0")
    SRD_OUT=4
    a(f"s_mov_b32 s{SRD_OUT}, s{PTR+20}")
    a(f"s_mov_b32 s{SRD_OUT+1}, s{PTR+21}")
    srd_tail(a, SRD_OUT, 2048*4096)
    stamp(a, cfg, 1)
    for gs in range(4):
        a("s_barrier")
        so = (gs % 2) * SLOT
        if gs == 2:
            for r_ in (VKXA, VKXA+1, VKWA): a(f"v_add_u32 v{r_}, 0x10000, v{r_}")
        for s in range(8):
            a(f"ds_read_b128 {vr(KVX+4*s,4)}, v{VKXA+(s&1)} offset:{so + (s>>1)*4096}")
            a(f"ds_read_b64_tr_b16 {vr(KVW+4*s,2)}, v{VKWA} offset:{so + (32*s)*64}")
            a(f"ds_read_b64_tr_b16 {vr(KVW+4*s+2,2)}, v{VKWA} offset:{so + (32*s+4)*64}")
        a(f"s_cmp_lg_u32 s{S_TYPE}, 0")
        a(f"s_cbranch_scc1 L_kv_v{gs}")
        for s in range(8):
            if s in (0,4): a(f"s_waitcnt lgkmcnt({12 if s==0 else 0})")
            a(f"v_mfma_f32_16x16x32_bf16 {vr(KVACC,4)}, {vr(KVW+4*s,4)}, {vr(KVX+4*s,4)}, {vr(KVACC,4)}")
        a(f"s_branch L_kv_e{gs}")
        a.label(f"L_kv_v{gs}")
        for s in range(8):
            if s in (0,4): a(f"s_waitcnt lgkmcnt({12 if s==0 else 0})")
            a(f"v_mfma_f32_16x16x32_bf16 {vr(KVACC,4)}, {vr(KVX+4*s,4)}, {vr(KVW+4*s,4)}, {vr(KVACC,4)}")
        a.label(f"L_kv_e{gs}")
    stamp(a, cfg, 2)

    def kv_epilogue():
        o = []
        c=T; g_=T+1; x1=T+2; x2=T+3; ad=T+4
        o.append(f"v_and_b32 v{c}, 15, v0")
        o.append(f"v_lshrrev_b32 v{g_}, 4, v0")
        o.append(f"s_cmp_lg_u32 s{S_TYPE}, 0")
        o.append(f"s_cselect_b32 s{S_T0}, s{S_WM}, s{S_WN}")
        o.append(f"s_cselect_b32 s{S_T1}, s{S_WN}, s{S_WM}")
        o.append(f"s_cselect_b32 s{S_T2}, 0, 1")
        o.append(f"s_lshl_b32 s{S_T0}, s{S_T0}, 10")
        o.append(f"s_lshl_b32 s{S_T1}, s{S_T1}, 8")
        o.append(f"s_add_u32 s{S_T0}, s{S_T0}, s{S_T1}")
        o.append(f"s_lshl_b32 s{S_T1}, s{S_TYPE}, 11")
        o.append(f"s_add_u32 s{S_T0}, s{S_T0}, s{S_T1}")
        o.append(f"s_lshl_b32 s{S_T1}, s{S_R}, 2")
        o.append(f"s_lshr_b32 s{S_T3}, s{S_G}, 1")
        o.append(f"s_add_u32 s{S_T1}, s{S_T1}, s{S_T3}")
        o.append(f"s_lshl_b32 s{S_T1}, s{S_T1}, 12")
        o.append(f"s_add_u32 s{S_T0}, s{S_T0}, s{S_T1}")
        o.append(f"v_lshrrev_b32 v{x1}, s{S_T2}, v{g_}")
        o.append(f"v_and_b32 v{x1}, 1, v{x1}")
        o.append(f"v_lshlrev_b32 v{x1}, 9, v{x1}")
        o.append(f"s_xor_b32 s{S_T2}, s{S_T2}, 1")
        o.append(f"v_lshrrev_b32 v{x2}, s{S_T2}, v{g_}")
        o.append(f"v_and_b32 v{x2}, 1, v{x2}")
        o.append(f"v_lshlrev_b32 v{x2}, 3, v{x2}")
        o.append(f"v_lshlrev_b32 v{ad}, 4, v{c}")
        o.append(f"v_add3_u32 v{ad}, v{ad}, v{x1}, v{x2}")
        o.append(f"s_cmp_lg_u32 s{S_TYPE}, 0")
        o.append(f"s_cselect_b32 s{S_T1}, 1.0, {f32hex(KSCALE)}")
        o.append("s_nop 3")
        for i in range(4): o.append(f"v_mul_f32 v{KVACC+i}, s{S_T1}, v{KVACC+i}")
        o.append(f"v_cvt_pk_bf16_f32 v{KVACC}, v{KVACC}, v{KVACC+1}")
        o.append(f"v_cvt_pk_bf16_f32 v{KVACC+1}, v{KVACC+2}, v{KVACC+3}")
        o.append(f"buffer_store_dwordx2 {vr(KVACC,2)}, v{ad}, s[{SRD_KV}:{SRD_KV+3}], s{S_T0} offen sc1")
        return o

    def q_reads(qs, s, fset):
        st_, so = slot_set((qs+4) % NSLOT)
        o = []
        xa = VXA + 2*st_ + s
        wa = VWA + 4*st_
        for cc in range(4):
            o.append(f"ds_read_b64_tr_b16 {vr(FA[fset]+4*cc,2)}, v{wa+cc} offset:{so + (32*s)*256}")
            o.append(f"ds_read_b64_tr_b16 {vr(FA[fset]+4*cc+2,2)}, v{wa+cc} offset:{so + (32*s+4)*256}")
            o.append(f"ds_read_b128 {vr(FB[fset]+4*cc,4)}, v{xa} offset:{so + cc*2048}")
        return o
    PER = int(cfg.get('per', 2)); LEAD = int(cfg.get('lead', 2))
    PUB = int(cfg.get('pub', 7))
    a("s_nop 7")
    a(kv_epilogue())
    for qs in range(16):
        gs = qs+4
        if gs == PUB: a("s_waitcnt vmcnt(0) lgkmcnt(0)")
        else: a("s_waitcnt lgkmcnt(0)")
        a("s_barrier")
        if gs == PUB:
            a(f"s_cmp_lg_u32 s{S_W}, 0")
            a(f"s_cbranch_scc1 L_nopub")
            a(f"v_mov_b32 v{T}, 0")
            a(f"v_mov_b32 v{T+1}, 1")
            a(f"s_mov_b64 s[{S_SAVE}:{S_SAVE+1}], exec")
            a(f"s_mov_b64 exec, 1")
            a(f"global_atomic_add v{T}, v{T+1}, s[{S_CNT}:{S_CNT+1}] sc1")
            a(f"s_mov_b64 exec, s[{S_SAVE}:{S_SAVE+1}]")
            a.label("L_nopub")
        r0 = q_reads(qs, 0, 0); r1 = q_reads(qs, 1, 1)
        m1_ = gemm_mfmas(ACC,FA,FB,1); m0_ = gemm_mfmas(ACC,FA,FB,0)
        if cfg.get('q_noreads'): r0 = []; r1 = []
        if cfg.get('q_nomfma'): m0_ = []; m1_ = []
        if qs == 0: a(r0)
        else: a(interleave(m1_, r0, lead=LEAD, per=PER))
        a("s_waitcnt lgkmcnt(0)")
        a(interleave(m0_, r1, lead=0, per=PER))
    a("s_waitcnt lgkmcnt(0)")
    a(gemm_mfmas(ACC,FA,FB,1))
    a("s_barrier")
    stamp(a, cfg, 3)

    ONES=4; IDX=8; VA=10; VB=11; VDMA=12; XT=13
    Q=96; O=32; L=128; S=[144,160]; P=[176,184]; K=[192,200]; V=[208,216]
    a(f"v_lshlrev_b32 v{VDMA}, 4, v0")
    a(f"v_mov_b32 v{VA}, v{VDMA}")
    a(f"v_add_u32 v{VB}, 0x8000, v{VDMA}")
    a(f"ds_read_b128 {vr(K[0],4)}, v{VA} offset:0")
    a(f"ds_read_b128 {vr(K[0]+4,4)}, v{VA} offset:1024")
    a(f"ds_read_b128 {vr(V[0],4)}, v{VA} offset:2048")
    a(f"ds_read_b128 {vr(V[0]+4,4)}, v{VA} offset:3072")
    a(f"ds_read_b128 {vr(K[1],4)}, v{VA} offset:4096")
    a(f"ds_read_b128 {vr(K[1]+4,4)}, v{VA} offset:{4096+1024}")
    a("s_nop 4")
    for hh in range(2):
        for rb in range(2):
            t = hh*2+rb
            for m in range(2):
                cc = 2*hh+m
                x = ACC + (cc*4+2*rb)*4; y = ACC + (cc*4+2*rb+1)*4
                q = Q + t*8 + m*4
                a(f"v_cvt_pk_bf16_f32 v{q}, v{x}, v{x+1}")
                a(f"v_cvt_pk_bf16_f32 v{q+1}, v{x+2}, v{x+3}")
                a(f"v_cvt_pk_bf16_f32 v{q+2}, v{y}, v{y+1}")
                a(f"v_cvt_pk_bf16_f32 v{q+3}, v{y+2}, v{y+3}")
    a("s_nop 1")
    for t in range(4):
        for m in range(2):
            q = Q + t*8 + m*4
            a(f"v_permlane16_swap_b32 v{q}, v{q+2}")
            a(f"v_permlane16_swap_b32 v{q+1}, v{q+3}")
    a("s_waitcnt lgkmcnt(0)")
    a(f"v_mfma_f32_32x32x16_bf16 {vr(S[0],16)}, {vr(K[0],4)}, {vr(Q,4)}, 0")
    a(f"v_mfma_f32_32x32x16_bf16 {vr(S[0],16)}, {vr(K[0]+4,4)}, {vr(Q+4,4)}, {vr(S[0],16)}")
    for i in range(64): a(f"v_mov_b32 v{O+i}, 0")
    for i in range(16): a(f"v_mov_b32 v{L+i}, 0")
    for i in range(8): a(f"v_mov_b32 v{P[1]+i}, 0")
    for i in range(8): a(f"v_mov_b32 v{V[1]+i}, 0")
    a(f"v_and_b32 v{XT}, 15, v0")
    a(f"v_mov_b32 v{XT+1}, 0x3f803f80")
    a(f"v_cmp_gt_u32 vcc, 2, v{XT}")
    a("s_nop 1")
    a(f"v_cndmask_b32 v{ONES}, 0, v{XT+1}, vcc")
    a(f"v_cndmask_b32 v{ONES+1}, 0, v{XT+1}, vcc")
    a(f"v_lshrrev_b32 v{XT+2}, 1, v{XT}")
    a(f"v_cmp_eq_u32 vcc, 1, v{XT+2}")
    a("s_nop 1")
    a(f"v_cndmask_b32 v{ONES+2}, 0, v{XT+1}, vcc")
    a(f"v_cndmask_b32 v{ONES+3}, 0, v{XT+1}, vcc")
    a(f"v_and_b32 v{XT+2}, 1, v{XT}")
    a(f"v_cmp_eq_u32 vcc, 1, v{XT+2}")
    a(f"v_mov_b32 v{XT+1}, 0x4444")
    a(f"v_mov_b32 v{XT+2}, 0xeeee")
    a(f"v_cndmask_b32 v{IDX}, v{XT+1}, v{XT+2}, vcc")
    stamp(a, cfg, 4)
    NSTEP = int(cfg.get('nstep', 8))
    a(f"s_mov_b32 s{S_LOOP}, {64//NSTEP}")
    a("s_nop 1")
    a(".p2align 6")
    a.label("L_attn")
    patt = cfg.get('patt', "A e e e c B e e c e C e c e e D c e R e c e e c e e c e S c").split()
    assert patt.count('e') == 16 and patt.count('c') == 8
    NQ = 4
    for step in range(NSTEP):
        for t in range(NQ):
            u = step*NQ + t
            un = u+1; stepn = un//NQ; tn = un % NQ
            up = u-1; stepp = up//NQ; tp = up % NQ
            sc = S[u%2]; sn = S[(u+1)%2]; Pp = P[(u-1)%2]; Pc = P[u%2]
            M = {
              'A': f"v_mfma_f32_32x32x16_bf16 {vr(sn,16)}, {vr(K[stepn%2],4)}, {vr(Q+tn*8,4)}, 0",
              'B': f"v_mfma_f32_32x32x16_bf16 {vr(sn,16)}, {vr(K[stepn%2]+4,4)}, {vr(Q+tn*8+4,4)}, {vr(sn,16)}",
              'C': f"v_mfma_f32_32x32x16_bf16 {vr(O+tp*16,16)}, {vr(V[stepp%2],4)}, {vr(Pp,4)}, {vr(O+tp*16,16)}",
              'D': f"v_mfma_f32_32x32x16_bf16 {vr(O+tp*16,16)}, {vr(V[stepp%2]+4,4)}, {vr(Pp+4,4)}, {vr(O+tp*16,16)}",
              'S': f"v_smfmac_f32_16x16x64_bf16 {vr(L+tp*4,4)}, {vr(ONES,4)}, {vr(Pp,8)}, v{IDX}",
            }
            ei = ci = 0
            for tok in patt:
                if tok == 'e': a(f"v_exp_f32 v{sc+ei}, v{sc+ei}"); ei += 1
                elif tok == 'c': a(f"v_cvt_pk_bf16_f32 v{Pc+ci}, v{sc+2*ci}, v{sc+2*ci+1}"); ci += 1
                elif tok == 'x': a("s_nop 0")
                elif tok == 'R':
                    if t == NQ-1:
                        if step % 4 == 2: a("s_barrier")
                        def addr(st):
                            if NSTEP == 16: return (VA, (st % 16)*4096)
                            return (VA, st*4096) if st < 8 else (VB, (st-8)*4096)
                        rv, ov = addr(step+1); rk, ok = addr(step+2)
                        a(f"ds_read_b128 {vr(V[(step+1)%2],4)}, v{rv} offset:{ov+2048}")
                        a(f"ds_read_b128 {vr(V[(step+1)%2]+4,4)}, v{rv} offset:{ov+3072}")
                        a(f"ds_read_b128 {vr(K[step%2],4)}, v{rk} offset:{ok}")
                        a(f"ds_read_b128 {vr(K[step%2]+4,4)}, v{rk} offset:{ok+1024}")
                else:
                    if tok == 'A' and tn == 0: a("s_waitcnt lgkmcnt(0)")
                    if tok == 'C' and tp == 0: a("s_waitcnt lgkmcnt(2)")
                    a(M[tok])
    if NSTEP == 8:
        a(f"v_xor_b32 v{VA}, 0x8000, v{VA}")
        a(f"v_xor_b32 v{VB}, 0x8000, v{VB}")
    a(f"s_sub_u32 s{S_LOOP}, s{S_LOOP}, 1")
    a(f"s_cmp_lg_u32 s{S_LOOP}, 0")
    a(f"s_cbranch_scc1 L_attn")
    a("s_nop 1")
    a(f"v_mfma_f32_32x32x16_bf16 {vr(O+48,16)}, {vr(V[1],4)}, {vr(P[1],4)}, {vr(O+48,16)}")
    a(f"v_mfma_f32_32x32x16_bf16 {vr(O+48,16)}, {vr(V[1]+4,4)}, {vr(P[1]+4,4)}, {vr(O+48,16)}")
    a(f"v_smfmac_f32_16x16x64_bf16 {vr(L+12,4)}, {vr(ONES,4)}, {vr(P[1],8)}, v{IDX}")
    a("s_nop 15")
    a("s_waitcnt lgkmcnt(0)")
    stamp(a, cfg, 5)
    LS = 144
    def lsum():
        for t in range(4):
            a(f"v_add_f32 v{XT+2*t}, v{L+4*t}, v{L+4*t+1}")
            a(f"v_add_f32 v{XT+2*t+1}, v{L+4*t+2}, v{L+4*t+3}")
        a("s_nop 1")
        for t in range(4): a(f"v_permlane16_swap_b32 v{XT+2*t}, v{XT+2*t+1}")
        a("s_nop 1")
        for t in range(4): a(f"v_mov_b32 v{LS+t}, v{XT+2*t}")
        a("s_nop 1")
        for t in range(4): a(f"v_permlane32_swap_b32 v{LS+t}, v{XT+2*t}")
        a("s_nop 1")
    lsum()
    a(f"s_mov_b32 s{S_T0}, 0x71800000")
    a(f"s_mov_b32 s{S_T1}, 0x7f800000")
    a(f"s_mov_b64 s[{S_MASK}:{S_MASK+1}], exec")
    for t in range(4):
        a(f"v_cmp_le_f32 vcc, 1.0, v{LS+t}")
        a(f"v_cmp_ge_f32 s[{S_MASK2}:{S_MASK2+1}], s{S_T0}, v{LS+t}")
        a(f"v_add_f32 v{XT}, |v{O+16*t}|, |v{O+16*t+1}|")
        for i in range(2,16): a(f"v_add_f32 v{XT}, v{XT}, |v{O+16*t+i}|")
        a(f"s_and_b64 s[{S_MASK}:{S_MASK+1}], s[{S_MASK}:{S_MASK+1}], vcc")
        a(f"s_and_b64 s[{S_MASK}:{S_MASK+1}], s[{S_MASK}:{S_MASK+1}], s[{S_MASK2}:{S_MASK2+1}]")
        a(f"v_cmp_gt_f32 vcc, s{S_T1}, v{XT}")
        a("s_nop 4")
        a(f"s_and_b64 s[{S_MASK}:{S_MASK+1}], s[{S_MASK}:{S_MASK+1}], vcc")
    a(f"s_cmp_eq_u64 s[{S_MASK}:{S_MASK+1}], exec")
    if cfg.get('force_fallback'):
        a("s_cmp_eq_u32 s2, 0x7fffffff")
    a(f"s_cbranch_scc1 L_norm")
    NEG = 144; SS = 160; MX = XT; KF = K[0]; VF = V[0]; PP = P[0]
    for t in range(4):
        a(f"v_mov_b32 v{MX}, 0xff800000")
        a(f"s_mov_b32 s{S_T2}, 0")
        a.label(f"L_fb1_{t}")
        a(f"buffer_load_dwordx4 {vr(KF,4)}, v{VDMA}, s[{SRD_KV}:{SRD_KV+3}], s{S_T2} offen sc1")
        a(f"buffer_load_dwordx4 {vr(KF+4,4)}, v{VDMA}, s[{SRD_KV}:{SRD_KV+3}], s{S_T2} offen offset:1024 sc1")
        a("s_waitcnt vmcnt(0)")
        a(f"v_mfma_f32_32x32x16_bf16 {vr(SS,16)}, {vr(KF,4)}, {vr(Q+t*8,4)}, 0")
        a(f"v_mfma_f32_32x32x16_bf16 {vr(SS,16)}, {vr(KF+4,4)}, {vr(Q+t*8+4,4)}, {vr(SS,16)}")
        a("s_nop 15")
        for i in range(8): a(f"v_max3_f32 v{MX}, v{SS+2*i}, v{SS+2*i+1}, v{MX}")
        a(f"s_add_u32 s{S_T2}, s{S_T2}, 4096")
        a(f"s_cmp_lt_u32 s{S_T2}, 262144")
        a(f"s_cbranch_scc1 L_fb1_{t}")
        a(f"v_mov_b32 v{MX+1}, v{MX}")
        a("s_nop 1")
        a(f"v_permlane32_swap_b32 v{MX}, v{MX+1}")
        a("s_nop 1")
        a(f"v_max_f32 v{MX}, v{MX}, v{MX+1}")
        for i in range(16): a(f"v_sub_f32 v{NEG+i}, 0, v{MX}")
        for i in range(16): a(f"v_mov_b32 v{O+16*t+i}, 0")
        for i in range(4): a(f"v_mov_b32 v{L+4*t+i}, 0")
        a(f"s_mov_b32 s{S_T2}, 0")
        a.label(f"L_fb2_{t}")
        a(f"buffer_load_dwordx4 {vr(KF,4)}, v{VDMA}, s[{SRD_KV}:{SRD_KV+3}], s{S_T2} offen sc1")
        a(f"buffer_load_dwordx4 {vr(KF+4,4)}, v{VDMA}, s[{SRD_KV}:{SRD_KV+3}], s{S_T2} offen offset:1024 sc1")
        a(f"buffer_load_dwordx4 {vr(VF,4)}, v{VDMA}, s[{SRD_KV}:{SRD_KV+3}], s{S_T2} offen offset:2048 sc1")
        a(f"buffer_load_dwordx4 {vr(VF+4,4)}, v{VDMA}, s[{SRD_KV}:{SRD_KV+3}], s{S_T2} offen offset:3072 sc1")
        a("s_waitcnt vmcnt(0)")
        a(f"v_mfma_f32_32x32x16_bf16 {vr(SS,16)}, {vr(KF,4)}, {vr(Q+t*8,4)}, {vr(NEG,16)}")
        a(f"v_mfma_f32_32x32x16_bf16 {vr(SS,16)}, {vr(KF+4,4)}, {vr(Q+t*8+4,4)}, {vr(SS,16)}")
        a("s_nop 15")
        for i in range(16): a(f"v_exp_f32 v{SS+i}, v{SS+i}")
        a("s_nop 1")
        for i in range(8): a(f"v_cvt_pk_bf16_f32 v{PP+i}, v{SS+2*i}, v{SS+2*i+1}")
        a("s_nop 2")
        a(f"v_mfma_f32_32x32x16_bf16 {vr(O+16*t,16)}, {vr(VF,4)}, {vr(PP,4)}, {vr(O+16*t,16)}")
        a(f"v_mfma_f32_32x32x16_bf16 {vr(O+16*t,16)}, {vr(VF+4,4)}, {vr(PP+4,4)}, {vr(O+16*t,16)}")
        a(f"v_smfmac_f32_16x16x64_bf16 {vr(L+4*t,4)}, {vr(ONES,4)}, {vr(PP,8)}, v{IDX}")
        a("s_nop 15")
        a(f"s_add_u32 s{S_T2}, s{S_T2}, 4096")
        a(f"s_cmp_lt_u32 s{S_T2}, 262144")
        a(f"s_cbranch_scc1 L_fb2_{t}")
    a("s_nop 7")
    lsum()
    a.label("L_norm")
    a(f"v_and_b32 v{XT}, 15, v0")
    a(f"v_lshlrev_b32 v{XT}, 4, v{XT}")
    a(f"v_bfe_u32 v{XT+1}, v0, 4, 1")
    a(f"v_lshlrev_b32 v{XT+1}, 15, v{XT+1}")
    a(f"v_lshrrev_b32 v{XT+2}, 5, v0")
    a(f"v_lshlrev_b32 v{XT+2}, 8, v{XT+2}")
    a(f"v_add3_u32 v{XT}, v{XT}, v{XT+1}, v{XT+2}")
    a(f"s_lshl_b32 s{S_T0}, s{S_R}, 3")
    a(f"s_lshl_b32 s{S_T1}, s{S_WM}, 2")
    a(f"s_add_u32 s{S_T0}, s{S_T0}, s{S_T1}")
    a(f"s_lshl_b32 s{S_T0}, s{S_T0}, 5")
    a(f"s_lshl_b32 s{S_T1}, s{S_G}, 2")
    a(f"s_add_u32 s{S_T0}, s{S_T0}, s{S_T1}")
    a(f"s_lshl_b32 s{S_T1}, s{S_WN}, 1")
    a(f"s_add_u32 s{S_T0}, s{S_T0}, s{S_T1}")
    a(f"s_lshl_b32 s{S_OST}, s{S_T0}, 10")
    for t in range(4): a(f"v_rcp_f32 v{LS+t}, v{LS+t}")
    a(f"v_and_b32 v{XT+1}, 15, v0")
    a(f"v_lshlrev_b32 v{XT+1}, 4, v{XT+1}")
    a(f"v_bfe_u32 v{XT+2}, v0, 4, 1")
    a(f"v_lshlrev_b32 v{XT+2}, 11, v{XT+2}")
    a(f"v_lshrrev_b32 v{XT+3}, 5, v0")
    a(f"v_lshlrev_b32 v{XT+3}, 8, v{XT+3}")
    a(f"v_add3_u32 v{XT+1}, v{XT+1}, v{XT+2}, v{XT+3}")
    a(f"s_lshl_b32 s{S_T0}, s{S_WN}, 14")
    a(f"s_lshl_b32 s{S_T1}, s{S_WM}, 13")
    a(f"s_add_u32 s{S_T0}, s{S_T0}, s{S_T1}")
    a(f"s_add_u32 s{S_T0}, s{S_T0}, 0x20000")
    a(f"v_add_u32 v{XT+1}, s{S_T0}, v{XT+1}")
    for t in range(4):
        hh, rb = t>>1, t&1
        for i in range(16): a(f"v_mul_f32 v{O+16*t+i}, v{O+16*t+i}, v{LS+t}")
        R = 160 + 8*t
        for i in range(8): a(f"v_cvt_pk_bf16_f32 v{R+i}, v{O+16*t+2*i}, v{O+16*t+2*i+1}")
        a(f"s_add_u32 s{S_T0}, s{S_OST}, {(2*rb*32 + hh)*1024}")
        a(f"buffer_store_dwordx4 {vr(R,4)}, v{XT}, s[{SRD_O}:{SRD_O+3}], s{S_T0} offen sc1")
        a(f"buffer_store_dwordx4 {vr(R+4,4)}, v{XT}, s[{SRD_O}:{SRD_O+3}], s{S_T0} offen offset:512 sc1")
        a(f"ds_write_b128 v{XT+1}, {vr(R,4)} offset:{rb*4096 + hh*1024}")
        a(f"ds_write_b128 v{XT+1}, {vr(R+4,4)} offset:{rb*4096 + hh*1024 + 512}")
    if not cfg.get('o_st6'): stamp(a, cfg, 6)
    OXA=2; OWA=8
    L4=T+1; X1=T+2; X2=T+3; X3=T+4
    a(f"v_lshrrev_b32 v{L4}, 4, v0")
    a(f"s_lshl_b32 s{S_T0}, s{S_WM}, 13")
    a(f"v_lshlrev_b32 v{X1}, 4, v0")
    a(f"v_add_u32 v{OXA}, s{S_T0}, v{X1}")
    a(f"v_add_u32 v{OXA+1}, 0x20000, v{OXA}")
    a(f"v_and_b32 v{X1}, 15, v0")
    a(f"v_lshrrev_b32 v{X2}, 2, v{X1}")
    a(f"v_and_b32 v{X3}, 1, v{L4}")
    a(f"v_lshlrev_b32 v{X3}, 2, v{X3}")
    a(f"v_add_u32 v{X3}, v{X3}, v{X2}")
    a(f"v_lshrrev_b32 v{T}, 1, v{L4}")
    a(f"v_lshlrev_b32 v{T}, 4, v{T}")
    a(f"v_add_u32 v{T}, v{T}, v{X3}")
    a(f"v_lshlrev_b32 v{T}, 8, v{T}")
    a(f"v_and_b32 v{X1}, 3, v{X1}")
    a(f"v_lshlrev_b32 v{X1}, 3, v{X1}")
    a(f"v_add_u32 v{T}, v{T}, v{X1}")
    a(f"v_add_u32 v{T}, 0x10000, v{T}")
    a(f"s_lshl_b32 s{S_T0}, s{S_WN}, 2")
    for cc in range(4):
        a(f"s_add_u32 s{S_T1}, s{S_T0}, {cc}")
        a(f"v_xor_b32 v{X2}, s{S_T1}, v{X3}")
        a(f"v_lshlrev_b32 v{X2}, 5, v{X2}")
        a(f"v_add_u32 v{OWA+cc}, v{X2}, v{T}")
    for i in range(64): a(f"v_mov_b32 v{ACC+i}, 0")
    def o_reads(st, s, fset):
        wo_ = (st % 4)*16384
        osl = st % 6
        xa, oo = (OXA+1, osl*16384) if osl < 2 else (OXA, (osl-2)*16384)
        o = []
        for cc in range(4):
            o.append(f"ds_read_b64_tr_b16 {vr(FA[fset]+4*cc,2)}, v{OWA+cc} offset:{wo_ + (32*s)*256}")
            o.append(f"ds_read_b64_tr_b16 {vr(FA[fset]+4*cc+2,2)}, v{OWA+cc} offset:{wo_ + (32*s+8)*256}")
            o.append(f"ds_read_b128 {vr(FB[fset]+4*cc,4)}, v{xa} offset:{oo + cc*2048 + s*1024}")
        return o
    for st in range(16):
        if st == 1: a("s_waitcnt vmcnt(0) lgkmcnt(0)")
        else: a("s_waitcnt lgkmcnt(0)")
        a("s_barrier")
        if st == 2: stamp(a, cfg, 7)
        r0 = o_reads(st, 0, 0); r1 = o_reads(st, 1, 1)
        m1_ = gemm_mfmas(ACC,FA,FB,1); m0_ = gemm_mfmas(ACC,FA,FB,0)
        if cfg.get('o_noreads'): r0 = []; r1 = []
        if cfg.get('o_nomfma'): m0_ = []; m1_ = []
        if st == 0: a(r0)
        else: a(interleave(m1_, r0, lead=LEAD, per=PER))
        a("s_waitcnt lgkmcnt(0)")
        a(interleave(m0_, r1, lead=0, per=PER))
        if st == 15: stamp(a, cfg, 6) if cfg.get('o_st6') else None
    a("s_waitcnt lgkmcnt(0)")
    a(gemm_mfmas(ACC,FA,FB,1))
    a(f"v_and_b32 v{X1}, 15, v0")
    a(f"v_lshlrev_b32 v{X1}, 12, v{X1}")
    a(f"v_and_b32 v{X2}, 1, v{L4}")
    a(f"v_lshlrev_b32 v{X2}, 5, v{X2}")
    a(f"v_lshrrev_b32 v{X3}, 1, v{L4}")
    a(f"v_lshlrev_b32 v{X3}, 4, v{X3}")
    a(f"v_add3_u32 v{X1}, v{X1}, v{X2}, v{X3}")
    a(f"s_lshl_b32 s{S_T0}, s{S_R}, 19")
    a(f"s_lshl_b32 s{S_T1}, s{S_WM}, 18")
    a(f"s_add_u32 s{S_T0}, s{S_T0}, s{S_T1}")
    a(f"s_lshl_b32 s{S_T1}, s{S_B}, 11")
    a(f"s_add_u32 s{S_T0}, s{S_T0}, s{S_T1}")
    a(f"s_lshl_b32 s{S_T1}, s{S_G}, 8")
    a(f"s_add_u32 s{S_T0}, s{S_T0}, s{S_T1}")
    a(f"s_lshl_b32 s{S_T1}, s{S_WN}, 7")
    a(f"s_add_u32 s{S_OST}, s{S_T0}, s{S_T1}")
    a("s_nop 7")
    R = 96
    k = 0
    for rt in range(4):
        for cp in range(2):
            x = ACC + ((2*cp)*4+rt)*4; y = ACC + ((2*cp+1)*4+rt)*4
            q = R + 4*k; k += 1
            a(f"v_cvt_pk_bf16_f32 v{q}, v{x}, v{x+1}")
            a(f"v_cvt_pk_bf16_f32 v{q+1}, v{x+2}, v{x+3}")
            a(f"v_cvt_pk_bf16_f32 v{q+2}, v{y}, v{y+1}")
            a(f"v_cvt_pk_bf16_f32 v{q+3}, v{y+2}, v{y+3}")
    a("s_nop 1")
    k = 0
    OUTF = cfg.get('outflags', '')
    for rt in range(4):
        a(f"s_add_u32 s{S_T0}, s{S_OST}, {rt*16*4096}")
        for cp in range(2):
            q = R + 4*k; k += 1
            a(f"v_permlane16_swap_b32 v{q}, v{q+2}")
            a(f"v_permlane16_swap_b32 v{q+1}, v{q+3}")
            a("s_nop 1")
            a(f"buffer_store_dwordx4 {vr(q,4)}, v{X1}, s[{SRD_OUT}:{SRD_OUT+3}], s{S_T0} offen offset:{cp*64} {OUTF}")
    if cfg.get('stamps'):
        a("s_waitcnt vmcnt(0)")
        stamp(a, cfg, 8)
        stamp_store(a, cfg, 9, 0, "L_k1_ss")
        if cfg.get('dbgout'):
            WGSEL = int(cfg.get('dbgwg', 0))
            a(f"s_cmp_lg_u32 s{S_WG}, {WGSEL}")
            a("s_cbranch_scc1 L_dd")
            a(f"s_cmp_lg_u32 s{S_W}, 0")
            a("s_cbranch_scc1 L_dd")
            a("v_mov_b32 v6, 0")
            a("s_mov_b64 exec, 1")
            for i in range(1, 9):
                a(f"s_sub_u32 s{S_T0}, s{ST0+2*i}, s{ST0}")
                a(f"v_mov_b32 v5, s{S_T0}")
                a(f"global_store_dword v6, v5, s[{PTR+22}:{PTR+23}] offset:{4*i}")
            if cfg.get('spin'):
                a(f"s_add_u32 s40, s{ST0}, {int(cfg['spin'])}")
                a.label("L_dspin")
                a("s_memrealtime s[42:43]")
                a("s_waitcnt lgkmcnt(0)")
                a("s_sub_u32 s44, s42, s40")
                a("s_cmp_lt_i32 s44, 0")
                a("s_cbranch_scc1 L_dspin")
            a.label("L_dd")
    a("s_endpgm")

    a.label("L_loader")
    VOX=2; VOW=6; VOWKV=10; VL=11; POLL=12; VOWO=13; VOB=17; WREG=40
    SRD_WO=12; S_FLAG=74
    gen_vox(a, VOX, T)
    gen_vow(a, VOW, T, lambda j: (j>>1)&1)
    gen_vow(a, VOWO, T, lambda j: j&1)
    X1=T+2; X2=T+3
    a(f"v_lshrrev_b32 v{X1}, 5, v0")
    a(f"v_lshlrev_b32 v{X1}, 1, v{X1}")
    a(f"v_and_b32 v{X2}, 3, v0")
    a(f"v_xor_b32 v{X1}, v{X1}, v{X2}")
    a(f"v_lshlrev_b32 v{X1}, 4, v{X1}")
    a(f"v_lshrrev_b32 v{X2}, 2, v0")
    a(f"v_lshlrev_b32 v{X2}, 6, v{X2}")
    a(f"v_add_u32 v{VOWKV}, v{X1}, v{X2}")
    a(f"v_lshlrev_b32 v{VL}, 4, v0")
    a(f"v_lshlrev_b32 v{VOB}, 4, v0")
    a(f"v_add_u32 v{VOB+1}, {32768-2048}, v{VOB}")
    a(f"s_lshl_b32 s{S_T0}, s{S_R}, 18")
    a(f"s_lshl_b32 s{S_T1}, s{S_W}, 16")
    a(f"s_add_u32 s{S_XQ}, s{S_T0}, s{S_T1}")
    a(f"s_lshl_b32 s{S_T1}, s{S_W}, 15")
    a(f"s_lshl_b32 s{S_T2}, s{S_G}, 8")
    a(f"s_add_u32 s{S_WQ}, s{S_T1}, s{S_T2}")
    a(f"s_lshr_b32 s{S_T1}, s{S_G}, 1")
    a(f"s_lshl_b32 s{S_T1}, s{S_T1}, 16")
    a(f"s_add_u32 s{S_XKV}, s{S_T0}, s{S_T1}")
    a(f"s_lshl_b32 s{S_T1}, s{S_W}, 7")
    a(f"s_add_u32 s{S_XKV}, s{S_XKV}, s{S_T1}")
    a("s_waitcnt lgkmcnt(0)")
    a(f"s_cmp_lg_u32 s{S_B}, 0")
    sel_ptr(a, SRD_X, 0, 10)
    sel_ptr(a, SRD_WQ, 2, 12)
    sel_ptr(a, S_T0, 4, 14)
    sel_ptr(a, S_T2, 6, 16)
    a(f"s_cmp_lg_u32 s{S_TYPE}, 0")
    a(f"s_cselect_b32 s{SRD_WKV}, s{S_T2}, s{S_T0}")
    a(f"s_cselect_b32 s{SRD_WKV+1}, s{S_T2+1}, s{S_T0+1}")
    srd_tail(a, SRD_X, 2048*2048)
    srd_tail(a, SRD_WKV, 1024*64)
    srd_tail(a, SRD_WQ, 1024*2048)
    vm = VM()
    MODE = cfg.get('hand', 'sc1')
    ACQ = MODE == 'acq'; LDF = 'sc1' if MODE == 'sc1' else ''
    def dma_stage(gs):
        o = []
        slot = gs % NSLOT
        if gs < 4:
            j = gs
            o.append(f"s_add_u32 m0, s{S_M0}, {slot*SLOT}")
            o.append(f"s_add_u32 s{S_OFFA}, s{S_XKV}, {j*512}")
            for i in range(4):
                o.append(f"buffer_load_dwordx4 v{VOX+i}, s[{SRD_X}:{SRD_X+3}], s{S_OFFA} offen offset:{i*1024} lds"); vm.issue(('st',gs))
            o.append(f"s_add_u32 m0, s{S_M0}, {slot*SLOT+16384}")
            o.append(f"s_add_u32 s{S_OFFB}, s{S_M0}, {j*16384}")
            for i in range(4):
                o.append(f"buffer_load_dwordx4 v{VOWKV}, s[{SRD_WKV}:{SRD_WKV+3}], s{S_OFFB} offen offset:{i*1024} lds"); vm.issue(('st',gs))
        else:
            qs = gs-4
            o.append(f"s_add_u32 m0, s{S_M0}, {slot*SLOT}")
            o.append(f"s_add_u32 s{S_OFFA}, s{S_XQ}, {qs*128}")
            for i in range(4):
                o.append(f"buffer_load_dwordx4 v{VOX+i}, s[{SRD_X}:{SRD_X+3}], s{S_OFFA} offen offset:{i*1024} lds"); vm.issue(('st',gs))
            o.append(f"s_add_u32 m0, s{S_M0}, {slot*SLOT+16384}")
            o.append(f"s_add_u32 s{S_OFFB}, s{S_WQ}, {qs*131072}")
            for j in range(4):
                o.append(f"buffer_load_dwordx4 v{VOW+j}, s[{SRD_WQ}:{SRD_WQ+3}], s{S_OFFB} offen offset:{j*1024} lds"); vm.issue(('st',gs))
        return o
    for gs in range(5): a(dma_stage(gs))
    a(f"s_lshl_b32 s{S_T0}, s{S_B}, 18")
    a(f"s_add_u32 s{SRD_KV}, s{PTR+24}, s{S_T0}")
    a(f"s_addc_u32 s{SRD_KV+1}, s{PTR+25}, 0")
    srd_tail(a, SRD_KV, 262144)
    a(f"s_lshl_b32 s{S_T0}, s{S_B}, 22")
    a(f"s_add_u32 s{S_T0}, s{S_T0}, {WS_O}")
    a(f"s_add_u32 s{SRD_O}, s{PTR+24}, s{S_T0}")
    a(f"s_addc_u32 s{SRD_O+1}, s{PTR+25}, 0")
    srd_tail(a, SRD_O, 4*1024*1024)
    a(f"s_lshl_b32 s{S_T0}, s{S_B}, 7")
    a(f"s_add_u32 s{S_CNT}, s{PTR+22}, s{S_T0}")
    a(f"s_addc_u32 s{S_CNT+1}, s{PTR+23}, 0")
    a(f"s_lshl_b32 s{S_T0}, s{S_B}, 4")
    a(f"s_add_u32 s{S_T0}, s{S_T0}, s{S_R}")
    a(f"s_lshl_b32 s{S_T0}, s{S_T0}, 7")
    a(f"s_add_u32 s{S_T0}, s{S_T0}, {WS_F}")
    a(f"s_add_u32 s{S_FLAG}, s{PTR+24}, s{S_T0}")
    a(f"s_addc_u32 s{S_FLAG+1}, s{PTR+25}, 0")
    a(f"s_lshl_b32 s{S_T0}, s{S_G}, 2")
    a(f"v_mov_b32 v{T}, s{S_T0}")
    a(f"v_mov_b32 v{T+1}, 0")
    a(f"s_cmp_lg_u32 s{S_W}, 0")
    a(f"s_cbranch_scc1 L_nozero")
    a(f"s_mov_b64 exec, 1")
    a(f"global_store_dword v{T}, v{T+1}, s[{S_FLAG}:{S_FLAG+1}] sc1")
    a(f"s_mov_b64 exec, -1")
    a.label("L_nozero")
    zero_pos = len(vm.ops)
    def kv_dma(st):
        o = [f"s_add_u32 m0, s{S_M0}, {(st%4)*16384}", f"s_add_u32 s{S_OFFA}, s{S_M0}, {st*16384}"]
        for i in range(4):
            o.append(f"buffer_load_dwordx4 v{VL}, s[{SRD_KV}:{SRD_KV+3}], s{S_OFFA} offen offset:{i*1024} {LDF} lds"); vm.issue(('kv',st))
        return o
    POLLAT = int(cfg.get('pollat', 14))
    for gs in range(20):
        need = vm.wait_n(('st',gs))
        if gs == PUB: need = min(need, len(vm.ops) - zero_pos)
        if gs == 16: need = min(need, vm.wait_n('poll'))
        a(f"s_waitcnt vmcnt({need})")
        a("s_barrier")
        if gs == POLLAT:
            a(f"v_mov_b32 v{T}, 0")
            a(f"global_load_dword v{POLL}, v{T}, s[{S_CNT}:{S_CNT+1}] sc1"); vm.issue('poll')
        if gs >= 1 and gs+4 < 20:
            d = dma_stage(gs+4)
            if cfg.get('q_nodma') and gs >= 3: d = [x for x in d if 'buffer_load' not in x]
            if cfg.get('q_nox') and gs >= 3: d = [x for x in d if f"s[{SRD_X}:" not in x]
            if cfg.get('q_now') and gs >= 3: d = [x for x in d if f"s[{SRD_WQ}:" not in x]
            a(d)
        if gs == 16:
            a(f"v_readfirstlane_b32 s{S_T0}, v{POLL}")
            a("s_nop 3")
            a(f"s_cmp_ge_u32 s{S_T0}, 128")
            a(f"s_cbranch_scc1 L_kvready")
            a.label("L_spin")
            a("s_sleep 2")
            a(f"v_mov_b32 v{T}, 0")
            a(f"global_load_dword v{POLL}, v{T}, s[{S_CNT}:{S_CNT+1}] sc1")
            a("s_waitcnt vmcnt(0)")
            a(f"v_readfirstlane_b32 s{S_T0}, v{POLL}")
            a("s_nop 3")
            a(f"s_cmp_lt_u32 s{S_T0}, 128")
            a(f"s_cbranch_scc1 L_spin")
            a.label("L_kvready")
            if ACQ: a("buffer_inv sc1")
            a(kv_dma(0)); a(kv_dma(1))
        if gs == 17: a(kv_dma(2))
    a(f"s_waitcnt vmcnt({vm.wait_n(('kv',0))})")
    a("s_barrier")
    a(f"s_cmp_lg_u32 s{S_B}, 0")
    sel_ptr(a, SRD_WO, 8, 18)
    srd_tail(a, SRD_WO, 1024*2048)
    S_G2 = S_T5
    a(f"s_lshl_b32 s{S_G2}, s{S_G}, 1")
    def rot(dst, i, shift, base):
        return [f"s_add_u32 s{dst}, s{S_G2}, {i}", f"s_and_b32 s{dst}, s{dst}, 15", f"s_lshl_b32 s{dst}, s{dst}, {shift}", f"s_add_u32 s{dst}, s{dst}, s{base}"]
    def wo_dma(i):
        o = rot(S_OFFB, i, 17, S_WQ)
        o.append(f"s_add_u32 m0, s{S_M0}, {65536 + (i%4)*16384}")
        for j in range(4):
            o.append(f"buffer_load_dwordx4 v{VOWO+j}, s[{SRD_WO}:{SRD_WO+3}], s{S_OFFB} offen offset:{j*1024} lds"); vm.issue(('wo',i))
        return o
    VTCH = T+4
    a(f"v_lshrrev_b32 v{VTCH}, 1, v0")
    a(f"v_lshlrev_b32 v{VTCH}, 11, v{VTCH}")
    a(f"v_and_b32 v{VTCH+1}, 1, v0")
    a(f"v_lshlrev_b32 v{VTCH+1}, 7, v{VTCH+1}")
    a(f"v_add_u32 v{VTCH}, v{VTCH}, v{VTCH+1}")
    def wo_touch(i):
        o = rot(S_OFFB, i, 17, S_WQ)
        o.append(f"buffer_load_dword v{WREG+i}, v{VTCH}, s[{SRD_WO}:{SRD_WO+3}], s{S_OFFB} offen"); vm.issue(('wt',i))
        return o
    for s in range(1, 17):
        if s <= 15: a(f"s_waitcnt vmcnt({vm.wait_n(('kv',s))})")
        a("s_barrier")
        if s+2 <= 15: a(kv_dma(s+2))
        if s-1 < 4: a(wo_dma(s-1))
        else: a(wo_touch(s-1))
    a(f"s_lshl_b32 s{S_T0}, s{S_R}, 3")
    a(f"s_lshl_b32 s{S_T1}, s{S_W}, 1")
    a(f"s_add_u32 s{S_T0}, s{S_T0}, s{S_T1}")
    a(f"s_lshl_b32 s{S_XQ}, s{S_T0}, 15")
    a(f"s_lshl_b32 s{S_T0}, s{S_G}, 2")
    a(f"v_mov_b32 v{T}, s{S_T0}")
    a(f"v_mov_b32 v{T+1}, 1")
    a(f"v_and_b32 v{T+3}, 7, v0")
    a(f"v_lshlrev_b32 v{T+3}, 2, v{T+3}")
    a("s_waitcnt vmcnt(0)")
    vm.ops = []
    OSL = [131072, 131072+16384, 0, 16384, 32768, 49152]
    def o_dma(i):
        o = [f"s_add_u32 m0, s{S_M0}, {OSL[i%6]}"] + rot(S_OFFA, i, 11, S_XQ)
        for k in range(4):
            o.append(f"buffer_load_dwordx4 v{VOB+(k>>1)}, s[{SRD_O}:{SRD_O+3}], s{S_OFFA} offen offset:{k*1024} {LDF} lds"); vm.issue(('o',i))
        return o
    a("s_barrier")
    a("s_barrier")
    a(f"s_cmp_lg_u32 s{S_W}, 0")
    a(f"s_cbranch_scc1 L_noflag")
    a(f"s_mov_b64 exec, 1")
    a(f"global_store_dword v{T}, v{T+1}, s[{S_FLAG}:{S_FLAG+1}] sc1")
    a(f"s_mov_b64 exec, -1")
    a.label("L_noflag")
    a(wo_dma(4))
    a.label("L_ospin")
    a(f"global_load_dword v{POLL}, v{T+3}, s[{S_FLAG}:{S_FLAG+1}] sc1")
    a("s_waitcnt vmcnt(0)")
    a(f"v_cmp_eq_u32 vcc, 1, v{POLL}")
    a("s_nop 4")
    a(f"s_cmp_eq_u64 vcc, exec")
    a(f"s_cbranch_scc1 L_oready")
    if not cfg.get('nosleep'): a("s_sleep 1")
    a("s_branch L_ospin")
    a.label("L_oready")
    vm.ops = []
    if ACQ: a("buffer_inv sc1")
    for i in range(2, 7): a(o_dma(i))
    for st in range(2, 16):
        need = vm.wait_n(('o',st))
        if st >= 5: need = min(need, vm.wait_n(('wo',st)))
        a(f"s_waitcnt vmcnt({need})")
        a("s_barrier")
        if st+3 < 16: a(wo_dma(st+3))
        if st+5 < 16:
            d = o_dma(st+5)
            if cfg.get('o_nodma'): d = [x for x in d if 'buffer_load' not in x]
            a(d)
    a.label("L_end")
    a("s_endpgm")
    return a

def kd(name, nv, ns):
    return f""".amdhsa_kernel {name}
  .amdhsa_next_free_vgpr {nv}
  .amdhsa_next_free_sgpr {ns}
  .amdhsa_accum_offset {nv}
  .amdhsa_group_segment_fixed_size 0
  .amdhsa_kernarg_size 104
  .amdhsa_user_sgpr_count 2
  .amdhsa_user_sgpr_kernarg_segment_ptr 1
  .amdhsa_system_sgpr_workgroup_id_x 1
.end_amdhsa_kernel"""

def build(cfg):
    cfg = dict(cfg)
    cfg.setdefault('k1', NAME + '_kernel')
    hdr = open('cdna_kernels/' + NAME + '.s.ref').read().split('\n')
    head = [l for l in hdr if l.startswith(';') and '@launch' not in l and 'Override launch' not in l and 'grid=ceil' not in l]
    out = head[:15]
    out.append("; @launch grid=(256,1,1) block=(512,1,1) lds=163840")
    out.append('.amdgcn_target "amdgcn-amd-amdhsa--gfx950"')
    out.append('.text')
    out.append(gen_fused(cfg).text())
    out.append('.section .rodata,"a"')
    out.append('.p2align 6'); out.append(kd(cfg['k1'], 232, 102))
    return "\n".join(out) + "\n"

if __name__ == "__main__":
    cfg = {}
    outfn = 'cdna_kernels/' + NAME + '.s'
    for arg in sys.argv[1:]:
        if arg.startswith('-o'): outfn = arg[2:]
        elif '=' in arg:
            k, v = arg.split('=', 1); cfg[k] = v
        else: cfg[arg] = True
    open(outfn, 'w').write(build(cfg))
    print("wrote", outfn)
```

```python
import sys, math

NAME = "concat_heads__grouped_kv_mqa__grouped_kv_mqa__prompt"

class Asm:
    def __init__(self): self.l = []
    def __call__(self, s=""):
        if isinstance(s, (list, tuple)):
            for x in s: self(x)
        else: self.l.append("  " + s if s and not s.endswith(":") else s)
    def label(self, s): self.l.append(s + ":")
    def text(self): return "\n".join(self.l)

def vr(b, n=1): return f"v{b}" if n == 1 else f"v[{b}:{b+n-1}]"
def sr(b, n=1): return f"s{b}" if n == 1 else f"s[{b}:{b+n-1}]"

def interleave(main, others, lead=0, per=None):
    out = list(others[:lead]); rest = list(others[lead:])
    n = len(main)
    if n == 0: return out + rest
    for i, m in enumerate(main):
        out.append(m)
        if per is not None:
            k = min(per, len(rest))
        else:
            left = n - i
            k = -(-len(rest) // left)
        out += rest[:k]; rest = rest[k:]
    return out + rest

class VM:
    def __init__(self): self.ops = []
    def issue(self, tag): self.ops.append(tag)
    def wait_n(self, tag):
        idx = [i for i, t in enumerate(self.ops) if t == tag]
        assert idx, tag
        n = len(self.ops) - 1 - idx[-1]
        assert n <= 63
        return n

WS_KV = 0
WS_O  = 0x100000
KSCALE = (32 ** -0.5) * math.log2(math.e)
def f32hex(x):
    import struct
    return "0x%08x" % struct.unpack("<I", struct.pack("<f", x))[0]

S_WG=2
SRD_X=4; SRD_WQ=8; SRD_WKV=12; SRD_KV=16; SRD_O=20
S_CNT=24
S_W=26; S_B=27; S_R=28; S_G=29
S_T0=30; S_T1=31; S_T2=32; S_T3=33; S_T4=34; S_T5=35
PTR=36
S_XQ=62; S_WQ=63; S_XKV=64; S_WKV=65; S_M0=66; S_OFFA=67; S_OFFB=68; S_LOOP=69; S_KVOFF=70; S_KVM0=71
S_WM=72; S_WN=73; S_OST=74; S_SAVE=76
S_MASK=78
S_MASK2=80
S_TYPE=82; S_W8=83

def decode_ids(a):
    a(f"s_and_b32 s{S_T0}, s{S_WG}, 7")
    a(f"s_lshr_b32 s{S_T1}, s{S_WG}, 3")
    a(f"s_lshr_b32 s{S_B}, s{S_T0}, 2")
    a(f"s_and_b32 s{S_T0}, s{S_T0}, 3")
    a(f"s_lshl_b32 s{S_T0}, s{S_T0}, 2")
    a(f"s_lshr_b32 s{S_R}, s{S_T1}, 3")
    a(f"s_add_u32 s{S_R}, s{S_R}, s{S_T0}")
    a(f"s_and_b32 s{S_G}, s{S_T1}, 7")

def load_ptrs(a):
    a(f"s_load_dwordx16 s[{PTR}:{PTR+15}], s[0:1], 0")
    a(f"s_load_dwordx8 s[{PTR+16}:{PTR+23}], s[0:1], 64")
    a(f"s_load_dwordx2 s[{PTR+24}:{PTR+25}], s[0:1], 96")
def sel_ptr(a, dst, idxA, idxB):
    a(f"s_cselect_b32 s{dst}, s{PTR+idxB}, s{PTR+idxA}")
    a(f"s_cselect_b32 s{dst+1}, s{PTR+idxB+1}, s{PTR+idxA+1}")
def srd_tail(a, srd, nbytes):
    a(f"s_and_b32 s{srd+1}, s{srd+1}, 0xffff")
    a(f"s_mov_b32 s{srd+2}, {nbytes}")
    a(f"s_mov_b32 s{srd+3}, 0x00020000")

ST0=84
def stamp(a, cfg, i):
    if cfg.get('stamps'):
        a(f"{'s_memtime' if cfg.get('cyc') else 's_memrealtime'} s[{ST0+2*i}:{ST0+2*i+1}]")
        a("s_waitcnt lgkmcnt(0)")
def stamp_store(a, cfg, n, kidx, lab):
    if not cfg.get('stamps'): return
    a(f"s_cmp_lg_u32 s{S_W}, 0")
    a(f"s_cbranch_scc1 {lab}")
    a(f"s_lshl_b32 s{S_T0}, s{S_WG}, 7")
    a(f"s_add_u32 s{S_T0}, s{S_T0}, {0x3000000 + kidx*0x10000}")
    a(f"s_add_u32 s{S_T2}, s{PTR+24}, s{S_T0}")
    a(f"s_addc_u32 s{S_T3}, s{PTR+25}, 0")
    a("v_mov_b32 v2, 0")
    for i in range(n):
        a(f"v_mov_b32 v4, s{ST0+2*i}")
        a(f"v_mov_b32 v5, s{ST0+2*i+1}")
        a(f"global_store_dwordx2 v2, v[4:5], s[{S_T2}:{S_T3}] offset:{8*i}")
        a("s_nop 1")
    a.label(lab)


def lane_wave(a, T):
    a(f"v_lshrrev_b32 v{T}, 6, v0")
    a(f"v_and_b32 v0, 63, v0")
    a(f"s_nop 0")
    a(f"v_readfirstlane_b32 s{S_W8}, v{T}")
    a("s_nop 3")
    a(f"s_and_b32 s{S_W}, s{S_W8}, 3")

def gen_vox(a, VOX, T):
    L3=T; L4=T+1; X1=T+2; X2=T+3
    a(f"v_lshrrev_b32 v{L3}, 3, v0")
    a(f"v_lshrrev_b32 v{L4}, 4, v0")
    for i in range(4):
        a(f"v_add_u32 v{X1}, {4*i}, v{L4}")
        a(f"v_and_b32 v{X1}, 7, v{X1}")
        a(f"v_and_b32 v{X2}, 7, v0")
        a(f"v_xor_b32 v{X1}, v{X1}, v{X2}")
        a(f"v_lshlrev_b32 v{X1}, 4, v{X1}")
        a(f"v_lshlrev_b32 v{X2}, 11, v{L3}")
        a(f"v_add_u32 v{X1}, v{X1}, v{X2}")
        a(f"v_add_u32 v{VOX+i}, {8*i*2048 - i*1024}, v{X1}")

def gen_vow(a, VOW, T, bit):
    L4=T+1; X1=T+2; X2=T+3; X3=T+4
    a(f"v_lshrrev_b32 v{L4}, 4, v0")
    for j in range(4):
        a(f"v_and_b32 v{X1}, 15, v0")
        a(f"v_lshrrev_b32 v{X2}, 1, v{X1}")
        a(f"v_or_b32 v{X3}, {bit(j)<<2}, v{L4}")
        a(f"v_xor_b32 v{X2}, v{X2}, v{X3}")
        a(f"v_lshlrev_b32 v{X2}, 5, v{X2}")
        a(f"v_and_b32 v{X1}, 1, v{X1}")
        a(f"v_lshlrev_b32 v{X1}, 4, v{X1}")
        a(f"v_add_u32 v{X1}, v{X1}, v{X2}")
        a(f"v_lshlrev_b32 v{X2}, 11, v{L4}")
        a(f"v_add_u32 v{X1}, v{X1}, v{X2}")
        a(f"v_add_u32 v{VOW+j}, {4*j*2048 - j*1024}, v{X1}")

def gemm_mfmas(ACC, FA, FB, fset):
    o = []
    for cc in range(4):
        for rt in range(4):
            acc = ACC + (cc*4+rt)*4
            o.append(f"v_mfma_f32_16x16x32_bf16 {vr(acc,4)}, {vr(FA[fset]+4*cc,4)}, {vr(FB[fset]+4*rt,4)}, {vr(acc,4)}")
    return o


WS_F = 0xA00000

def gen_fused(cfg):
    a = Asm()
    kname = cfg['k1']
    a(f".globl {kname}\n.p2align 8\n.type {kname},@function")
    a.label(kname)
    a(f"s_cmp_ge_u32 s{S_WG}, 256")
    a(f"s_cbranch_scc1 L_end")
    stamp(a, cfg, 0)
    load_ptrs(a)
    decode_ids(a)
    T=26
    lane_wave(a, T)
    a(f"s_and_b32 s{S_WN}, s{S_W}, 1")
    a(f"s_lshr_b32 s{S_WM}, s{S_W}, 1")
    a(f"s_and_b32 s{S_TYPE}, s{S_G}, 1")
    a(f"s_lshl_b32 s{S_M0}, s{S_W}, 12")
    a(f"s_cmp_ge_u32 s{S_W8}, 4")
    a(f"s_cbranch_scc1 L_loader")
    NSLOT=5; SLOT=32768
    def slot_set(slot):
        return slot // 2, (slot % 2) * SLOT
    VXA=2
    VWA=8
    VKXA=20; VKWA=22
    ACC=32; FA=[96,128]; FB=[112,144]; KVACC=160; KVX=164; KVW=196
    L3=T+1; L4=T+2; X1=T+3; X2=T+4; X3=T+5
    a(f"v_lshrrev_b32 v{L4}, 4, v0")
    a(f"v_and_b32 v{X1}, 15, v0")
    a(f"v_lshrrev_b32 v{X2}, 1, v{X1}")
    a(f"v_lshlrev_b32 v{X3}, 7, v{X1}")
    a(f"s_lshl_b32 s{S_T0}, s{S_WM}, 13")
    a(f"s_lshl_b32 s{S_T1}, s{S_WM}, 11")
    for s in range(2):
        a(f"v_add_u32 v{L3}, {4*s}, v{L4}")
        a(f"v_xor_b32 v{L3}, v{L3}, v{X2}")
        a(f"v_lshlrev_b32 v{L3}, 4, v{L3}")
        a(f"v_add_u32 v{L3}, v{L3}, v{X3}")
        a(f"v_add_u32 v{VXA+s}, s{S_T0}, v{L3}")
        a(f"v_add_u32 v{VXA+2+s}, 0x10000, v{VXA+s}")
        a(f"v_add_u32 v{VXA+4+s}, 0x20000, v{VXA+s}")
        a(f"v_add_u32 v{VKXA+s}, s{S_T1}, v{L3}")
    a(f"v_lshrrev_b32 v{X2}, 2, v{X1}")
    a(f"v_and_b32 v{L3}, 1, v{L4}")
    a(f"v_lshlrev_b32 v{X3}, 2, v{L3}")
    a(f"v_or_b32 v{X3}, v{X3}, v{X2}")
    a(f"v_lshlrev_b32 v{T}, 3, v{L4}")
    a(f"v_add_u32 v{T}, v{T}, v{X2}")
    a(f"v_and_b32 v{X1}, 3, v{X1}")
    a(f"v_lshlrev_b32 v{X1}, 3, v{X1}")
    a(f"s_lshl_b32 s{S_T0}, s{S_WN}, 2")
    a(f"v_xor_b32 v{L3}, s{S_WN}, v{L3}")
    a(f"v_lshlrev_b32 v{L3}, 5, v{L3}")
    a(f"v_lshlrev_b32 v{X2}, 6, v{T}")
    a(f"v_add3_u32 v{VKWA}, v{L3}, v{X2}, v{X1}")
    a(f"v_add_u32 v{VKWA}, 16384, v{VKWA}")
    a(f"v_lshlrev_b32 v{T}, 8, v{T}")
    a(f"v_add_u32 v{T}, v{T}, v{X1}")
    a(f"v_add_u32 v{T}, 16384, v{T}")
    for cc in range(4):
        a(f"s_add_u32 s{S_T1}, s{S_T0}, {cc}")
        a(f"v_xor_b32 v{X2}, s{S_T1}, v{X3}")
        a(f"v_lshlrev_b32 v{X2}, 5, v{X2}")
        a(f"v_add_u32 v{VWA+cc}, v{X2}, v{T}")
        a(f"v_add_u32 v{VWA+4+cc}, 0x10000, v{VWA+cc}")
        a(f"v_add_u32 v{VWA+8+cc}, 0x20000, v{VWA+cc}")
    for i in range(4): a(f"v_mov_b32 v{KVACC+i}, 0")
    for i in range(64): a(f"v_mov_b32 v{ACC+i}, 0")
    a("s_waitcnt lgkmcnt(0)")
    a(f"s_lshl_b32 s{S_T0}, s{S_B}, 18")
    a(f"s_add_u32 s{SRD_KV}, s{PTR+24}, s{S_T0}")
    a(f"s_addc_u32 s{SRD_KV+1}, s{PTR+25}, 0")
    srd_tail(a, SRD_KV, 262144)
    a(f"s_lshl_b32 s{S_T0}, s{S_B}, 22")
    a(f"s_add_u32 s{S_T0}, s{S_T0}, {WS_O}")
    a(f"s_add_u32 s{SRD_O}, s{PTR+24}, s{S_T0}")
    a(f"s_addc_u32 s{SRD_O+1}, s{PTR+25}, 0")
    srd_tail(a, SRD_O, 4*1024*1024)
    a(f"s_lshl_b32 s{S_T0}, s{S_B}, 7")
    a(f"s_add_u32 s{S_CNT}, s{PTR+22}, s{S_T0}")
    a(f"s_addc_u32 s{S_CNT+1}, s{PTR+23}, 0")
    SRD_OUT=4
    a(f"s_mov_b32 s{SRD_OUT}, s{PTR+20}")
    a(f"s_mov_b32 s{SRD_OUT+1}, s{PTR+21}")
    srd_tail(a, SRD_OUT, 2048*4096)
    stamp(a, cfg, 1)
    for gs in range(4):
        a("s_barrier")
        so = (gs % 2) * SLOT
        if gs == 2:
            for r_ in (VKXA, VKXA+1, VKWA): a(f"v_add_u32 v{r_}, 0x10000, v{r_}")
        for s in range(8):
            a(f"ds_read_b128 {vr(KVX+4*s,4)}, v{VKXA+(s&1)} offset:{so + (s>>1)*4096}")
            a(f"ds_read_b64_tr_b16 {vr(KVW+4*s,2)}, v{VKWA} offset:{so + (32*s)*64}")
            a(f"ds_read_b64_tr_b16 {vr(KVW+4*s+2,2)}, v{VKWA} offset:{so + (32*s+4)*64}")
        a(f"s_cmp_lg_u32 s{S_TYPE}, 0")
        a(f"s_cbranch_scc1 L_kv_v{gs}")
        for s in range(8):
            if s in (0,4): a(f"s_waitcnt lgkmcnt({12 if s==0 else 0})")
            a(f"v_mfma_f32_16x16x32_bf16 {vr(KVACC,4)}, {vr(KVW+4*s,4)}, {vr(KVX+4*s,4)}, {vr(KVACC,4)}")
        a(f"s_branch L_kv_e{gs}")
        a.label(f"L_kv_v{gs}")
        for s in range(8):
            if s in (0,4): a(f"s_waitcnt lgkmcnt({12 if s==0 else 0})")
            a(f"v_mfma_f32_16x16x32_bf16 {vr(KVACC,4)}, {vr(KVX+4*s,4)}, {vr(KVW+4*s,4)}, {vr(KVACC,4)}")
        a.label(f"L_kv_e{gs}")
    stamp(a, cfg, 2)

    def kv_epilogue():
        o = []
        c=T; g_=T+1; x1=T+2; x2=T+3; ad=T+4
        o.append(f"v_and_b32 v{c}, 15, v0")
        o.append(f"v_lshrrev_b32 v{g_}, 4, v0")
        o.append(f"s_cmp_lg_u32 s{S_TYPE}, 0")
        o.append(f"s_cselect_b32 s{S_T0}, s{S_WM}, s{S_WN}")
        o.append(f"s_cselect_b32 s{S_T1}, s{S_WN}, s{S_WM}")
        o.append(f"s_cselect_b32 s{S_T2}, 0, 1")
        o.append(f"s_lshl_b32 s{S_T0}, s{S_T0}, 10")
        o.append(f"s_lshl_b32 s{S_T1}, s{S_T1}, 8")
        o.append(f"s_add_u32 s{S_T0}, s{S_T0}, s{S_T1}")
        o.append(f"s_lshl_b32 s{S_T1}, s{S_TYPE}, 11")
        o.append(f"s_add_u32 s{S_T0}, s{S_T0}, s{S_T1}")
        o.append(f"s_lshl_b32 s{S_T1}, s{S_R}, 2")
        o.append(f"s_lshr_b32 s{S_T3}, s{S_G}, 1")
        o.append(f"s_add_u32 s{S_T1}, s{S_T1}, s{S_T3}")
        o.append(f"s_lshl_b32 s{S_T1}, s{S_T1}, 12")
        o.append(f"s_add_u32 s{S_T0}, s{S_T0}, s{S_T1}")
        o.append(f"v_lshrrev_b32 v{x1}, s{S_T2}, v{g_}")
        o.append(f"v_and_b32 v{x1}, 1, v{x1}")
        o.append(f"v_lshlrev_b32 v{x1}, 9, v{x1}")
        o.append(f"s_xor_b32 s{S_T2}, s{S_T2}, 1")
        o.append(f"v_lshrrev_b32 v{x2}, s{S_T2}, v{g_}")
        o.append(f"v_and_b32 v{x2}, 1, v{x2}")
        o.append(f"v_lshlrev_b32 v{x2}, 3, v{x2}")
        o.append(f"v_lshlrev_b32 v{ad}, 4, v{c}")
        o.append(f"v_add3_u32 v{ad}, v{ad}, v{x1}, v{x2}")
        o.append(f"s_cmp_lg_u32 s{S_TYPE}, 0")
        o.append(f"s_cselect_b32 s{S_T1}, 1.0, {f32hex(KSCALE)}")
        o.append("s_nop 3")
        for i in range(4): o.append(f"v_mul_f32 v{KVACC+i}, s{S_T1}, v{KVACC+i}")
        o.append(f"v_cvt_pk_bf16_f32 v{KVACC}, v{KVACC}, v{KVACC+1}")
        o.append(f"v_cvt_pk_bf16_f32 v{KVACC+1}, v{KVACC+2}, v{KVACC+3}")
        o.append(f"buffer_store_dwordx2 {vr(KVACC,2)}, v{ad}, s[{SRD_KV}:{SRD_KV+3}], s{S_T0} offen sc1")
        return o

    def q_reads(qs, s, fset):
        st_, so = slot_set((qs+4) % NSLOT)
        o = []
        xa = VXA + 2*st_ + s
        wa = VWA + 4*st_
        for cc in range(4):
            o.append(f"ds_read_b64_tr_b16 {vr(FA[fset]+4*cc,2)}, v{wa+cc} offset:{so + (32*s)*256}")
            o.append(f"ds_read_b64_tr_b16 {vr(FA[fset]+4*cc+2,2)}, v{wa+cc} offset:{so + (32*s+4)*256}")
            o.append(f"ds_read_b128 {vr(FB[fset]+4*cc,4)}, v{xa} offset:{so + cc*2048}")
        return o
    PER = int(cfg.get('per', 2)); LEAD = int(cfg.get('lead', 2))
    PUB = int(cfg.get('pub', 7))
    a("s_nop 7")
    a(kv_epilogue())
    for qs in range(16):
        gs = qs+4
        if gs == PUB: a("s_waitcnt vmcnt(0) lgkmcnt(0)")
        else: a("s_waitcnt lgkmcnt(0)")
        a("s_barrier")
        if gs == PUB:
            a(f"s_cmp_lg_u32 s{S_W}, 0")
            a(f"s_cbranch_scc1 L_nopub")
            a(f"v_mov_b32 v{T}, 0")
            a(f"v_mov_b32 v{T+1}, 1")
            a(f"s_mov_b64 s[{S_SAVE}:{S_SAVE+1}], exec")
            a(f"s_mov_b64 exec, 1")
            a(f"global_atomic_add v{T}, v{T+1}, s[{S_CNT}:{S_CNT+1}] sc1")
            a(f"s_mov_b64 exec, s[{S_SAVE}:{S_SAVE+1}]")
            a.label("L_nopub")
        r0 = q_reads(qs, 0, 0); r1 = q_reads(qs, 1, 1)
        m1_ = gemm_mfmas(ACC,FA,FB,1); m0_ = gemm_mfmas(ACC,FA,FB,0)
        if cfg.get('q_noreads'): r0 = []; r1 = []
        if cfg.get('q_nomfma'): m0_ = []; m1_ = []
        if qs == 0: a(r0)
        else: a(interleave(m1_, r0, lead=LEAD, per=PER))
        a("s_waitcnt lgkmcnt(0)")
        a(interleave(m0_, r1, lead=0, per=PER))
    a("s_waitcnt lgkmcnt(0)")
    a(gemm_mfmas(ACC,FA,FB,1))
    a("s_barrier")
    stamp(a, cfg, 3)

    ONES=4; IDX=8; VA=10; VB=11; VDMA=12; XT=13
    Q=96; O=32; L=128; S=[144,160]; P=[176,184]; K=[192,200]; V=[208,216]
    a(f"v_lshlrev_b32 v{VDMA}, 4, v0")
    a(f"v_mov_b32 v{VA}, v{VDMA}")
    a(f"v_add_u32 v{VB}, 0x8000, v{VDMA}")
    a(f"ds_read_b128 {vr(K[0],4)}, v{VA} offset:0")
    a(f"ds_read_b128 {vr(K[0]+4,4)}, v{VA} offset:1024")
    a(f"ds_read_b128 {vr(V[0],4)}, v{VA} offset:2048")
    a(f"ds_read_b128 {vr(V[0]+4,4)}, v{VA} offset:3072")
    a(f"ds_read_b128 {vr(K[1],4)}, v{VA} offset:4096")
    a(f"ds_read_b128 {vr(K[1]+4,4)}, v{VA} offset:{4096+1024}")
    a("s_nop 4")
    for hh in range(2):
        for rb in range(2):
            t = hh*2+rb
            for m in range(2):
                cc = 2*hh+m
                x = ACC + (cc*4+2*rb)*4; y = ACC + (cc*4+2*rb+1)*4
                q = Q + t*8 + m*4
                a(f"v_cvt_pk_bf16_f32 v{q}, v{x}, v{x+1}")
                a(f"v_cvt_pk_bf16_f32 v{q+1}, v{x+2}, v{x+3}")
                a(f"v_cvt_pk_bf16_f32 v{q+2}, v{y}, v{y+1}")
                a(f"v_cvt_pk_bf16_f32 v{q+3}, v{y+2}, v{y+3}")
    a("s_nop 1")
    for t in range(4):
        for m in range(2):
            q = Q + t*8 + m*4
            a(f"v_permlane16_swap_b32 v{q}, v{q+2}")
            a(f"v_permlane16_swap_b32 v{q+1}, v{q+3}")
    a("s_waitcnt lgkmcnt(0)")
    a(f"v_mfma_f32_32x32x16_bf16 {vr(S[0],16)}, {vr(K[0],4)}, {vr(Q,4)}, 0")
    a(f"v_mfma_f32_32x32x16_bf16 {vr(S[0],16)}, {vr(K[0]+4,4)}, {vr(Q+4,4)}, {vr(S[0],16)}")
    for i in range(64): a(f"v_mov_b32 v{O+i}, 0")
    for i in range(16): a(f"v_mov_b32 v{L+i}, 0")
    for i in range(8): a(f"v_mov_b32 v{P[1]+i}, 0")
    for i in range(8): a(f"v_mov_b32 v{V[1]+i}, 0")
    a(f"v_and_b32 v{XT}, 15, v0")
    a(f"v_mov_b32 v{XT+1}, 0x3f803f80")
    a(f"v_cmp_gt_u32 vcc, 2, v{XT}")
    a("s_nop 1")
    a(f"v_cndmask_b32 v{ONES}, 0, v{XT+1}, vcc")
    a(f"v_cndmask_b32 v{ONES+1}, 0, v{XT+1}, vcc")
    a(f"v_lshrrev_b32 v{XT+2}, 1, v{XT}")
    a(f"v_cmp_eq_u32 vcc, 1, v{XT+2}")
    a("s_nop 1")
    a(f"v_cndmask_b32 v{ONES+2}, 0, v{XT+1}, vcc")
    a(f"v_cndmask_b32 v{ONES+3}, 0, v{XT+1}, vcc")
    a(f"v_and_b32 v{XT+2}, 1, v{XT}")
    a(f"v_cmp_eq_u32 vcc, 1, v{XT+2}")
    a(f"v_mov_b32 v{XT+1}, 0x4444")
    a(f"v_mov_b32 v{XT+2}, 0xeeee")
    a(f"v_cndmask_b32 v{IDX}, v{XT+1}, v{XT+2}, vcc")
    stamp(a, cfg, 4)
    NSTEP = int(cfg.get('nstep', 8))
    a(f"s_mov_b32 s{S_LOOP}, {64//NSTEP}")
    a("s_nop 1")
    a(".p2align 6")
    a.label("L_attn")
    patt = cfg.get('patt', "A e e e c B e e c e C e c e e D c e R e c e e c e e c e S c").split()
    assert patt.count('e') == 16 and patt.count('c') == 8
    NQ = 4
    for step in range(NSTEP):
        for t in range(NQ):
            u = step*NQ + t
            un = u+1; stepn = un//NQ; tn = un % NQ
            up = u-1; stepp = up//NQ; tp = up % NQ
            sc = S[u%2]; sn = S[(u+1)%2]; Pp = P[(u-1)%2]; Pc = P[u%2]
            M = {
              'A': f"v_mfma_f32_32x32x16_bf16 {vr(sn,16)}, {vr(K[stepn%2],4)}, {vr(Q+tn*8,4)}, 0",
              'B': f"v_mfma_f32_32x32x16_bf16 {vr(sn,16)}, {vr(K[stepn%2]+4,4)}, {vr(Q+tn*8+4,4)}, {vr(sn,16)}",
              'C': f"v_mfma_f32_32x32x16_bf16 {vr(O+tp*16,16)}, {vr(V[stepp%2],4)}, {vr(Pp,4)}, {vr(O+tp*16,16)}",
              'D': f"v_mfma_f32_32x32x16_bf16 {vr(O+tp*16,16)}, {vr(V[stepp%2]+4,4)}, {vr(Pp+4,4)}, {vr(O+tp*16,16)}",
              'S': f"v_smfmac_f32_16x16x64_bf16 {vr(L+tp*4,4)}, {vr(ONES,4)}, {vr(Pp,8)}, v{IDX}",
            }
            ei = ci = 0
            for tok in patt:
                if tok == 'e': a(f"v_exp_f32 v{sc+ei}, v{sc+ei}"); ei += 1
                elif tok == 'c': a(f"v_cvt_pk_bf16_f32 v{Pc+ci}, v{sc+2*ci}, v{sc+2*ci+1}"); ci += 1
                elif tok == 'x': a("s_nop 0")
                elif tok == 'R':
                    if t == NQ-1:
                        if step % 4 == 2 and not cfg.get('a_nobar'): a("s_barrier")
                        def addr(st):
                            if NSTEP == 16: return (VA, (st % 16)*4096)
                            return (VA, st*4096) if st < 8 else (VB, (st-8)*4096)
                        rv, ov = addr(step+1); rk, ok = addr(step+2)
                        a(f"ds_read_b128 {vr(V[(step+1)%2],4)}, v{rv} offset:{ov+2048}")
                        a(f"ds_read_b128 {vr(V[(step+1)%2]+4,4)}, v{rv} offset:{ov+3072}")
                        a(f"ds_read_b128 {vr(K[step%2],4)}, v{rk} offset:{ok}")
                        a(f"ds_read_b128 {vr(K[step%2]+4,4)}, v{rk} offset:{ok+1024}")
                else:
                    if tok == 'A' and tn == 0: a("s_waitcnt lgkmcnt(0)")
                    if tok == 'C' and tp == 0: a("s_waitcnt lgkmcnt(2)")
                    a(M[tok])
    if NSTEP == 8:
        a(f"v_xor_b32 v{VA}, 0x8000, v{VA}")
        a(f"v_xor_b32 v{VB}, 0x8000, v{VB}")
    a(f"s_sub_u32 s{S_LOOP}, s{S_LOOP}, 1")
    a(f"s_cmp_lg_u32 s{S_LOOP}, 0")
    a(f"s_cbranch_scc1 L_attn")
    a("s_nop 1")
    a(f"v_mfma_f32_32x32x16_bf16 {vr(O+48,16)}, {vr(V[1],4)}, {vr(P[1],4)}, {vr(O+48,16)}")
    a(f"v_mfma_f32_32x32x16_bf16 {vr(O+48,16)}, {vr(V[1]+4,4)}, {vr(P[1]+4,4)}, {vr(O+48,16)}")
    a(f"v_smfmac_f32_16x16x64_bf16 {vr(L+12,4)}, {vr(ONES,4)}, {vr(P[1],8)}, v{IDX}")
    a("s_nop 15")
    a("s_waitcnt lgkmcnt(0)")
    stamp(a, cfg, 5)
    LS = 144
    def lsum():
        for t in range(4):
            a(f"v_add_f32 v{XT+2*t}, v{L+4*t}, v{L+4*t+1}")
            a(f"v_add_f32 v{XT+2*t+1}, v{L+4*t+2}, v{L+4*t+3}")
        a("s_nop 1")
        for t in range(4): a(f"v_permlane16_swap_b32 v{XT+2*t}, v{XT+2*t+1}")
        a("s_nop 1")
        for t in range(4): a(f"v_mov_b32 v{LS+t}, v{XT+2*t}")
        a("s_nop 1")
        for t in range(4): a(f"v_permlane32_swap_b32 v{LS+t}, v{XT+2*t}")
        a("s_nop 1")
    lsum()
    a(f"s_mov_b32 s{S_T0}, 0x71800000")
    a(f"s_mov_b32 s{S_T1}, 0x7f800000")
    a(f"s_mov_b64 s[{S_MASK}:{S_MASK+1}], exec")
    for t in range(4):
        a(f"v_cmp_le_f32 vcc, 1.0, v{LS+t}")
        a(f"v_cmp_ge_f32 s[{S_MASK2}:{S_MASK2+1}], s{S_T0}, v{LS+t}")
        a(f"v_add_f32 v{XT}, |v{O+16*t}|, |v{O+16*t+1}|")
        for i in range(2,16): a(f"v_add_f32 v{XT}, v{XT}, |v{O+16*t+i}|")
        a(f"s_and_b64 s[{S_MASK}:{S_MASK+1}], s[{S_MASK}:{S_MASK+1}], vcc")
        a(f"s_and_b64 s[{S_MASK}:{S_MASK+1}], s[{S_MASK}:{S_MASK+1}], s[{S_MASK2}:{S_MASK2+1}]")
        a(f"v_cmp_gt_f32 vcc, s{S_T1}, v{XT}")
        a("s_nop 4")
        a(f"s_and_b64 s[{S_MASK}:{S_MASK+1}], s[{S_MASK}:{S_MASK+1}], vcc")
    a(f"s_cmp_eq_u64 s[{S_MASK}:{S_MASK+1}], exec")
    if cfg.get('force_fallback'):
        a("s_cmp_eq_u32 s2, 0x7fffffff")
    a(f"s_cbranch_scc1 L_norm")
    NEG = 144; SS = 160; MX = XT; KF = K[0]; VF = V[0]; PP = P[0]
    for t in range(4):
        a(f"v_mov_b32 v{MX}, 0xff800000")
        a(f"s_mov_b32 s{S_T2}, 0")
        a.label(f"L_fb1_{t}")
        a(f"buffer_load_dwordx4 {vr(KF,4)}, v{VDMA}, s[{SRD_KV}:{SRD_KV+3}], s{S_T2} offen sc1")
        a(f"buffer_load_dwordx4 {vr(KF+4,4)}, v{VDMA}, s[{SRD_KV}:{SRD_KV+3}], s{S_T2} offen offset:1024 sc1")
        a("s_waitcnt vmcnt(0)")
        a(f"v_mfma_f32_32x32x16_bf16 {vr(SS,16)}, {vr(KF,4)}, {vr(Q+t*8,4)}, 0")
        a(f"v_mfma_f32_32x32x16_bf16 {vr(SS,16)}, {vr(KF+4,4)}, {vr(Q+t*8+4,4)}, {vr(SS,16)}")
        a("s_nop 15")
        for i in range(8): a(f"v_max3_f32 v{MX}, v{SS+2*i}, v{SS+2*i+1}, v{MX}")
        a(f"s_add_u32 s{S_T2}, s{S_T2}, 4096")
        a(f"s_cmp_lt_u32 s{S_T2}, 262144")
        a(f"s_cbranch_scc1 L_fb1_{t}")
        a(f"v_mov_b32 v{MX+1}, v{MX}")
        a("s_nop 1")
        a(f"v_permlane32_swap_b32 v{MX}, v{MX+1}")
        a("s_nop 1")
        a(f"v_max_f32 v{MX}, v{MX}, v{MX+1}")
        for i in range(16): a(f"v_sub_f32 v{NEG+i}, 0, v{MX}")
        for i in range(16): a(f"v_mov_b32 v{O+16*t+i}, 0")
        for i in range(4): a(f"v_mov_b32 v{L+4*t+i}, 0")
        a(f"s_mov_b32 s{S_T2}, 0")
        a.label(f"L_fb2_{t}")
        a(f"buffer_load_dwordx4 {vr(KF,4)}, v{VDMA}, s[{SRD_KV}:{SRD_KV+3}], s{S_T2} offen sc1")
        a(f"buffer_load_dwordx4 {vr(KF+4,4)}, v{VDMA}, s[{SRD_KV}:{SRD_KV+3}], s{S_T2} offen offset:1024 sc1")
        a(f"buffer_load_dwordx4 {vr(VF,4)}, v{VDMA}, s[{SRD_KV}:{SRD_KV+3}], s{S_T2} offen offset:2048 sc1")
        a(f"buffer_load_dwordx4 {vr(VF+4,4)}, v{VDMA}, s[{SRD_KV}:{SRD_KV+3}], s{S_T2} offen offset:3072 sc1")
        a("s_waitcnt vmcnt(0)")
        a(f"v_mfma_f32_32x32x16_bf16 {vr(SS,16)}, {vr(KF,4)}, {vr(Q+t*8,4)}, {vr(NEG,16)}")
        a(f"v_mfma_f32_32x32x16_bf16 {vr(SS,16)}, {vr(KF+4,4)}, {vr(Q+t*8+4,4)}, {vr(SS,16)}")
        a("s_nop 15")
        for i in range(16): a(f"v_exp_f32 v{SS+i}, v{SS+i}")
        a("s_nop 1")
        for i in range(8): a(f"v_cvt_pk_bf16_f32 v{PP+i}, v{SS+2*i}, v{SS+2*i+1}")
        a("s_nop 2")
        a(f"v_mfma_f32_32x32x16_bf16 {vr(O+16*t,16)}, {vr(VF,4)}, {vr(PP,4)}, {vr(O+16*t,16)}")
        a(f"v_mfma_f32_32x32x16_bf16 {vr(O+16*t,16)}, {vr(VF+4,4)}, {vr(PP+4,4)}, {vr(O+16*t,16)}")
        a(f"v_smfmac_f32_16x16x64_bf16 {vr(L+4*t,4)}, {vr(ONES,4)}, {vr(PP,8)}, v{IDX}")
        a("s_nop 15")
        a(f"s_add_u32 s{S_T2}, s{S_T2}, 4096")
        a(f"s_cmp_lt_u32 s{S_T2}, 262144")
        a(f"s_cbranch_scc1 L_fb2_{t}")
    a("s_nop 7")
    lsum()
    a.label("L_norm")
    a(f"v_and_b32 v{XT}, 15, v0")
    a(f"v_lshlrev_b32 v{XT}, 4, v{XT}")
    a(f"v_bfe_u32 v{XT+1}, v0, 4, 1")
    a(f"v_lshlrev_b32 v{XT+1}, 15, v{XT+1}")
    a(f"v_lshrrev_b32 v{XT+2}, 5, v0")
    a(f"v_lshlrev_b32 v{XT+2}, 8, v{XT+2}")
    a(f"v_add3_u32 v{XT}, v{XT}, v{XT+1}, v{XT+2}")
    a(f"s_lshl_b32 s{S_T0}, s{S_R}, 3")
    a(f"s_lshl_b32 s{S_T1}, s{S_WM}, 2")
    a(f"s_add_u32 s{S_T0}, s{S_T0}, s{S_T1}")
    a(f"s_lshl_b32 s{S_T0}, s{S_T0}, 5")
    a(f"s_lshl_b32 s{S_T1}, s{S_G}, 2")
    a(f"s_add_u32 s{S_T0}, s{S_T0}, s{S_T1}")
    a(f"s_lshl_b32 s{S_T1}, s{S_WN}, 1")
    a(f"s_add_u32 s{S_T0}, s{S_T0}, s{S_T1}")
    a(f"s_lshl_b32 s{S_OST}, s{S_T0}, 10")
    for t in range(4): a(f"v_rcp_f32 v{LS+t}, v{LS+t}")
    a(f"v_and_b32 v{XT+1}, 15, v0")
    a(f"v_lshlrev_b32 v{XT+1}, 4, v{XT+1}")
    a(f"v_bfe_u32 v{XT+2}, v0, 4, 1")
    a(f"v_lshlrev_b32 v{XT+2}, 11, v{XT+2}")
    a(f"v_lshrrev_b32 v{XT+3}, 5, v0")
    a(f"v_lshlrev_b32 v{XT+3}, 8, v{XT+3}")
    a(f"v_add3_u32 v{XT+1}, v{XT+1}, v{XT+2}, v{XT+3}")
    a(f"s_lshl_b32 s{S_T0}, s{S_WN}, 14")
    a(f"s_lshl_b32 s{S_T1}, s{S_WM}, 13")
    a(f"s_add_u32 s{S_T0}, s{S_T0}, s{S_T1}")
    a(f"s_add_u32 s{S_T0}, s{S_T0}, 0x20000")
    a(f"v_add_u32 v{XT+1}, s{S_T0}, v{XT+1}")
    for t in range(4):
        hh, rb = t>>1, t&1
        for i in range(16): a(f"v_mul_f32 v{O+16*t+i}, v{O+16*t+i}, v{LS+t}")
        R = 160 + 8*t
        for i in range(8): a(f"v_cvt_pk_bf16_f32 v{R+i}, v{O+16*t+2*i}, v{O+16*t+2*i+1}")
        a(f"s_add_u32 s{S_T0}, s{S_OST}, {(2*rb*32 + hh)*1024}")
        a(f"buffer_store_dwordx4 {vr(R,4)}, v{XT}, s[{SRD_O}:{SRD_O+3}], s{S_T0} offen sc1")
        a(f"buffer_store_dwordx4 {vr(R+4,4)}, v{XT}, s[{SRD_O}:{SRD_O+3}], s{S_T0} offen offset:512 sc1")
        a(f"ds_write_b128 v{XT+1}, {vr(R,4)} offset:{rb*4096 + hh*1024}")
        a(f"ds_write_b128 v{XT+1}, {vr(R+4,4)} offset:{rb*4096 + hh*1024 + 512}")
    if not cfg.get('o_st6'): stamp(a, cfg, 6)
    OXA=2; OWA=8
    L4=T+1; X1=T+2; X2=T+3; X3=T+4
    a(f"v_lshrrev_b32 v{L4}, 4, v0")
    a(f"s_lshl_b32 s{S_T0}, s{S_WM}, 13")
    a(f"v_lshlrev_b32 v{X1}, 4, v0")
    a(f"v_add_u32 v{OXA}, s{S_T0}, v{X1}")
    a(f"v_add_u32 v{OXA+1}, 0x20000, v{OXA}")
    a(f"v_and_b32 v{X1}, 15, v0")
    a(f"v_lshrrev_b32 v{X2}, 2, v{X1}")
    a(f"v_and_b32 v{X3}, 1, v{L4}")
    a(f"v_lshlrev_b32 v{X3}, 2, v{X3}")
    a(f"v_add_u32 v{X3}, v{X3}, v{X2}")
    a(f"v_lshrrev_b32 v{T}, 1, v{L4}")
    a(f"v_lshlrev_b32 v{T}, 4, v{T}")
    a(f"v_add_u32 v{T}, v{T}, v{X3}")
    a(f"v_lshlrev_b32 v{T}, 8, v{T}")
    a(f"v_and_b32 v{X1}, 3, v{X1}")
    a(f"v_lshlrev_b32 v{X1}, 3, v{X1}")
    a(f"v_add_u32 v{T}, v{T}, v{X1}")
    a(f"v_add_u32 v{T}, 0x10000, v{T}")
    a(f"s_lshl_b32 s{S_T0}, s{S_WN}, 2")
    for cc in range(4):
        a(f"s_add_u32 s{S_T1}, s{S_T0}, {cc}")
        a(f"v_xor_b32 v{X2}, s{S_T1}, v{X3}")
        a(f"v_lshlrev_b32 v{X2}, 5, v{X2}")
        a(f"v_add_u32 v{OWA+cc}, v{X2}, v{T}")
    for i in range(64): a(f"v_mov_b32 v{ACC+i}, 0")
    def o_reads(st, s, fset):
        wo_ = (st % 4)*16384
        osl = st % 6
        xa, oo = (OXA+1, osl*16384) if osl < 2 else (OXA, (osl-2)*16384)
        o = []
        for cc in range(4):
            o.append(f"ds_read_b64_tr_b16 {vr(FA[fset]+4*cc,2)}, v{OWA+cc} offset:{wo_ + (32*s)*256}")
            o.append(f"ds_read_b64_tr_b16 {vr(FA[fset]+4*cc+2,2)}, v{OWA+cc} offset:{wo_ + (32*s+8)*256}")
            o.append(f"ds_read_b128 {vr(FB[fset]+4*cc,4)}, v{xa} offset:{oo + cc*2048 + s*1024}")
        return o
    for st in range(16):
        if st == 1: a("s_waitcnt vmcnt(0) lgkmcnt(0)")
        else: a("s_waitcnt lgkmcnt(0)")
        a("s_barrier")
        if st == 2: stamp(a, cfg, 7)
        r0 = o_reads(st, 0, 0); r1 = o_reads(st, 1, 1)
        m1_ = gemm_mfmas(ACC,FA,FB,1); m0_ = gemm_mfmas(ACC,FA,FB,0)
        if cfg.get('o_noreads'): r0 = []; r1 = []
        if cfg.get('o_nomfma'): m0_ = []; m1_ = []
        if st == 0: a(r0)
        else: a(interleave(m1_, r0, lead=LEAD, per=PER))
        a("s_waitcnt lgkmcnt(0)")
        a(interleave(m0_, r1, lead=0, per=PER))
        if st == 15: stamp(a, cfg, 6) if cfg.get('o_st6') else None
    a("s_waitcnt lgkmcnt(0)")
    a(gemm_mfmas(ACC,FA,FB,1))
    a(f"v_and_b32 v{X1}, 15, v0")
    a(f"v_lshlrev_b32 v{X1}, 12, v{X1}")
    a(f"v_and_b32 v{X2}, 1, v{L4}")
    a(f"v_lshlrev_b32 v{X2}, 5, v{X2}")
    a(f"v_lshrrev_b32 v{X3}, 1, v{L4}")
    a(f"v_lshlrev_b32 v{X3}, 4, v{X3}")
    a(f"v_add3_u32 v{X1}, v{X1}, v{X2}, v{X3}")
    a(f"s_lshl_b32 s{S_T0}, s{S_R}, 19")
    a(f"s_lshl_b32 s{S_T1}, s{S_WM}, 18")
    a(f"s_add_u32 s{S_T0}, s{S_T0}, s{S_T1}")
    a(f"s_lshl_b32 s{S_T1}, s{S_B}, 11")
    a(f"s_add_u32 s{S_T0}, s{S_T0}, s{S_T1}")
    a(f"s_lshl_b32 s{S_T1}, s{S_G}, 8")
    a(f"s_add_u32 s{S_T0}, s{S_T0}, s{S_T1}")
    a(f"s_lshl_b32 s{S_T1}, s{S_WN}, 7")
    a(f"s_add_u32 s{S_OST}, s{S_T0}, s{S_T1}")
    a("s_nop 7")
    R = 96
    k = 0
    for rt in range(4):
        for cp in range(2):
            x = ACC + ((2*cp)*4+rt)*4; y = ACC + ((2*cp+1)*4+rt)*4
            q = R + 4*k; k += 1
            a(f"v_cvt_pk_bf16_f32 v{q}, v{x}, v{x+1}")
            a(f"v_cvt_pk_bf16_f32 v{q+1}, v{x+2}, v{x+3}")
            a(f"v_cvt_pk_bf16_f32 v{q+2}, v{y}, v{y+1}")
            a(f"v_cvt_pk_bf16_f32 v{q+3}, v{y+2}, v{y+3}")
    a("s_nop 1")
    k = 0
    OUTF = cfg.get('outflags', 'sc0 sc1')
    for rt in range(4):
        a(f"s_add_u32 s{S_T0}, s{S_OST}, {rt*16*4096}")
        for cp in range(2):
            q = R + 4*k; k += 1
            a(f"v_permlane16_swap_b32 v{q}, v{q+2}")
            a(f"v_permlane16_swap_b32 v{q+1}, v{q+3}")
            a("s_nop 1")
            a(f"buffer_store_dwordx4 {vr(q,4)}, v{X1}, s[{SRD_OUT}:{SRD_OUT+3}], s{S_T0} offen offset:{cp*64} {OUTF}")
    if cfg.get('stamps'):
        a("s_waitcnt vmcnt(0)")
        stamp(a, cfg, 8)
        stamp_store(a, cfg, 9, 0, "L_k1_ss")
        if cfg.get('dbgout'):
            WGSEL = int(cfg.get('dbgwg', 0))
            a(f"s_cmp_lg_u32 s{S_WG}, {WGSEL}")
            a("s_cbranch_scc1 L_dd")
            a(f"s_cmp_lg_u32 s{S_W}, 0")
            a("s_cbranch_scc1 L_dd")
            a("v_mov_b32 v6, 0")
            a("s_mov_b64 exec, 1")
            for i in range(1, 9):
                a(f"s_sub_u32 s{S_T0}, s{ST0+2*i}, s{ST0}")
                a(f"v_mov_b32 v5, s{S_T0}")
                a(f"global_store_dword v6, v5, s[{PTR+22}:{PTR+23}] offset:{4*i}")
            if cfg.get('spin'):
                a(f"s_add_u32 s40, s{ST0}, {int(cfg['spin'])}")
                a.label("L_dspin")
                a("s_memrealtime s[42:43]")
                a("s_waitcnt lgkmcnt(0)")
                a("s_sub_u32 s44, s42, s40")
                a("s_cmp_lt_i32 s44, 0")
                a("s_cbranch_scc1 L_dspin")
            a.label("L_dd")
    a("s_endpgm")

    a.label("L_loader")
    VOX=2; VOW=6; VOWKV=10; VL=11; POLL=12; VOWO=13; VOB=17; WREG=40
    SRD_WO=12; S_FLAG=74
    gen_vox(a, VOX, T)
    gen_vow(a, VOW, T, lambda j: (j>>1)&1)
    gen_vow(a, VOWO, T, lambda j: j&1)
    X1=T+2; X2=T+3
    a(f"v_lshrrev_b32 v{X1}, 5, v0")
    a(f"v_lshlrev_b32 v{X1}, 1, v{X1}")
    a(f"v_and_b32 v{X2}, 3, v0")
    a(f"v_xor_b32 v{X1}, v{X1}, v{X2}")
    a(f"v_lshlrev_b32 v{X1}, 4, v{X1}")
    a(f"v_lshrrev_b32 v{X2}, 2, v0")
    a(f"v_lshlrev_b32 v{X2}, 6, v{X2}")
    a(f"v_add_u32 v{VOWKV}, v{X1}, v{X2}")
    a(f"v_lshlrev_b32 v{VL}, 4, v0")
    a(f"v_lshlrev_b32 v{VOB}, 4, v0")
    a(f"v_add_u32 v{VOB+1}, {32768-2048}, v{VOB}")
    a(f"s_lshl_b32 s{S_T0}, s{S_R}, 18")
    a(f"s_lshl_b32 s{S_T1}, s{S_W}, 16")
    a(f"s_add_u32 s{S_XQ}, s{S_T0}, s{S_T1}")
    a(f"s_lshl_b32 s{S_T1}, s{S_W}, 15")
    a(f"s_lshl_b32 s{S_T2}, s{S_G}, 8")
    a(f"s_add_u32 s{S_WQ}, s{S_T1}, s{S_T2}")
    a(f"s_lshr_b32 s{S_T1}, s{S_G}, 1")
    a(f"s_lshl_b32 s{S_T1}, s{S_T1}, 16")
    a(f"s_add_u32 s{S_XKV}, s{S_T0}, s{S_T1}")
    a(f"s_lshl_b32 s{S_T1}, s{S_W}, 7")
    a(f"s_add_u32 s{S_XKV}, s{S_XKV}, s{S_T1}")
    a("s_waitcnt lgkmcnt(0)")
    a(f"s_cmp_lg_u32 s{S_B}, 0")
    sel_ptr(a, SRD_X, 0, 10)
    sel_ptr(a, SRD_WQ, 2, 12)
    sel_ptr(a, S_T0, 4, 14)
    sel_ptr(a, S_T2, 6, 16)
    a(f"s_cmp_lg_u32 s{S_TYPE}, 0")
    a(f"s_cselect_b32 s{SRD_WKV}, s{S_T2}, s{S_T0}")
    a(f"s_cselect_b32 s{SRD_WKV+1}, s{S_T2+1}, s{S_T0+1}")
    srd_tail(a, SRD_X, 2048*2048)
    srd_tail(a, SRD_WKV, 1024*64)
    srd_tail(a, SRD_WQ, 1024*2048)
    vm = VM()
    MODE = cfg.get('hand', 'sc1')
    ACQ = MODE == 'acq'; LDF = 'sc1' if MODE == 'sc1' else ''
    def dma_stage(gs):
        o = []
        slot = gs % NSLOT
        if gs < 4:
            j = gs
            o.append(f"s_add_u32 m0, s{S_M0}, {slot*SLOT}")
            o.append(f"s_add_u32 s{S_OFFA}, s{S_XKV}, {j*512}")
            for i in range(4):
                o.append(f"buffer_load_dwordx4 v{VOX+i}, s[{SRD_X}:{SRD_X+3}], s{S_OFFA} offen offset:{i*1024} lds"); vm.issue(('st',gs))
            o.append(f"s_add_u32 m0, s{S_M0}, {slot*SLOT+16384}")
            o.append(f"s_add_u32 s{S_OFFB}, s{S_M0}, {j*16384}")
            for i in range(4):
                o.append(f"buffer_load_dwordx4 v{VOWKV}, s[{SRD_WKV}:{SRD_WKV+3}], s{S_OFFB} offen offset:{i*1024} lds"); vm.issue(('st',gs))
        else:
            qs = gs-4
            o.append(f"s_add_u32 s{S_T4}, s{S_QROT}, {qs}")
            o.append(f"s_and_b32 s{S_T4}, s{S_T4}, 15")
            o.append(f"s_lshl_b32 s{S_OFFA}, s{S_T4}, 7")
            o.append(f"s_add_u32 s{S_OFFA}, s{S_OFFA}, s{S_XQ}")
            o.append(f"s_add_u32 m0, s{S_M0}, {slot*SLOT}")
            o.append(f"s_lshl_b32 s{S_OFFB}, s{S_T4}, 17")
            for i in range(4):
                o.append(f"buffer_load_dwordx4 v{VOX+i}, s[{SRD_X}:{SRD_X+3}], s{S_OFFA} offen offset:{i*1024} lds"); vm.issue(('st',gs))
            o.append(f"s_add_u32 m0, s{S_M0}, {slot*SLOT+16384}")
            o.append(f"s_add_u32 s{S_OFFB}, s{S_OFFB}, s{S_WQ}")
            for j in range(4):
                o.append(f"buffer_load_dwordx4 v{VOW+j}, s[{SRD_WQ}:{SRD_WQ+3}], s{S_OFFB} offen offset:{j*1024} lds"); vm.issue(('st',gs))
        return o
    S_QROT = S_KVM0
    QR = cfg.get('qrot', 'g2')
    if QR == 'none': a(f"s_mov_b32 s{S_QROT}, 0")
    elif QR == 'g2': a(f"s_lshl_b32 s{S_QROT}, s{S_G}, 1")
    elif QR == 'g2r':
        a(f"s_lshl_b32 s{S_QROT}, s{S_G}, 1")
        a(f"s_and_b32 s{S_T4}, s{S_R}, 1")
        a(f"s_add_u32 s{S_QROT}, s{S_QROT}, s{S_T4}")
    elif QR == 'r4':
        a(f"s_and_b32 s{S_QROT}, s{S_R}, 3")
        a(f"s_lshl_b32 s{S_QROT}, s{S_QROT}, 2")
    elif QR == 'mix':
        a(f"s_and_b32 s{S_QROT}, s{S_R}, 3")
        a(f"s_lshl_b32 s{S_QROT}, s{S_QROT}, 2")
        a(f"s_add_u32 s{S_QROT}, s{S_QROT}, s{S_G}")
        a(f"s_add_u32 s{S_QROT}, s{S_QROT}, s{S_G}")
    for gs in range(5): a(dma_stage(gs))
    a(f"s_lshl_b32 s{S_T0}, s{S_B}, 18")
    a(f"s_add_u32 s{SRD_KV}, s{PTR+24}, s{S_T0}")
    a(f"s_addc_u32 s{SRD_KV+1}, s{PTR+25}, 0")
    srd_tail(a, SRD_KV, 262144)
    a(f"s_lshl_b32 s{S_T0}, s{S_B}, 22")
    a(f"s_add_u32 s{S_T0}, s{S_T0}, {WS_O}")
    a(f"s_add_u32 s{SRD_O}, s{PTR+24}, s{S_T0}")
    a(f"s_addc_u32 s{SRD_O+1}, s{PTR+25}, 0")
    srd_tail(a, SRD_O, 4*1024*1024)
    a(f"s_lshl_b32 s{S_T0}, s{S_B}, 7")
    a(f"s_add_u32 s{S_CNT}, s{PTR+22}, s{S_T0}")
    a(f"s_addc_u32 s{S_CNT+1}, s{PTR+23}, 0")
    a(f"s_lshl_b32 s{S_T0}, s{S_B}, 4")
    a(f"s_add_u32 s{S_T0}, s{S_T0}, s{S_R}")
    a(f"s_lshl_b32 s{S_T0}, s{S_T0}, 7")
    a(f"s_add_u32 s{S_T0}, s{S_T0}, {WS_F}")
    a(f"s_add_u32 s{S_FLAG}, s{PTR+24}, s{S_T0}")
    a(f"s_addc_u32 s{S_FLAG+1}, s{PTR+25}, 0")
    a(f"s_lshl_b32 s{S_T0}, s{S_G}, 2")
    a(f"v_mov_b32 v{T}, s{S_T0}")
    a(f"v_mov_b32 v{T+1}, 0")
    a(f"s_cmp_lg_u32 s{S_W}, 0")
    a(f"s_cbranch_scc1 L_nozero")
    a(f"s_mov_b64 exec, 1")
    a(f"global_store_dword v{T}, v{T+1}, s[{S_FLAG}:{S_FLAG+1}] sc1")
    a(f"s_mov_b64 exec, -1")
    a.label("L_nozero")
    zero_pos = len(vm.ops)
    def kv_dma(st):
        o = [f"s_add_u32 m0, s{S_M0}, {(st%4)*16384}", f"s_add_u32 s{S_OFFA}, s{S_M0}, {st*16384}"]
        for i in range(4):
            o.append(f"buffer_load_dwordx4 v{VL}, s[{SRD_KV}:{SRD_KV+3}], s{S_OFFA} offen offset:{i*1024} {LDF} lds"); vm.issue(('kv',st))
        return o
    POLLAT = int(cfg.get('pollat', 14))
    for gs in range(20):
        need = vm.wait_n(('st',gs))
        if gs == PUB: need = min(need, len(vm.ops) - zero_pos)
        if gs == 16: need = min(need, vm.wait_n('poll'))
        a(f"s_waitcnt vmcnt({need})")
        a("s_barrier")
        if gs == POLLAT:
            a(f"v_mov_b32 v{T}, 0")
            a(f"global_load_dword v{POLL}, v{T}, s[{S_CNT}:{S_CNT+1}] sc1"); vm.issue('poll')
        if gs >= 1 and gs+4 < 20:
            d = dma_stage(gs+4)
            if cfg.get('q_nodma') and gs >= 3: d = [x for x in d if 'buffer_load' not in x]
            if cfg.get('q_nox') and gs >= 3: d = [x for x in d if f"s[{SRD_X}:" not in x]
            if cfg.get('q_now') and gs >= 3: d = [x for x in d if f"s[{SRD_WQ}:" not in x]
            a(d)
        if gs == 16:
            a(f"v_readfirstlane_b32 s{S_T0}, v{POLL}")
            a("s_nop 3")
            a(f"s_cmp_ge_u32 s{S_T0}, 128")
            a(f"s_cbranch_scc1 L_kvready")
            a.label("L_spin")
            a("s_sleep 2")
            a(f"v_mov_b32 v{T}, 0")
            a(f"global_load_dword v{POLL}, v{T}, s[{S_CNT}:{S_CNT+1}] sc1")
            a("s_waitcnt vmcnt(0)")
            a(f"v_readfirstlane_b32 s{S_T0}, v{POLL}")
            a("s_nop 3")
            a(f"s_cmp_lt_u32 s{S_T0}, 128")
            a(f"s_cbranch_scc1 L_spin")
            a.label("L_kvready")
            if ACQ: a("buffer_inv sc1")
            a(kv_dma(0)); a(kv_dma(1))
        if gs == 17: a(kv_dma(2))
    a(f"s_waitcnt vmcnt({vm.wait_n(('kv',0))})")
    a("s_barrier")
    a(f"s_cmp_lg_u32 s{S_B}, 0")
    sel_ptr(a, SRD_WO, 8, 18)
    srd_tail(a, SRD_WO, 1024*2048)
    S_G2 = S_T5
    a(f"s_lshl_b32 s{S_G2}, s{S_G}, 1")
    def rot(dst, i, shift, base):
        return [f"s_add_u32 s{dst}, s{S_G2}, {i}", f"s_and_b32 s{dst}, s{dst}, 15", f"s_lshl_b32 s{dst}, s{dst}, {shift}", f"s_add_u32 s{dst}, s{dst}, s{base}"]
    def wo_dma(i):
        o = rot(S_OFFB, i, 17, S_WQ)
        o.append(f"s_add_u32 m0, s{S_M0}, {65536 + (i%4)*16384}")
        for j in range(4):
            o.append(f"buffer_load_dwordx4 v{VOWO+j}, s[{SRD_WO}:{SRD_WO+3}], s{S_OFFB} offen offset:{j*1024} lds"); vm.issue(('wo',i))
        return o
    VTCH = T+4
    a(f"v_lshrrev_b32 v{VTCH}, 1, v0")
    a(f"v_lshlrev_b32 v{VTCH}, 11, v{VTCH}")
    a(f"v_and_b32 v{VTCH+1}, 1, v0")
    a(f"v_lshlrev_b32 v{VTCH+1}, 7, v{VTCH+1}")
    a(f"v_add_u32 v{VTCH}, v{VTCH}, v{VTCH+1}")
    def wo_touch(i):
        o = rot(S_OFFB, i, 17, S_WQ)
        o.append(f"buffer_load_dword v{WREG+i}, v{VTCH}, s[{SRD_WO}:{SRD_WO+3}], s{S_OFFB} offen"); vm.issue(('wt',i))
        return o
    for s in range(1, 17):
        if s <= 15: a(f"s_waitcnt vmcnt({vm.wait_n(('kv',s))})")
        if not cfg.get('a_nobar'): a("s_barrier")
        if s+2 <= 15: a(kv_dma(s+2))
        if s-1 < 4: a(wo_dma(s-1))
        else: a(wo_touch(s-1))
    a(f"s_lshl_b32 s{S_T0}, s{S_R}, 3")
    a(f"s_lshl_b32 s{S_T1}, s{S_W}, 1")
    a(f"s_add_u32 s{S_T0}, s{S_T0}, s{S_T1}")
    a(f"s_lshl_b32 s{S_XQ}, s{S_T0}, 15")
    a(f"s_lshl_b32 s{S_T0}, s{S_G}, 2")
    a(f"v_mov_b32 v{T}, s{S_T0}")
    a(f"v_mov_b32 v{T+1}, 1")
    a(f"v_and_b32 v{T+3}, 7, v0")
    a(f"v_lshlrev_b32 v{T+3}, 2, v{T+3}")
    a("s_waitcnt vmcnt(0)")
    vm.ops = []
    OSL = [131072, 131072+16384, 0, 16384, 32768, 49152]
    def o_dma(i):
        o = [f"s_add_u32 m0, s{S_M0}, {OSL[i%6]}"] + rot(S_OFFA, i, 11, S_XQ)
        for k in range(4):
            o.append(f"buffer_load_dwordx4 v{VOB+(k>>1)}, s[{SRD_O}:{SRD_O+3}], s{S_OFFA} offen offset:{k*1024} {LDF} lds"); vm.issue(('o',i))
        return o
    a("s_barrier")
    stamp(a, cfg, 0)
    a("s_barrier")
    stamp(a, cfg, 1)
    a(f"s_cmp_lg_u32 s{S_W}, 0")
    a(f"s_cbranch_scc1 L_noflag")
    a(f"s_mov_b64 exec, 1")
    a(f"global_store_dword v{T}, v{T+1}, s[{S_FLAG}:{S_FLAG+1}] sc1")
    a(f"s_mov_b64 exec, -1")
    a.label("L_noflag")
    a(wo_dma(4))
    a.label("L_ospin")
    a(f"global_load_dword v{POLL}, v{T+3}, s[{S_FLAG}:{S_FLAG+1}] sc1")
    a("s_waitcnt vmcnt(0)")
    a(f"v_cmp_eq_u32 vcc, 1, v{POLL}")
    a("s_nop 4")
    a(f"s_cmp_eq_u64 vcc, exec")
    a(f"s_cbranch_scc1 L_oready")
    if not cfg.get('nosleep'): a("s_sleep 1")
    a("s_branch L_ospin")
    a.label("L_oready")
    stamp(a, cfg, 2)
    vm.ops = []
    if ACQ: a("buffer_inv sc1")
    for i in range(2, 7): a(o_dma(i))
    for st in range(2, 16):
        need = vm.wait_n(('o',st))
        if st >= 5: need = min(need, vm.wait_n(('wo',st)))
        a(f"s_waitcnt vmcnt({need})")
        if st == 2: stamp(a, cfg, 3)
        a("s_barrier")
        if st+3 < 16: a(wo_dma(st+3))
        if st+5 < 16:
            d = o_dma(st+5)
            if cfg.get('o_nodma'): d = [x for x in d if 'buffer_load' not in x]
            a(d)
    if cfg.get('stamps'):
        stamp_store(a, cfg, 4, 1, "L_ld_ss")
    a.label("L_end")
    a("s_endpgm")
    return a

def kd(name, nv, ns):
    return f""".amdhsa_kernel {name}
  .amdhsa_next_free_vgpr {nv}
  .amdhsa_next_free_sgpr {ns}
  .amdhsa_accum_offset {nv}
  .amdhsa_group_segment_fixed_size 0
  .amdhsa_kernarg_size 104
  .amdhsa_user_sgpr_count 2
  .amdhsa_user_sgpr_kernarg_segment_ptr 1
  .amdhsa_system_sgpr_workgroup_id_x 1
.end_amdhsa_kernel"""

def build(cfg):
    cfg = dict(cfg)
    cfg.setdefault('k1', NAME + '_kernel')
    hdr = open('cdna_kernels/' + NAME + '.s.ref').read().split('\n')
    head = [l for l in hdr if l.startswith(';') and '@launch' not in l and 'Override launch' not in l and 'grid=ceil' not in l]
    out = head[:15]
    out.append("; @launch grid=(256,1,1) block=(512,1,1) lds=163840")
    out.append('.amdgcn_target "amdgcn-amd-amdhsa--gfx950"')
    out.append('.text')
    out.append(gen_fused(cfg).text())
    out.append('.section .rodata,"a"')
    out.append('.p2align 6'); out.append(kd(cfg['k1'], 232, 102))
    return "\n".join(out) + "\n"

if __name__ == "__main__":
    cfg = {}
    outfn = 'cdna_kernels/' + NAME + '.s'
    for arg in sys.argv[1:]:
        if arg.startswith('-o'): outfn = arg[2:]
        elif '=' in arg:
            k, v = arg.split('=', 1); cfg[k] = v
        else: cfg[arg] = True
    open(outfn, 'w').write(build(cfg))
    print("wrote", outfn)
```

```python
import sys, math, struct
from gen import Asm, vr, sr, interleave, VM, NAME, f32hex, KSCALE, load_ptrs, sel_ptr, srd_tail, decode_ids, gen_vox, gen_vow, kd
import gen as G
from gen import (S_WG, SRD_X, SRD_WQ, SRD_WKV, SRD_KV, SRD_O, S_CNT, S_W, S_B, S_R, S_G, S_T0, S_T1, S_T2, S_T3, S_T4, S_T5, PTR,
                 S_XQ, S_WQ, S_XKV, S_WKV, S_M0, S_OFFA, S_OFFB, S_LOOP, S_KVOFF, S_KVM0, S_WM, S_WN, S_OST, S_SAVE, S_MASK, S_MASK2,
                 S_TYPE, S_W8, ST0, WS_O, stamp, stamp_store, lane_wave)
WS_F = 0xA00000

def gemm_mfmas(ACC, FA, FB, fset, czero=False, order='cc'):
    o = []
    idx = [(cc, rt) for cc in range(4) for rt in range(4)] if order == 'cc' else [(cc, rt) for rt in range(4) for cc in range(4)]
    for cc, rt in idx:
        acc = ACC + (cc*4+rt)*4
        o.append(f"v_mfma_f32_16x16x32_bf16 {vr(acc,4)}, {vr(FA[fset]+4*cc,4)}, {vr(FB[fset]+4*rt,4)}, {'0' if czero else vr(acc,4)}")
    return o

def gen_fused(cfg):
    a = Asm()
    kname = cfg['k1']
    a(f".globl {kname}\n.p2align 8\n.type {kname},@function")
    a.label(kname)
    a(f"s_cmp_ge_u32 s{S_WG}, 256")
    a(f"s_cbranch_scc1 L_end")
    stamp(a, cfg, 0)
    load_ptrs(a)
    decode_ids(a)
    T=26
    lane_wave(a, T)
    a(f"s_and_b32 s{S_WN}, s{S_W}, 1")
    a(f"s_lshr_b32 s{S_WM}, s{S_W}, 1")
    a(f"s_and_b32 s{S_TYPE}, s{S_G}, 1")
    a(f"s_lshl_b32 s{S_M0}, s{S_W}, 12")
    a(f"s_cmp_ge_u32 s{S_W8}, 4")
    a(f"s_cbranch_scc1 L_loader")
    NSLOT=5; SLOT=32768
    PER = int(cfg.get('per', 2)); LEAD = int(cfg.get('lead', 2)); PUB = int(cfg.get('pub', 7))
    def slot_set(slot): return slot // 2, (slot % 2) * SLOT
    VXA=2; VWA=8; VKXA=20; VKWA=22
    ACC=32; FA=[96,128]; FB=[112,144]; KVACC=160; KVX=164; KVW=196
    Q=96; O=160; S=[32,48]; P=[64,72]; K=[144,152]; V=[128,136]; L=224; XT=80; LS=88
    ONES=240; IDX=244; OXA=245; OWA=247; VST=251; VOL=252; VOUT=253; VDMA=254; VA=2; VB=3
    L3=T+1; L4=T+2; X1=T+3; X2=T+4; X3=T+5
    a(f"v_lshrrev_b32 v{L4}, 4, v0")
    a(f"v_and_b32 v{X1}, 15, v0")
    a(f"v_lshrrev_b32 v{X2}, 1, v{X1}")
    a(f"v_lshlrev_b32 v{X3}, 7, v{X1}")
    a(f"s_lshl_b32 s{S_T0}, s{S_WM}, 13")
    a(f"s_lshl_b32 s{S_T1}, s{S_WM}, 11")
    for s in range(2):
        a(f"v_add_u32 v{L3}, {4*s}, v{L4}")
        a(f"v_xor_b32 v{L3}, v{L3}, v{X2}")
        a(f"v_lshlrev_b32 v{L3}, 4, v{L3}")
        a(f"v_add_u32 v{L3}, v{L3}, v{X3}")
        a(f"v_add_u32 v{VXA+s}, s{S_T0}, v{L3}")
        a(f"v_add_u32 v{VXA+2+s}, 0x10000, v{VXA+s}")
        a(f"v_add_u32 v{VXA+4+s}, 0x20000, v{VXA+s}")
        a(f"v_add_u32 v{VKXA+s}, s{S_T1}, v{L3}")
    a(f"v_lshrrev_b32 v{X2}, 2, v{X1}")
    a(f"v_and_b32 v{L3}, 1, v{L4}")
    a(f"v_lshlrev_b32 v{X3}, 2, v{L3}")
    a(f"v_or_b32 v{X3}, v{X3}, v{X2}")
    a(f"v_lshlrev_b32 v{T}, 3, v{L4}")
    a(f"v_add_u32 v{T}, v{T}, v{X2}")
    a(f"v_and_b32 v{X1}, 3, v{X1}")
    a(f"v_lshlrev_b32 v{X1}, 3, v{X1}")
    a(f"s_lshl_b32 s{S_T0}, s{S_WN}, 2")
    a(f"v_xor_b32 v{L3}, s{S_WN}, v{L3}")
    a(f"v_lshlrev_b32 v{L3}, 5, v{L3}")
    a(f"v_lshlrev_b32 v{X2}, 6, v{T}")
    a(f"v_add3_u32 v{VKWA}, v{L3}, v{X2}, v{X1}")
    a(f"v_add_u32 v{VKWA}, 16384, v{VKWA}")
    a(f"v_lshlrev_b32 v{T}, 8, v{T}")
    a(f"v_add_u32 v{T}, v{T}, v{X1}")
    a(f"v_add_u32 v{T}, 16384, v{T}")
    for cc in range(4):
        a(f"s_add_u32 s{S_T1}, s{S_T0}, {cc}")
        a(f"v_xor_b32 v{X2}, s{S_T1}, v{X3}")
        a(f"v_lshlrev_b32 v{X2}, 5, v{X2}")
        a(f"v_add_u32 v{VWA+cc}, v{X2}, v{T}")
        a(f"v_add_u32 v{VWA+4+cc}, 0x10000, v{VWA+cc}")
        a(f"v_add_u32 v{VWA+8+cc}, 0x20000, v{VWA+cc}")
    for i in range(4): a(f"v_mov_b32 v{KVACC+i}, 0")
    for i in range(64): a(f"v_mov_b32 v{ACC+i}, 0")
    a(f"v_lshlrev_b32 v{VDMA}, 4, v0")
    a(f"v_and_b32 v{X1}, 15, v0")
    a(f"v_mov_b32 v{X2}, 0x3f803f80")
    a(f"v_cmp_gt_u32 vcc, 2, v{X1}")
    a(f"v_lshrrev_b32 v{X3}, 1, v{X1}")
    a("s_nop 0")
    a(f"v_cndmask_b32 v{ONES}, 0, v{X2}, vcc")
    a(f"v_cndmask_b32 v{ONES+1}, 0, v{X2}, vcc")
    a(f"v_cmp_eq_u32 vcc, 1, v{X3}")
    a(f"v_and_b32 v{X3}, 1, v{X1}")
    a("s_nop 0")
    a(f"v_cndmask_b32 v{ONES+2}, 0, v{X2}, vcc")
    a(f"v_cndmask_b32 v{ONES+3}, 0, v{X2}, vcc")
    a(f"v_cmp_eq_u32 vcc, 1, v{X3}")
    a(f"v_mov_b32 v{X2}, 0x4444")
    a(f"v_mov_b32 v{X3}, 0xeeee")
    a(f"v_cndmask_b32 v{IDX}, v{X2}, v{X3}, vcc")
    a(f"v_lshlrev_b32 v{X1}, 4, v{X1}")
    a(f"v_lshrrev_b32 v{X2}, 5, v0")
    a(f"v_lshlrev_b32 v{X2}, 8, v{X2}")
    a(f"v_add_u32 v{X1}, v{X1}, v{X2}")
    a(f"v_bfe_u32 v{X2}, v0, 4, 1")
    a(f"v_lshlrev_b32 v{X3}, 15, v{X2}")
    a(f"v_add_u32 v{VST}, v{X1}, v{X3}")
    a(f"v_lshlrev_b32 v{X3}, 11, v{X2}")
    a(f"v_add_u32 v{VOL}, v{X1}, v{X3}")
    a(f"s_lshl_b32 s{S_T0}, s{S_WN}, 14")
    a(f"s_lshl_b32 s{S_T1}, s{S_WM}, 13")
    a(f"s_add_u32 s{S_T0}, s{S_T0}, s{S_T1}")
    a(f"s_add_u32 s{S_T0}, s{S_T0}, 0x20000")
    a(f"v_add_u32 v{VOL}, s{S_T0}, v{VOL}")
    a(f"v_add_u32 v{OXA}, s{S_T1}, v{VDMA}")
    a(f"v_add_u32 v{OXA+1}, 0x20000, v{OXA}")
    a(f"v_and_b32 v{X1}, 15, v0")
    a(f"v_lshrrev_b32 v{X2}, 2, v{X1}")
    a(f"v_and_b32 v{X3}, 1, v{L4}")
    a(f"v_lshlrev_b32 v{X3}, 2, v{X3}")
    a(f"v_add_u32 v{X3}, v{X3}, v{X2}")
    a(f"v_lshrrev_b32 v{T}, 1, v{L4}")
    a(f"v_lshlrev_b32 v{T}, 4, v{T}")
    a(f"v_add_u32 v{T}, v{T}, v{X3}")
    a(f"v_lshlrev_b32 v{T}, 8, v{T}")
    a(f"v_and_b32 v{X1}, 3, v{X1}")
    a(f"v_lshlrev_b32 v{X1}, 3, v{X1}")
    a(f"v_add_u32 v{T}, v{T}, v{X1}")
    a(f"v_add_u32 v{T}, 0x10000, v{T}")
    a(f"s_lshl_b32 s{S_T0}, s{S_WN}, 2")
    for cc in range(4):
        a(f"s_add_u32 s{S_T1}, s{S_T0}, {cc}")
        a(f"v_xor_b32 v{X2}, s{S_T1}, v{X3}")
        a(f"v_lshlrev_b32 v{X2}, 5, v{X2}")
        a(f"v_add_u32 v{OWA+cc}, v{X2}, v{T}")
    a(f"v_and_b32 v{X1}, 15, v0")
    a(f"v_lshlrev_b32 v{X1}, 12, v{X1}")
    a(f"v_and_b32 v{X2}, 1, v{L4}")
    a(f"v_lshlrev_b32 v{X2}, 5, v{X2}")
    a(f"v_lshrrev_b32 v{X3}, 1, v{L4}")
    a(f"v_lshlrev_b32 v{X3}, 4, v{X3}")
    a(f"v_add3_u32 v{VOUT}, v{X1}, v{X2}, v{X3}")
    S_OO = S_XQ
    S_OUTS = S_WQ
    a(f"s_lshl_b32 s{S_T0}, s{S_R}, 3")
    a(f"s_lshl_b32 s{S_T1}, s{S_WM}, 2")
    a(f"s_add_u32 s{S_T0}, s{S_T0}, s{S_T1}")
    a(f"s_lshl_b32 s{S_T0}, s{S_T0}, 5")
    a(f"s_lshl_b32 s{S_T1}, s{S_G}, 2")
    a(f"s_add_u32 s{S_T0}, s{S_T0}, s{S_T1}")
    a(f"s_lshl_b32 s{S_T1}, s{S_WN}, 1")
    a(f"s_add_u32 s{S_T0}, s{S_T0}, s{S_T1}")
    a(f"s_lshl_b32 s{S_OO}, s{S_T0}, 10")
    a(f"s_lshl_b32 s{S_T0}, s{S_R}, 19")
    a(f"s_lshl_b32 s{S_T1}, s{S_WM}, 18")
    a(f"s_add_u32 s{S_T0}, s{S_T0}, s{S_T1}")
    a(f"s_lshl_b32 s{S_T1}, s{S_B}, 11")
    a(f"s_add_u32 s{S_T0}, s{S_T0}, s{S_T1}")
    a(f"s_lshl_b32 s{S_T1}, s{S_G}, 8")
    a(f"s_add_u32 s{S_T0}, s{S_T0}, s{S_T1}")
    a(f"s_lshl_b32 s{S_T1}, s{S_WN}, 7")
    a(f"s_add_u32 s{S_OUTS}, s{S_T0}, s{S_T1}")
    a("s_waitcnt lgkmcnt(0)")
    a(f"s_lshl_b32 s{S_T0}, s{S_B}, 18")
    a(f"s_add_u32 s{SRD_KV}, s{PTR+24}, s{S_T0}")
    a(f"s_addc_u32 s{SRD_KV+1}, s{PTR+25}, 0")
    srd_tail(a, SRD_KV, 262144)
    a(f"s_lshl_b32 s{S_T0}, s{S_B}, 22")
    a(f"s_add_u32 s{S_T0}, s{S_T0}, {WS_O}")
    a(f"s_add_u32 s{SRD_O}, s{PTR+24}, s{S_T0}")
    a(f"s_addc_u32 s{SRD_O+1}, s{PTR+25}, 0")
    srd_tail(a, SRD_O, 4*1024*1024)
    a(f"s_lshl_b32 s{S_T0}, s{S_B}, 7")
    a(f"s_add_u32 s{S_CNT}, s{PTR+22}, s{S_T0}")
    a(f"s_addc_u32 s{S_CNT+1}, s{PTR+23}, 0")
    SRD_OUT=4
    a(f"s_mov_b32 s{SRD_OUT}, s{PTR+20}")
    a(f"s_mov_b32 s{SRD_OUT+1}, s{PTR+21}")
    srd_tail(a, SRD_OUT, 2048*4096)
    stamp(a, cfg, 1)
    for gs in range(4):
        a("s_barrier")
        so = (gs % 2) * SLOT
        if gs == 2:
            for r_ in (VKXA, VKXA+1, VKWA): a(f"v_add_u32 v{r_}, 0x10000, v{r_}")
        for s in range(8):
            a(f"ds_read_b128 {vr(KVX+4*s,4)}, v{VKXA+(s&1)} offset:{so + (s>>1)*4096}")
            a(f"ds_read_b64_tr_b16 {vr(KVW+4*s,2)}, v{VKWA} offset:{so + (32*s)*64}")
            a(f"ds_read_b64_tr_b16 {vr(KVW+4*s+2,2)}, v{VKWA} offset:{so + (32*s+4)*64}")
        a(f"s_cmp_lg_u32 s{S_TYPE}, 0")
        a(f"s_cbranch_scc1 L_kv_v{gs}")
        for s in range(8):
            if s in (0,4): a(f"s_waitcnt lgkmcnt({12 if s==0 else 0})")
            a(f"v_mfma_f32_16x16x32_bf16 {vr(KVACC,4)}, {vr(KVW+4*s,4)}, {vr(KVX+4*s,4)}, {vr(KVACC,4)}")
        a(f"s_branch L_kv_e{gs}")
        a.label(f"L_kv_v{gs}")
        for s in range(8):
            if s in (0,4): a(f"s_waitcnt lgkmcnt({12 if s==0 else 0})")
            a(f"v_mfma_f32_16x16x32_bf16 {vr(KVACC,4)}, {vr(KVX+4*s,4)}, {vr(KVW+4*s,4)}, {vr(KVACC,4)}")
        a.label(f"L_kv_e{gs}")
    stamp(a, cfg, 2)
    c=T; g_=T+1; x1=T+2; x2=T+3; ad=T+4
    a(f"v_and_b32 v{c}, 15, v0")
    a(f"v_lshrrev_b32 v{g_}, 4, v0")
    a(f"s_cmp_lg_u32 s{S_TYPE}, 0")
    a(f"s_cselect_b32 s{S_T0}, s{S_WM}, s{S_WN}")
    a(f"s_cselect_b32 s{S_T1}, s{S_WN}, s{S_WM}")
    a(f"s_cselect_b32 s{S_T2}, 0, 1")
    a(f"s_lshl_b32 s{S_T0}, s{S_T0}, 10")
    a(f"s_lshl_b32 s{S_T1}, s{S_T1}, 8")
    a(f"s_add_u32 s{S_T0}, s{S_T0}, s{S_T1}")
    a(f"s_lshl_b32 s{S_T1}, s{S_TYPE}, 11")
    a(f"s_add_u32 s{S_T0}, s{S_T0}, s{S_T1}")
    a(f"s_lshl_b32 s{S_T1}, s{S_R}, 2")
    a(f"s_lshr_b32 s{S_T3}, s{S_G}, 1")
    a(f"s_add_u32 s{S_T1}, s{S_T1}, s{S_T3}")
    a(f"s_lshl_b32 s{S_T1}, s{S_T1}, 12")
    a(f"s_add_u32 s{S_T0}, s{S_T0}, s{S_T1}")
    a(f"v_lshrrev_b32 v{x1}, s{S_T2}, v{g_}")
    a(f"v_and_b32 v{x1}, 1, v{x1}")
    a(f"v_lshlrev_b32 v{x1}, 9, v{x1}")
    a(f"s_xor_b32 s{S_T2}, s{S_T2}, 1")
    a(f"v_lshrrev_b32 v{x2}, s{S_T2}, v{g_}")
    a(f"v_and_b32 v{x2}, 1, v{x2}")
    a(f"v_lshlrev_b32 v{x2}, 3, v{x2}")
    a(f"v_lshlrev_b32 v{ad}, 4, v{c}")
    a(f"v_add3_u32 v{ad}, v{ad}, v{x1}, v{x2}")
    a(f"s_cmp_lg_u32 s{S_TYPE}, 0")
    a(f"s_cselect_b32 s{S_T1}, 1.0, {f32hex(KSCALE)}")
    a("s_nop 3")
    for i in range(4): a(f"v_mul_f32 v{KVACC+i}, s{S_T1}, v{KVACC+i}")
    a(f"v_cvt_pk_bf16_f32 v{T}, v{KVACC}, v{KVACC+1}")
    a(f"v_cvt_pk_bf16_f32 v{T+1}, v{KVACC+2}, v{KVACC+3}")
    a(f"buffer_store_dwordx2 {vr(T,2)}, v{ad}, s[{SRD_KV}:{SRD_KV+3}], s{S_T0} offen sc1")

    def q_reads(qs, s, fset):
        st_, so = slot_set((qs+4) % NSLOT)
        o = []
        xa = VXA + 2*st_ + s
        wa = VWA + 4*st_
        for cc in range(4):
            o.append(f"ds_read_b64_tr_b16 {vr(FA[fset]+4*cc,2)}, v{wa+cc} offset:{so + (32*s)*256}")
            o.append(f"ds_read_b64_tr_b16 {vr(FA[fset]+4*cc+2,2)}, v{wa+cc} offset:{so + (32*s+4)*256}")
            o.append(f"ds_read_b128 {vr(FB[fset]+4*cc,4)}, v{xa} offset:{so + cc*2048}")
        return o
    zero_list = [f"v_mov_b32 v{O+i}, 0" for i in range(64)] + [f"v_mov_b32 v{L+i}, 0" for i in range(16)]
    for qs in range(16):
        gs = qs+4
        if gs == PUB: a("s_waitcnt vmcnt(0) lgkmcnt(0)")
        else: a("s_waitcnt lgkmcnt(0)")
        a("s_barrier")
        if gs == PUB:
            a(f"s_cmp_lg_u32 s{S_W}, 0")
            a(f"s_cbranch_scc1 L_nopub")
            a(f"v_mov_b32 v{T+2}, 0")
            a(f"v_mov_b32 v{T+3}, 1")
            a(f"s_mov_b64 s[{S_SAVE}:{S_SAVE+1}], exec")
            a(f"s_mov_b64 exec, 1")
            a(f"global_atomic_add v{T+2}, v{T+3}, s[{S_CNT}:{S_CNT+1}] sc1")
            a(f"s_mov_b64 exec, s[{S_SAVE}:{S_SAVE+1}]")
            a.label("L_nopub")
        r0 = q_reads(qs, 0, 0); r1 = q_reads(qs, 1, 1)
        z = []
        if 2 <= qs <= 6: z = zero_list[16*(qs-2):16*(qs-1)]
        if qs == 0: a(r0)
        else: a(interleave(gemm_mfmas(ACC,FA,FB,1), r0 + z[:8], lead=LEAD, per=PER))
        a("s_waitcnt lgkmcnt(0)")
        a(interleave(gemm_mfmas(ACC,FA,FB,0), r1 + z[8:], lead=0, per=PER))
    a("s_waitcnt lgkmcnt(0)")
    a(gemm_mfmas(ACC,FA,FB,1))
    a("s_barrier")
    stamp(a, cfg, 3)

    a(f"v_mov_b32 v{VA}, v{VDMA}")
    a(f"v_add_u32 v{VB}, 0x8000, v{VDMA}")
    a(f"ds_read_b128 {vr(K[0],4)}, v{VDMA} offset:0")
    a(f"ds_read_b128 {vr(K[0]+4,4)}, v{VDMA} offset:1024")
    a(f"ds_read_b128 {vr(V[0],4)}, v{VDMA} offset:2048")
    a(f"ds_read_b128 {vr(V[0]+4,4)}, v{VDMA} offset:3072")
    a(f"ds_read_b128 {vr(K[1],4)}, v{VDMA} offset:4096")
    a(f"ds_read_b128 {vr(K[1]+4,4)}, v{VDMA} offset:{4096+1024}")
    for i in range(8): a(f"v_mov_b32 v{V[1]+i}, 0")
    tiles = [(hh, rb) for hh in range(2) for rb in range(2)]
    for (hh, rb) in tiles:
        t = hh*2+rb
        for m in range(2):
            cc = 2*hh+m
            x = ACC + (cc*4+2*rb)*4; y = ACC + (cc*4+2*rb+1)*4
            q = Q + t*8 + m*4
            a(f"v_cvt_pk_bf16_f32 v{q}, v{x}, v{x+1}")
            a(f"v_cvt_pk_bf16_f32 v{q+1}, v{x+2}, v{x+3}")
            a(f"v_cvt_pk_bf16_f32 v{q+2}, v{y}, v{y+1}")
            a(f"v_cvt_pk_bf16_f32 v{q+3}, v{y+2}, v{y+3}")
    for i in range(8): a(f"v_mov_b32 v{P[1]+i}, 0")
    for t in range(4):
        for m in range(2):
            q = Q + t*8 + m*4
            a(f"v_permlane16_swap_b32 v{q}, v{q+2}")
            a(f"v_permlane16_swap_b32 v{q+1}, v{q+3}")
    a(f"s_mov_b32 s{S_KVM0}, 0x8000")
    a(f"s_mov_b32 s{S_LOOP}, 8")
    a("s_waitcnt lgkmcnt(0)")
    a(f"v_mfma_f32_32x32x16_bf16 {vr(S[0],16)}, {vr(K[0],4)}, {vr(Q,4)}, 0")
    a(f"v_mfma_f32_32x32x16_bf16 {vr(S[0],16)}, {vr(K[0]+4,4)}, {vr(Q+4,4)}, {vr(S[0],16)}")
    stamp(a, cfg, 4)
    a("s_nop 7")
    a("s_nop 3")
    a(".p2align 6")
    a.label("L_attn")
    patt = cfg.get('patt', "A e e e c B e e c e C e c e e D c e R e c e e c e e c e S c").split()
    assert patt.count('e') == 16 and patt.count('c') == 8
    NQ = 4; NSTEP = 8
    for step in range(NSTEP):
        for t in range(NQ):
            u = step*NQ + t
            un = u+1; stepn = un//NQ; tn = un % NQ
            up = u-1; stepp = up//NQ; tp = up % NQ
            sc = S[u%2]; sn = S[(u+1)%2]; Pp = P[(u-1)%2]; Pc = P[u%2]
            M = {
              'A': f"v_mfma_f32_32x32x16_bf16 {vr(sn,16)}, {vr(K[stepn%2],4)}, {vr(Q+tn*8,4)}, 0",
              'B': f"v_mfma_f32_32x32x16_bf16 {vr(sn,16)}, {vr(K[stepn%2]+4,4)}, {vr(Q+tn*8+4,4)}, {vr(sn,16)}",
              'C': f"v_mfma_f32_32x32x16_bf16 {vr(O+tp*16,16)}, {vr(V[stepp%2],4)}, {vr(Pp,4)}, {vr(O+tp*16,16)}",
              'D': f"v_mfma_f32_32x32x16_bf16 {vr(O+tp*16,16)}, {vr(V[stepp%2]+4,4)}, {vr(Pp+4,4)}, {vr(O+tp*16,16)}",
              'S': f"v_smfmac_f32_16x16x64_bf16 {vr(L+tp*4,4)}, {vr(ONES,4)}, {vr(Pp,8)}, v{IDX}",
            }
            ei = ci = 0
            for tok in patt:
                if tok == 'e': a(f"v_exp_f32 v{sc+ei}, v{sc+ei}"); ei += 1
                elif tok == 'c': a(f"v_cvt_pk_bf16_f32 v{Pc+ci}, v{sc+2*ci}, v{sc+2*ci+1}"); ci += 1
                elif tok == 'x': a("s_nop 0")
                elif tok == 'R':
                    if t == NQ-1:
                        if step == 6 and not cfg.get('a_nobar'): a("s_barrier")
                        def addr(st): return (VA, st*4096) if st < 8 else (VB, (st-8)*4096)
                        rv, ov = addr(step+1); rk, ok = addr(step+2)
                        a(f"ds_read_b128 {vr(V[(step+1)%2],4)}, v{rv} offset:{ov+2048}")
                        a(f"ds_read_b128 {vr(V[(step+1)%2]+4,4)}, v{rv} offset:{ov+3072}")
                        a(f"ds_read_b128 {vr(K[step%2],4)}, v{rk} offset:{ok}")
                        a(f"ds_read_b128 {vr(K[step%2]+4,4)}, v{rk} offset:{ok+1024}")
                    if step == 7 and t == 0:
                        a(f"s_cmp_eq_u32 s{S_KVM0}, 0x8000")
                        a(f"s_cselect_b32 s{S_T0}, 0x20000, 0")
                        a(f"s_cmp_eq_u32 s{S_KVM0}, 0")
                        a(f"s_cselect_b32 s{S_KVM0}, 0x8000, s{S_T0}")
                else:
                    if tok == 'A' and tn == 0: a("s_waitcnt lgkmcnt(0)")
                    if tok == 'C' and tp == 0: a("s_waitcnt lgkmcnt(2)")
                    a(M[tok])
    a(f"v_mov_b32 v{VA}, v{VB}")
    a(f"v_add_u32 v{VB}, s{S_KVM0}, v{VDMA}")
    a(f"s_sub_u32 s{S_LOOP}, s{S_LOOP}, 1")
    a(f"s_cmp_lg_u32 s{S_LOOP}, 0")
    a(f"s_cbranch_scc1 L_attn")
    a(f"v_mfma_f32_32x32x16_bf16 {vr(O+48,16)}, {vr(V[1],4)}, {vr(P[1],4)}, {vr(O+48,16)}")
    a(f"v_mfma_f32_32x32x16_bf16 {vr(O+48,16)}, {vr(V[1]+4,4)}, {vr(P[1]+4,4)}, {vr(O+48,16)}")
    a(f"v_smfmac_f32_16x16x64_bf16 {vr(L+12,4)}, {vr(ONES,4)}, {vr(P[1],8)}, v{IDX}")
    stamp(a, cfg, 5)
    def lsum(first):
        order = [0,1,2,3]
        for t in order:
            if t == 3 and first: a("s_nop 7")
            a(f"v_add_f32 v{XT+2*t}, v{L+4*t}, v{L+4*t+1}")
            a(f"v_add_f32 v{XT+2*t+1}, v{L+4*t+2}, v{L+4*t+3}")
        a("s_nop 1")
        for t in range(4): a(f"v_permlane16_swap_b32 v{XT+2*t}, v{XT+2*t+1}")
        a("s_nop 0")
        for t in range(4): a(f"v_mov_b32 v{LS+t}, v{XT+2*t}")
        a("s_nop 0")
        for t in range(4): a(f"v_permlane32_swap_b32 v{LS+t}, v{XT+2*t}")
    FS = 64
    for t in range(3):
        a(f"v_pk_add_f32 {vr(FS+2*t,2)}, {vr(O+16*t,2)}, {vr(O+16*t+2,2)}")
    for i in range(2, 8):
        for t in range(3):
            a(f"v_pk_add_f32 {vr(FS+2*t,2)}, {vr(FS+2*t,2)}, {vr(O+16*t+2*i,2)}")
    lsum(True)
    a(f"v_pk_add_f32 {vr(FS+6,2)}, {vr(O+48,2)}, {vr(O+50,2)}")
    for i in range(2, 8): a(f"v_pk_add_f32 {vr(FS+6,2)}, {vr(FS+6,2)}, {vr(O+48+2*i,2)}")
    for t in range(4): a(f"v_add_f32 v{FS+2*t}, v{FS+2*t}, v{FS+2*t+1}")
    a(f"v_add_f32 v{FS}, v{FS}, v{FS+2}")
    a(f"v_add_f32 v{FS+4}, v{FS+4}, v{FS+6}")
    a(f"v_add_f32 v{FS}, v{FS}, v{FS+4}")
    a(f"v_min_f32 v{FS+1}, v{LS}, v{LS+1}")
    a(f"v_min3_f32 v{FS+1}, v{LS+2}, v{LS+3}, v{FS+1}")
    a(f"v_max_f32 v{FS+2}, v{LS}, v{LS+1}")
    a(f"v_max3_f32 v{FS+2}, v{LS+2}, v{LS+3}, v{FS+2}")
    a(f"v_add_f32 v{FS+3}, v{LS}, v{LS+1}")
    a(f"v_add_f32 v{FS+3}, v{FS+3}, v{LS+2}")
    a(f"v_add_f32 v{FS+3}, v{FS+3}, v{LS+3}")
    a(f"s_mov_b32 s{S_T0}, 0x71800000")
    a(f"s_movk_i32 s{S_T1}, 0x1f8")
    a(f"v_cmp_le_f32 vcc, 1.0, v{FS+1}")
    a(f"v_cmp_ge_f32 s[{S_MASK}:{S_MASK+1}], s{S_T0}, v{FS+2}")
    a(f"v_cmp_class_f32 s[{S_MASK2}:{S_MASK2+1}], v{FS}, s{S_T1}")
    a(f"v_cmp_class_f32 s[{S_SAVE}:{S_SAVE+1}], v{FS+3}, s{S_T1}")
    for t in range(4): a(f"v_rcp_f32 v{LS+t}, v{LS+t}")
    a(f"s_and_b64 s[{S_MASK}:{S_MASK+1}], s[{S_MASK}:{S_MASK+1}], vcc")
    a(f"s_and_b64 s[{S_MASK}:{S_MASK+1}], s[{S_MASK}:{S_MASK+1}], s[{S_MASK2}:{S_MASK2+1}]")
    a(f"s_and_b64 s[{S_MASK}:{S_MASK+1}], s[{S_MASK}:{S_MASK+1}], s[{S_SAVE}:{S_SAVE+1}]")
    a(f"s_cmp_eq_u64 s[{S_MASK}:{S_MASK+1}], exec")
    if cfg.get('force_fallback'): a("s_cmp_eq_u32 s2, 0x7fffffff")
    a(f"s_cbranch_scc1 L_norm")
    NEG = S[0]; SS = S[1]; MX = XT; KF = K[0]; VF = V[0]; PP = P[0]
    for t in range(4):
        a(f"v_mov_b32 v{MX}, 0xff800000")
        a(f"s_mov_b32 s{S_T2}, 0")
        a.label(f"L_fb1_{t}")
        a(f"buffer_load_dwordx4 {vr(KF,4)}, v{VDMA}, s[{SRD_KV}:{SRD_KV+3}], s{S_T2} offen sc1")
        a(f"buffer_load_dwordx4 {vr(KF+4,4)}, v{VDMA}, s[{SRD_KV}:{SRD_KV+3}], s{S_T2} offen offset:1024 sc1")
        a("s_waitcnt vmcnt(0)")
        a(f"v_mfma_f32_32x32x16_bf16 {vr(SS,16)}, {vr(KF,4)}, {vr(Q+t*8,4)}, 0")
        a(f"v_mfma_f32_32x32x16_bf16 {vr(SS,16)}, {vr(KF+4,4)}, {vr(Q+t*8+4,4)}, {vr(SS,16)}")
        a("s_nop 15")
        for i in range(8): a(f"v_max3_f32 v{MX}, v{SS+2*i}, v{SS+2*i+1}, v{MX}")
        a(f"s_add_u32 s{S_T2}, s{S_T2}, 4096")
        a(f"s_cmp_lt_u32 s{S_T2}, 262144")
        a(f"s_cbranch_scc1 L_fb1_{t}")
        a(f"v_mov_b32 v{MX+1}, v{MX}")
        a("s_nop 1")
        a(f"v_permlane32_swap_b32 v{MX}, v{MX+1}")
        a("s_nop 1")
        a(f"v_max_f32 v{MX}, v{MX}, v{MX+1}")
        for i in range(16): a(f"v_sub_f32 v{NEG+i}, 0, v{MX}")
        for i in range(16): a(f"v_mov_b32 v{O+16*t+i}, 0")
        for i in range(4): a(f"v_mov_b32 v{L+4*t+i}, 0")
        a(f"s_mov_b32 s{S_T2}, 0")
        a.label(f"L_fb2_{t}")
        a(f"buffer_load_dwordx4 {vr(KF,4)}, v{VDMA}, s[{SRD_KV}:{SRD_KV+3}], s{S_T2} offen sc1")
        a(f"buffer_load_dwordx4 {vr(KF+4,4)}, v{VDMA}, s[{SRD_KV}:{SRD_KV+3}], s{S_T2} offen offset:1024 sc1")
        a(f"buffer_load_dwordx4 {vr(VF,4)}, v{VDMA}, s[{SRD_KV}:{SRD_KV+3}], s{S_T2} offen offset:2048 sc1")
        a(f"buffer_load_dwordx4 {vr(VF+4,4)}, v{VDMA}, s[{SRD_KV}:{SRD_KV+3}], s{S_T2} offen offset:3072 sc1")
        a("s_waitcnt vmcnt(0)")
        a(f"v_mfma_f32_32x32x16_bf16 {vr(SS,16)}, {vr(KF,4)}, {vr(Q+t*8,4)}, {vr(NEG,16)}")
        a(f"v_mfma_f32_32x32x16_bf16 {vr(SS,16)}, {vr(KF+4,4)}, {vr(Q+t*8+4,4)}, {vr(SS,16)}")
        a("s_nop 15")
        for i in range(16): a(f"v_exp_f32 v{SS+i}, v{SS+i}")
        a("s_nop 1")
        for i in range(8): a(f"v_cvt_pk_bf16_f32 v{PP+i}, v{SS+2*i}, v{SS+2*i+1}")
        a("s_nop 2")
        a(f"v_mfma_f32_32x32x16_bf16 {vr(O+16*t,16)}, {vr(VF,4)}, {vr(PP,4)}, {vr(O+16*t,16)}")
        a(f"v_mfma_f32_32x32x16_bf16 {vr(O+16*t,16)}, {vr(VF+4,4)}, {vr(PP+4,4)}, {vr(O+16*t,16)}")
        a(f"v_smfmac_f32_16x16x64_bf16 {vr(L+4*t,4)}, {vr(ONES,4)}, {vr(PP,8)}, v{IDX}")
        a("s_nop 15")
        a(f"s_add_u32 s{S_T2}, s{S_T2}, 4096")
        a(f"s_cmp_lt_u32 s{S_T2}, 262144")
        a(f"s_cbranch_scc1 L_fb2_{t}")
    a("s_nop 7")
    lsum(False)
    a("s_nop 1")
    for t in range(4): a(f"v_rcp_f32 v{LS+t}, v{LS+t}")
    a("s_nop 0")
    a.label("L_norm")
    for t in range(4):
        hh, rb = t>>1, t&1
        for i in range(8):
            a(f"v_pk_mul_f32 {vr(O+16*t+2*i,2)}, {vr(O+16*t+2*i,2)}, {vr(LS+t - (LS+t)%2,2)} op_sel:[0,{(LS+t)%2}] op_sel_hi:[1,{(LS+t)%2}]")
        R = O+16*t
        for i in range(8): a(f"v_cvt_pk_bf16_f32 v{R+i}, v{R+2*i}, v{R+2*i+1}")
        a(f"s_add_u32 s{S_T0}, s{S_OO}, {(2*rb*32 + hh)*1024}")
        a(f"buffer_store_dwordx4 {vr(R,4)}, v{VST}, s[{SRD_O}:{SRD_O+3}], s{S_T0} offen sc1")
        a(f"buffer_store_dwordx4 {vr(R+4,4)}, v{VST}, s[{SRD_O}:{SRD_O+3}], s{S_T0} offen offset:512 sc1")
        a(f"ds_write_b128 v{VOL}, {vr(R,4)} offset:{rb*4096 + hh*1024}")
        a(f"ds_write_b128 v{VOL}, {vr(R+4,4)} offset:{rb*4096 + hh*1024 + 512}")
    stamp(a, cfg, 6)
    def o_reads(st, s, fset):
        wo_ = (st % 4)*16384
        osl = st % 6
        xa, oo = (OXA+1, osl*16384) if osl < 2 else (OXA, (osl-2)*16384)
        o = []
        for cc in range(4):
            o.append(f"ds_read_b64_tr_b16 {vr(FA[fset]+4*cc,2)}, v{OWA+cc} offset:{wo_ + (32*s)*256}")
            o.append(f"ds_read_b64_tr_b16 {vr(FA[fset]+4*cc+2,2)}, v{OWA+cc} offset:{wo_ + (32*s+8)*256}")
            o.append(f"ds_read_b128 {vr(FB[fset]+4*cc,4)}, v{xa} offset:{oo + cc*2048 + s*1024}")
        return o
    for st in range(16):
        if st == 1: a("s_waitcnt vmcnt(0) lgkmcnt(0)")
        else: a("s_waitcnt lgkmcnt(0)")
        a("s_barrier")
        if st == 2: stamp(a, cfg, 7)
        r0 = o_reads(st, 0, 0); r1 = o_reads(st, 1, 1)
        if st == 0: a(r0)
        else: a(interleave(gemm_mfmas(ACC,FA,FB,1), r0, lead=LEAD, per=PER))
        a("s_waitcnt lgkmcnt(0)")
        a(interleave(gemm_mfmas(ACC,FA,FB,0, czero=(st == 0)), r1, lead=0, per=PER))
    a("s_waitcnt lgkmcnt(0)")
    a(gemm_mfmas(ACC,FA,FB,1, order='rt'))
    OUTF = cfg.get('outflags', 'sc0 sc1')
    R = 96
    k = 0
    for rt in range(4):
        if rt == 3: a("s_nop 1")
        qs_ = []
        for cp in range(2):
            x = ACC + ((2*cp)*4+rt)*4; y = ACC + ((2*cp+1)*4+rt)*4
            q = R + 4*k; k += 1; qs_.append(q)
            a(f"v_cvt_pk_bf16_f32 v{q}, v{x}, v{x+1}")
            a(f"v_cvt_pk_bf16_f32 v{q+1}, v{x+2}, v{x+3}")
            a(f"v_cvt_pk_bf16_f32 v{q+2}, v{y}, v{y+1}")
            a(f"v_cvt_pk_bf16_f32 v{q+3}, v{y+2}, v{y+3}")
        a(f"s_add_u32 s{S_T0}, s{S_OUTS}, {rt*16*4096}")
        a("s_nop 0")
        for q in qs_:
            a(f"v_permlane16_swap_b32 v{q}, v{q+2}")
            a(f"v_permlane16_swap_b32 v{q+1}, v{q+3}")
        a("s_nop 0")
        for cp, q in enumerate(qs_):
            a(f"buffer_store_dwordx4 {vr(q,4)}, v{VOUT}, s[{SRD_OUT}:{SRD_OUT+3}], s{S_T0} offen offset:{cp*64} {OUTF}")
    if cfg.get('stamps'):
        a("s_waitcnt vmcnt(0)")
        stamp(a, cfg, 8)
        stamp_store(a, cfg, 9, 0, "L_k1_ss")
        if cfg.get('dbgout'):
            WGSEL = int(cfg.get('dbgwg', 0))
            a(f"s_cmp_lg_u32 s{S_WG}, {WGSEL}")
            a("s_cbranch_scc1 L_dd")
            a(f"s_cmp_lg_u32 s{S_W}, 0")
            a("s_cbranch_scc1 L_dd")
            a("v_mov_b32 v6, 0")
            a("s_mov_b64 exec, 1")
            for i in range(1, 9):
                a(f"s_sub_u32 s{S_T0}, s{ST0+2*i}, s{ST0}")
                a(f"v_mov_b32 v5, s{S_T0}")
                a(f"global_store_dword v6, v5, s[{PTR+22}:{PTR+23}] offset:{4*i}")
            a.label("L_dd")
    a("s_endpgm")

    a.label("L_loader")
    VOX=2; VOW=6; VOWKV=10; VL=11; POLL=12; VOWO=13; VOB=17; WREG=40
    SRD_WO=12; S_FLAG=74
    gen_vox(a, VOX, T)
    X1=T+2; X2=T+3
    a(f"v_lshrrev_b32 v{X1}, 5, v0")
    a(f"v_lshlrev_b32 v{X1}, 1, v{X1}")
    a(f"v_and_b32 v{X2}, 3, v0")
    a(f"v_xor_b32 v{X1}, v{X1}, v{X2}")
    a(f"v_lshlrev_b32 v{X1}, 4, v{X1}")
    a(f"v_lshrrev_b32 v{X2}, 2, v0")
    a(f"v_lshlrev_b32 v{X2}, 6, v{X2}")
    a(f"v_add_u32 v{VOWKV}, v{X1}, v{X2}")
    a(f"s_lshl_b32 s{S_T0}, s{S_R}, 18")
    a(f"s_lshl_b32 s{S_T1}, s{S_W}, 16")
    a(f"s_add_u32 s{S_XQ}, s{S_T0}, s{S_T1}")
    a(f"s_lshl_b32 s{S_T1}, s{S_W}, 15")
    a(f"s_lshl_b32 s{S_T2}, s{S_G}, 8")
    a(f"s_add_u32 s{S_WQ}, s{S_T1}, s{S_T2}")
    a(f"s_lshr_b32 s{S_T1}, s{S_G}, 1")
    a(f"s_lshl_b32 s{S_T1}, s{S_T1}, 16")
    a(f"s_add_u32 s{S_XKV}, s{S_T0}, s{S_T1}")
    a(f"s_lshl_b32 s{S_T1}, s{S_W}, 7")
    a(f"s_add_u32 s{S_XKV}, s{S_XKV}, s{S_T1}")
    S_QROT = S_KVM0
    a(f"s_lshl_b32 s{S_QROT}, s{S_G}, 1")
    a(f"s_and_b32 s{S_T4}, s{S_R}, 1")
    a(f"s_add_u32 s{S_QROT}, s{S_QROT}, s{S_T4}")
    a("s_waitcnt lgkmcnt(0)")
    a(f"s_cmp_lg_u32 s{S_B}, 0")
    sel_ptr(a, SRD_X, 0, 10)
    sel_ptr(a, S_T0, 4, 14)
    sel_ptr(a, S_T2, 6, 16)
    sel_ptr(a, SRD_WQ, 2, 12)
    a(f"s_cmp_lg_u32 s{S_TYPE}, 0")
    a(f"s_cselect_b32 s{SRD_WKV}, s{S_T2}, s{S_T0}")
    a(f"s_cselect_b32 s{SRD_WKV+1}, s{S_T2+1}, s{S_T0+1}")
    srd_tail(a, SRD_X, 2048*2048)
    srd_tail(a, SRD_WKV, 1024*64)
    srd_tail(a, SRD_WQ, 1024*2048)
    vm = VM()
    LDF = 'sc1'
    def dma_stage(gs):
        o = []
        slot = gs % NSLOT
        if gs < 4:
            j = gs
            o.append(f"s_add_u32 m0, s{S_M0}, {slot*SLOT}")
            o.append(f"s_add_u32 s{S_OFFA}, s{S_XKV}, {j*512}")
            for i in range(4):
                o.append(f"buffer_load_dwordx4 v{VOX+i}, s[{SRD_X}:{SRD_X+3}], s{S_OFFA} offen offset:{i*1024} lds"); vm.issue(('st',gs))
            o.append(f"s_add_u32 m0, s{S_M0}, {slot*SLOT+16384}")
            o.append(f"s_add_u32 s{S_OFFB}, s{S_M0}, {j*16384}")
            for i in range(4):
                o.append(f"buffer_load_dwordx4 v{VOWKV}, s[{SRD_WKV}:{SRD_WKV+3}], s{S_OFFB} offen offset:{i*1024} lds"); vm.issue(('st',gs))
        else:
            qs = gs-4
            o.append(f"s_add_u32 s{S_T4}, s{S_QROT}, {qs}")
            o.append(f"s_and_b32 s{S_T4}, s{S_T4}, 15")
            o.append(f"s_lshl_b32 s{S_OFFA}, s{S_T4}, 7")
            o.append(f"s_add_u32 s{S_OFFA}, s{S_OFFA}, s{S_XQ}")
            o.append(f"s_add_u32 m0, s{S_M0}, {slot*SLOT}")
            o.append(f"s_lshl_b32 s{S_OFFB}, s{S_T4}, 17")
            for i in range(4):
                o.append(f"buffer_load_dwordx4 v{VOX+i}, s[{SRD_X}:{SRD_X+3}], s{S_OFFA} offen offset:{i*1024} lds"); vm.issue(('st',gs))
            o.append(f"s_add_u32 m0, s{S_M0}, {slot*SLOT+16384}")
            o.append(f"s_add_u32 s{S_OFFB}, s{S_OFFB}, s{S_WQ}")
            for j in range(4):
                o.append(f"buffer_load_dwordx4 v{VOW+j}, s[{SRD_WQ}:{SRD_WQ+3}], s{S_OFFB} offen offset:{j*1024} lds"); vm.issue(('st',gs))
        return o
    for gs in range(4): a(dma_stage(gs))
    gen_vow(a, VOW, T, lambda j: (j>>1)&1)
    a(dma_stage(4))
    gen_vow(a, VOWO, T, lambda j: j&1)
    a(f"v_lshlrev_b32 v{VL}, 4, v0")
    a(f"v_lshlrev_b32 v{VOB}, 4, v0")
    a(f"v_add_u32 v{VOB+1}, {32768-2048}, v{VOB}")
    a(f"s_lshl_b32 s{S_T0}, s{S_B}, 18")
    a(f"s_add_u32 s{SRD_KV}, s{PTR+24}, s{S_T0}")
    a(f"s_addc_u32 s{SRD_KV+1}, s{PTR+25}, 0")
    srd_tail(a, SRD_KV, 262144)
    a(f"s_lshl_b32 s{S_T0}, s{S_B}, 22")
    a(f"s_add_u32 s{S_T0}, s{S_T0}, {WS_O}")
    a(f"s_add_u32 s{SRD_O}, s{PTR+24}, s{S_T0}")
    a(f"s_addc_u32 s{SRD_O+1}, s{PTR+25}, 0")
    srd_tail(a, SRD_O, 4*1024*1024)
    a(f"s_lshl_b32 s{S_T0}, s{S_B}, 7")
    a(f"s_add_u32 s{S_CNT}, s{PTR+22}, s{S_T0}")
    a(f"s_addc_u32 s{S_CNT+1}, s{PTR+23}, 0")
    a(f"s_lshl_b32 s{S_T0}, s{S_B}, 4")
    a(f"s_add_u32 s{S_T0}, s{S_T0}, s{S_R}")
    a(f"s_lshl_b32 s{S_T0}, s{S_T0}, 7")
    a(f"s_add_u32 s{S_T0}, s{S_T0}, {WS_F}")
    a(f"s_add_u32 s{S_FLAG}, s{PTR+24}, s{S_T0}")
    a(f"s_addc_u32 s{S_FLAG+1}, s{PTR+25}, 0")
    a(f"s_lshl_b32 s{S_T0}, s{S_G}, 2")
    a(f"v_mov_b32 v{T}, s{S_T0}")
    a(f"v_mov_b32 v{T+1}, 0")
    a(f"s_cmp_lg_u32 s{S_W}, 0")
    a(f"s_cbranch_scc1 L_nozero")
    a(f"s_mov_b64 exec, 1")
    a(f"global_store_dword v{T}, v{T+1}, s[{S_FLAG}:{S_FLAG+1}] sc1")
    a(f"s_mov_b64 exec, -1")
    a.label("L_nozero")
    zero_pos = len(vm.ops)
    S_M8 = S_XKV
    a(f"s_lshl_b32 s{S_M8}, s{S_W}, 13")
    KVB = [0, 32768, 131072]
    def kv_dma(st):
        o = []
        for h in range(2):
            o.append(f"s_add_u32 m0, s{S_M8}, {KVB[st%3] + h*4096}")
            o.append(f"s_add_u32 s{S_OFFA}, s{S_M8}, {st*32768 + h*4096}")
            for i in range(4):
                o.append(f"buffer_load_dwordx4 v{VL}, s[{SRD_KV}:{SRD_KV+3}], s{S_OFFA} offen offset:{i*1024} {LDF} lds"); vm.issue(('kv',st))
        return o
    POLLAT = int(cfg.get('pollat', 14))
    for gs in range(20):
        need = vm.wait_n(('st',gs))
        if gs == PUB: need = min(need, len(vm.ops) - zero_pos)
        if gs == 16: need = min(need, vm.wait_n('poll'))
        a(f"s_waitcnt vmcnt({need})")
        a("s_barrier")
        if gs == POLLAT:
            a(f"v_mov_b32 v{T}, 0")
            a(f"global_load_dword v{POLL}, v{T}, s[{S_CNT}:{S_CNT+1}] sc1"); vm.issue('poll')
        if gs >= 1 and gs+4 < 20: a(dma_stage(gs+4))
        if gs == 16:
            a(f"v_readfirstlane_b32 s{S_T0}, v{POLL}")
            a("s_nop 3")
            a(f"s_cmp_ge_u32 s{S_T0}, 128")
            a(f"s_cbranch_scc1 L_kvready")
            a.label("L_spin")
            a("s_sleep 2")
            a(f"v_mov_b32 v{T}, 0")
            a(f"global_load_dword v{POLL}, v{T}, s[{S_CNT}:{S_CNT+1}] sc1")
            a("s_waitcnt vmcnt(0)")
            a(f"v_readfirstlane_b32 s{S_T0}, v{POLL}")
            a("s_nop 3")
            a(f"s_cmp_lt_u32 s{S_T0}, 128")
            a(f"s_cbranch_scc1 L_spin")
            a.label("L_kvready")
            a(kv_dma(0))
        if gs == 17: a(kv_dma(1))
    a(f"s_waitcnt vmcnt({vm.wait_n(('kv',0))})")
    a("s_barrier")
    a(f"s_cmp_lg_u32 s{S_B}, 0")
    sel_ptr(a, SRD_WO, 8, 18)
    srd_tail(a, SRD_WO, 1024*2048)
    S_G2 = S_T5
    a(f"s_lshl_b32 s{S_G2}, s{S_G}, 1")
    def rot(dst, i, shift, base):
        return [f"s_add_u32 s{dst}, s{S_G2}, {i}", f"s_and_b32 s{dst}, s{dst}, 15", f"s_lshl_b32 s{dst}, s{dst}, {shift}", f"s_add_u32 s{dst}, s{dst}, s{base}"]
    def wo_dma(i):
        o = rot(S_OFFB, i, 17, S_WQ)
        o.append(f"s_add_u32 m0, s{S_M0}, {65536 + (i%4)*16384}")
        for j in range(4):
            o.append(f"buffer_load_dwordx4 v{VOWO+j}, s[{SRD_WO}:{SRD_WO+3}], s{S_OFFB} offen offset:{j*1024} lds"); vm.issue(('wo',i))
        return o
    VTCH = T+4
    a(f"v_lshrrev_b32 v{VTCH}, 1, v0")
    a(f"v_lshlrev_b32 v{VTCH}, 11, v{VTCH}")
    a(f"v_and_b32 v{VTCH+1}, 1, v0")
    a(f"v_lshlrev_b32 v{VTCH+1}, 7, v{VTCH+1}")
    a(f"v_add_u32 v{VTCH}, v{VTCH}, v{VTCH+1}")
    def wo_touch(i):
        o = rot(S_OFFB, i, 17, S_WQ)
        o.append(f"buffer_load_dword v{WREG+i}, v{VTCH}, s[{SRD_WO}:{SRD_WO+3}], s{S_OFFB} offen"); vm.issue(('wt',i))
        return o
    for s in range(1, 9):
        if s <= 7: a(f"s_waitcnt vmcnt({vm.wait_n(('kv',s))})")
        if not cfg.get('a_nobar'): a("s_barrier")
        if s+1 <= 7: a(kv_dma(s+1))
        for i in (2*(s-1), 2*(s-1)+1):
            a(wo_dma(i) if i < 4 else wo_touch(i))
    a(f"s_lshl_b32 s{S_T0}, s{S_R}, 3")
    a(f"s_lshl_b32 s{S_T1}, s{S_W}, 1")
    a(f"s_add_u32 s{S_T0}, s{S_T0}, s{S_T1}")
    a(f"s_lshl_b32 s{S_XQ}, s{S_T0}, 15")
    a(f"s_lshl_b32 s{S_T0}, s{S_G}, 2")
    a(f"v_mov_b32 v{T}, s{S_T0}")
    a(f"v_mov_b32 v{T+1}, 1")
    a(f"v_and_b32 v{T+3}, 7, v0")
    a(f"v_lshlrev_b32 v{T+3}, 2, v{T+3}")
    a("s_waitcnt vmcnt(0)")
    vm.ops = []
    OSL = [131072, 131072+16384, 0, 16384, 32768, 49152]
    def o_dma(i):
        o = [f"s_add_u32 m0, s{S_M0}, {OSL[i%6]}"] + rot(S_OFFA, i, 11, S_XQ)
        for k in range(4):
            o.append(f"buffer_load_dwordx4 v{VOB+(k>>1)}, s[{SRD_O}:{SRD_O+3}], s{S_OFFA} offen offset:{k*1024} {LDF} lds"); vm.issue(('o',i))
        return o
    a("s_barrier")
    stamp(a, cfg, 0)
    a("s_barrier")
    stamp(a, cfg, 1)
    a(f"s_cmp_lg_u32 s{S_W}, 0")
    a(f"s_cbranch_scc1 L_noflag")
    a(f"s_mov_b64 exec, 1")
    a(f"global_store_dword v{T}, v{T+1}, s[{S_FLAG}:{S_FLAG+1}] sc1")
    a(f"s_mov_b64 exec, -1")
    a.label("L_noflag")
    a(wo_dma(4))
    a.label("L_ospin")
    a(f"global_load_dword v{POLL}, v{T+3}, s[{S_FLAG}:{S_FLAG+1}] sc1")
    a("s_waitcnt vmcnt(0)")
    a(f"v_cmp_eq_u32 vcc, 1, v{POLL}")
    a("s_nop 4")
    a(f"s_cmp_eq_u64 vcc, exec")
    a(f"s_cbranch_scc1 L_oready")
    a("s_sleep 1")
    a("s_branch L_ospin")
    a.label("L_oready")
    stamp(a, cfg, 2)
    vm.ops = []
    for i in range(2, 7): a(o_dma(i))
    for st in range(2, 16):
        need = vm.wait_n(('o',st))
        if st >= 5: need = min(need, vm.wait_n(('wo',st)))
        a(f"s_waitcnt vmcnt({need})")
        if st == 2: stamp(a, cfg, 3)
        a("s_barrier")
        if st+3 < 16: a(wo_dma(st+3))
        if st+5 < 16: a(o_dma(st+5))
    if cfg.get('stamps'): stamp_store(a, cfg, 4, 1, "L_ld_ss")
    a.label("L_end")
    a("s_endpgm")
    return a

def build(cfg):
    cfg = dict(cfg)
    cfg.setdefault('k1', NAME + '_kernel')
    hdr = open('cdna_kernels/' + NAME + '.s.ref').read().split('\n')
    head = [l for l in hdr if l.startswith(';') and '@launch' not in l and 'Override launch' not in l and 'grid=ceil' not in l]
    out = head[:15]
    out.append("; @launch grid=(256,1,1) block=(512,1,1) lds=163840")
    out.append('.amdgcn_target "amdgcn-amd-amdhsa--gfx950"')
    out.append('.text')
    out.append(gen_fused(cfg).text())
    out.append('.section .rodata,"a"')
    out.append('.p2align 6'); out.append(kd(cfg['k1'], 256, 102))
    return "\n".join(out) + "\n"

if __name__ == "__main__":
    cfg = {}
    outfn = 'cdna_kernels/' + NAME + '.s'
    for arg in sys.argv[1:]:
        if arg.startswith('-o'): outfn = arg[2:]
        elif '=' in arg:
            k, v = arg.split('=', 1); cfg[k] = v
        else: cfg[arg] = True
    txt = build(cfg)
    open(outfn, 'w').write(txt)
    print("wrote", outfn)
```

```python
import sys, math, struct
from gen import Asm, vr, sr, interleave, VM, NAME, f32hex, KSCALE, load_ptrs, sel_ptr, srd_tail, decode_ids, gen_vox, gen_vow, kd
import gen as G
from gen import (S_WG, SRD_X, SRD_WQ, SRD_WKV, SRD_KV, SRD_O, S_CNT, S_W, S_B, S_R, S_G, S_T0, S_T1, S_T2, S_T3, S_T4, S_T5, PTR,
                 S_XQ, S_WQ, S_XKV, S_WKV, S_M0, S_OFFA, S_OFFB, S_LOOP, S_KVOFF, S_KVM0, S_WM, S_WN, S_OST, S_SAVE, S_MASK, S_MASK2,
                 S_TYPE, S_W8, ST0, WS_O, stamp, stamp_store, lane_wave)
WS_F = 0xA00000

def gemm_mfmas(ACC, FA, FB, fset, czero=False, order='cc'):
    o = []
    idx = [(cc, rt) for cc in range(4) for rt in range(4)] if order == 'cc' else [(cc, rt) for rt in range(4) for cc in range(4)]
    for cc, rt in idx:
        acc = ACC + (cc*4+rt)*4
        o.append(f"v_mfma_f32_16x16x32_bf16 {vr(acc,4)}, {vr(FA[fset]+4*cc,4)}, {vr(FB[fset]+4*rt,4)}, {'0' if czero else vr(acc,4)}")
    return o


def order_reads(rd):
    A = [(rd[3*c], rd[3*c+1]) for c in range(4)]; B = [rd[3*c+2] for c in range(4)]
    return [B[0], A[0][0], A[0][1], B[1], B[2], B[3], A[1][0], A[1][1], A[2][0], A[2][1], A[3][0], A[3][1]]
NEED = {0: 2, 1: 3, 2: 4, 3: 5, 4: 7, 8: 9, 12: 11}

def phase(a, mf, newreads, extra=(), counted=False):
    nr = list(newreads); ex = list(extra); issued = 0
    for m, x in enumerate(mf):
        if counted and m in NEED:
            n = 11 - NEED[m] + issued
            a(f"s_waitcnt lgkmcnt({min(n, 15)})")
        a(x)
        if nr: a(nr.pop(0)); issued += 1
        elif ex: a(ex.pop(0))
    for x in nr + ex: a(x)

def gen_fused(cfg):
    a = Asm()
    kname = cfg['k1']
    a(f".globl {kname}\n.p2align 8\n.type {kname},@function")
    a.label(kname)
    a(f"s_cmp_ge_u32 s{S_WG}, 256")
    a(f"s_cbranch_scc1 L_end")
    stamp(a, cfg, 0)
    load_ptrs(a)
    decode_ids(a)
    T=26
    lane_wave(a, T)
    a(f"s_and_b32 s{S_WN}, s{S_W}, 1")
    a(f"s_lshr_b32 s{S_WM}, s{S_W}, 1")
    a(f"s_and_b32 s{S_TYPE}, s{S_G}, 1")
    a(f"s_lshl_b32 s{S_M0}, s{S_W}, 12")
    a(f"s_cmp_ge_u32 s{S_W8}, 4")
    a(f"s_cbranch_scc1 L_loader")
    NSLOT=5; SLOT=32768
    PER = int(cfg.get('per', 2)); LEAD = int(cfg.get('lead', 2)); PUB = int(cfg.get('pub', 7))
    def slot_set(slot): return slot // 2, (slot % 2) * SLOT
    VXA=2; VWA=8; VKXA=20; VKWA=22
    ACC=32; FA=[96,128]; FB=[112,144]; KVACC=160; KVX=164; KVW=196
    Q=96; O=160; S=[32,48]; P=[64,72]; K=[144,152]; V=[128,136]; L=224; XT=80; LS=88
    ONES=240; IDX=244; OXA=245; OWA=247; VST=251; VOL=252; VOUT=253; VDMA=254; VA=2; VB=3
    L3=T+1; L4=T+2; X1=T+3; X2=T+4; X3=T+5
    a(f"v_lshrrev_b32 v{L4}, 4, v0")
    a(f"v_and_b32 v{X1}, 15, v0")
    a(f"v_lshrrev_b32 v{X2}, 1, v{X1}")
    a(f"v_lshlrev_b32 v{X3}, 7, v{X1}")
    a(f"s_lshl_b32 s{S_T0}, s{S_WM}, 13")
    a(f"s_lshl_b32 s{S_T1}, s{S_WM}, 11")
    for s in range(2):
        a(f"v_add_u32 v{L3}, {4*s}, v{L4}")
        a(f"v_xor_b32 v{L3}, v{L3}, v{X2}")
        a(f"v_lshlrev_b32 v{L3}, 4, v{L3}")
        a(f"v_add_u32 v{L3}, v{L3}, v{X3}")
        a(f"v_add_u32 v{VXA+s}, s{S_T0}, v{L3}")
        a(f"v_add_u32 v{VXA+2+s}, 0x10000, v{VXA+s}")
        a(f"v_add_u32 v{VXA+4+s}, 0x20000, v{VXA+s}")
        a(f"v_add_u32 v{VKXA+s}, s{S_T1}, v{L3}")
    a(f"v_lshrrev_b32 v{X2}, 2, v{X1}")
    a(f"v_and_b32 v{L3}, 1, v{L4}")
    a(f"v_lshlrev_b32 v{X3}, 2, v{L3}")
    a(f"v_or_b32 v{X3}, v{X3}, v{X2}")
    a(f"v_lshlrev_b32 v{T}, 3, v{L4}")
    a(f"v_add_u32 v{T}, v{T}, v{X2}")
    a(f"v_and_b32 v{X1}, 3, v{X1}")
    a(f"v_lshlrev_b32 v{X1}, 3, v{X1}")
    a(f"s_lshl_b32 s{S_T0}, s{S_WN}, 2")
    a(f"v_xor_b32 v{L3}, s{S_WN}, v{L3}")
    a(f"v_lshlrev_b32 v{L3}, 5, v{L3}")
    a(f"v_lshlrev_b32 v{X2}, 6, v{T}")
    a(f"v_add3_u32 v{VKWA}, v{L3}, v{X2}, v{X1}")
    a(f"v_add_u32 v{VKWA}, 16384, v{VKWA}")
    a(f"v_lshlrev_b32 v{T}, 8, v{T}")
    a(f"v_add_u32 v{T}, v{T}, v{X1}")
    a(f"v_add_u32 v{T}, 16384, v{T}")
    for cc in range(4):
        a(f"s_add_u32 s{S_T1}, s{S_T0}, {cc}")
        a(f"v_xor_b32 v{X2}, s{S_T1}, v{X3}")
        a(f"v_lshlrev_b32 v{X2}, 5, v{X2}")
        a(f"v_add_u32 v{VWA+cc}, v{X2}, v{T}")
        a(f"v_add_u32 v{VWA+4+cc}, 0x10000, v{VWA+cc}")
        a(f"v_add_u32 v{VWA+8+cc}, 0x20000, v{VWA+cc}")
    for i in range(4): a(f"v_mov_b32 v{KVACC+i}, 0")
    for i in range(64): a(f"v_mov_b32 v{ACC+i}, 0")
    a(f"v_lshlrev_b32 v{VDMA}, 4, v0")
    a(f"v_and_b32 v{X1}, 15, v0")
    a(f"v_mov_b32 v{X2}, 0x3f803f80")
    a(f"v_cmp_gt_u32 vcc, 2, v{X1}")
    a(f"v_lshrrev_b32 v{X3}, 1, v{X1}")
    a("s_nop 0")
    a(f"v_cndmask_b32 v{ONES}, 0, v{X2}, vcc")
    a(f"v_cndmask_b32 v{ONES+1}, 0, v{X2}, vcc")
    a(f"v_cmp_eq_u32 vcc, 1, v{X3}")
    a(f"v_and_b32 v{X3}, 1, v{X1}")
    a("s_nop 0")
    a(f"v_cndmask_b32 v{ONES+2}, 0, v{X2}, vcc")
    a(f"v_cndmask_b32 v{ONES+3}, 0, v{X2}, vcc")
    a(f"v_cmp_eq_u32 vcc, 1, v{X3}")
    a(f"v_mov_b32 v{X2}, 0x4444")
    a(f"v_mov_b32 v{X3}, 0xeeee")
    a(f"v_cndmask_b32 v{IDX}, v{X2}, v{X3}, vcc")
    a(f"v_lshlrev_b32 v{X1}, 4, v{X1}")
    a(f"v_lshrrev_b32 v{X2}, 5, v0")
    a(f"v_lshlrev_b32 v{X2}, 8, v{X2}")
    a(f"v_add_u32 v{X1}, v{X1}, v{X2}")
    a(f"v_bfe_u32 v{X2}, v0, 4, 1")
    a(f"v_lshlrev_b32 v{X3}, 15, v{X2}")
    a(f"v_add_u32 v{VST}, v{X1}, v{X3}")
    a(f"v_lshlrev_b32 v{X3}, 11, v{X2}")
    a(f"v_add_u32 v{VOL}, v{X1}, v{X3}")
    a(f"s_lshl_b32 s{S_T0}, s{S_WN}, 14")
    a(f"s_lshl_b32 s{S_T1}, s{S_WM}, 13")
    a(f"s_add_u32 s{S_T0}, s{S_T0}, s{S_T1}")
    a(f"s_add_u32 s{S_T0}, s{S_T0}, 0x20000")
    a(f"v_add_u32 v{VOL}, s{S_T0}, v{VOL}")
    a(f"v_add_u32 v{OXA}, s{S_T1}, v{VDMA}")
    a(f"v_add_u32 v{OXA+1}, 0x20000, v{OXA}")
    a(f"v_and_b32 v{X1}, 15, v0")
    a(f"v_lshrrev_b32 v{X2}, 2, v{X1}")
    a(f"v_and_b32 v{X3}, 1, v{L4}")
    a(f"v_lshlrev_b32 v{X3}, 2, v{X3}")
    a(f"v_add_u32 v{X3}, v{X3}, v{X2}")
    a(f"v_lshrrev_b32 v{T}, 1, v{L4}")
    a(f"v_lshlrev_b32 v{T}, 4, v{T}")
    a(f"v_add_u32 v{T}, v{T}, v{X3}")
    a(f"v_lshlrev_b32 v{T}, 8, v{T}")
    a(f"v_and_b32 v{X1}, 3, v{X1}")
    a(f"v_lshlrev_b32 v{X1}, 3, v{X1}")
    a(f"v_add_u32 v{T}, v{T}, v{X1}")
    a(f"v_add_u32 v{T}, 0x10000, v{T}")
    a(f"s_lshl_b32 s{S_T0}, s{S_WN}, 2")
    for cc in range(4):
        a(f"s_add_u32 s{S_T1}, s{S_T0}, {cc}")
        a(f"v_xor_b32 v{X2}, s{S_T1}, v{X3}")
        a(f"v_lshlrev_b32 v{X2}, 5, v{X2}")
        a(f"v_add_u32 v{OWA+cc}, v{X2}, v{T}")
    a(f"v_and_b32 v{X1}, 15, v0")
    a(f"v_lshlrev_b32 v{X1}, 12, v{X1}")
    a(f"v_and_b32 v{X2}, 1, v{L4}")
    a(f"v_lshlrev_b32 v{X2}, 5, v{X2}")
    a(f"v_lshrrev_b32 v{X3}, 1, v{L4}")
    a(f"v_lshlrev_b32 v{X3}, 4, v{X3}")
    a(f"v_add3_u32 v{VOUT}, v{X1}, v{X2}, v{X3}")
    S_OO = S_XQ
    S_OUTS = S_WQ
    a(f"s_lshl_b32 s{S_T0}, s{S_R}, 3")
    a(f"s_lshl_b32 s{S_T1}, s{S_WM}, 2")
    a(f"s_add_u32 s{S_T0}, s{S_T0}, s{S_T1}")
    a(f"s_lshl_b32 s{S_T0}, s{S_T0}, 5")
    a(f"s_lshl_b32 s{S_T1}, s{S_G}, 2")
    a(f"s_add_u32 s{S_T0}, s{S_T0}, s{S_T1}")
    a(f"s_lshl_b32 s{S_T1}, s{S_WN}, 1")
    a(f"s_add_u32 s{S_T0}, s{S_T0}, s{S_T1}")
    a(f"s_lshl_b32 s{S_OO}, s{S_T0}, 10")
    a(f"s_lshl_b32 s{S_T0}, s{S_R}, 19")
    a(f"s_lshl_b32 s{S_T1}, s{S_WM}, 18")
    a(f"s_add_u32 s{S_T0}, s{S_T0}, s{S_T1}")
    a(f"s_lshl_b32 s{S_T1}, s{S_B}, 11")
    a(f"s_add_u32 s{S_T0}, s{S_T0}, s{S_T1}")
    a(f"s_lshl_b32 s{S_T1}, s{S_G}, 8")
    a(f"s_add_u32 s{S_T0}, s{S_T0}, s{S_T1}")
    a(f"s_lshl_b32 s{S_T1}, s{S_WN}, 7")
    a(f"s_add_u32 s{S_OUTS}, s{S_T0}, s{S_T1}")
    a("s_waitcnt lgkmcnt(0)")
    a(f"s_lshl_b32 s{S_T0}, s{S_B}, 18")
    a(f"s_add_u32 s{SRD_KV}, s{PTR+24}, s{S_T0}")
    a(f"s_addc_u32 s{SRD_KV+1}, s{PTR+25}, 0")
    srd_tail(a, SRD_KV, 262144)
    a(f"s_lshl_b32 s{S_T0}, s{S_B}, 22")
    a(f"s_add_u32 s{S_T0}, s{S_T0}, {WS_O}")
    a(f"s_add_u32 s{SRD_O}, s{PTR+24}, s{S_T0}")
    a(f"s_addc_u32 s{SRD_O+1}, s{PTR+25}, 0")
    srd_tail(a, SRD_O, 4*1024*1024)
    a(f"s_lshl_b32 s{S_T0}, s{S_B}, 7")
    a(f"s_add_u32 s{S_CNT}, s{PTR+22}, s{S_T0}")
    a(f"s_addc_u32 s{S_CNT+1}, s{PTR+23}, 0")
    SRD_OUT=4
    a(f"s_mov_b32 s{SRD_OUT}, s{PTR+20}")
    a(f"s_mov_b32 s{SRD_OUT+1}, s{PTR+21}")
    srd_tail(a, SRD_OUT, 2048*4096)
    stamp(a, cfg, 1)
    for gs in range(4):
        a("s_barrier")
        so = (gs % 2) * SLOT
        if gs == 2:
            for r_ in (VKXA, VKXA+1, VKWA): a(f"v_add_u32 v{r_}, 0x10000, v{r_}")
        for s in range(8):
            a(f"ds_read_b128 {vr(KVX+4*s,4)}, v{VKXA+(s&1)} offset:{so + (s>>1)*4096}")
            a(f"ds_read_b64_tr_b16 {vr(KVW+4*s,2)}, v{VKWA} offset:{so + (32*s)*64}")
            a(f"ds_read_b64_tr_b16 {vr(KVW+4*s+2,2)}, v{VKWA} offset:{so + (32*s+4)*64}")
        a(f"s_cmp_lg_u32 s{S_TYPE}, 0")
        a(f"s_cbranch_scc1 L_kv_v{gs}")
        for s in range(8):
            if s in (0,4): a(f"s_waitcnt lgkmcnt({12 if s==0 else 0})")
            a(f"v_mfma_f32_16x16x32_bf16 {vr(KVACC,4)}, {vr(KVW+4*s,4)}, {vr(KVX+4*s,4)}, {vr(KVACC,4)}")
        a(f"s_branch L_kv_e{gs}")
        a.label(f"L_kv_v{gs}")
        for s in range(8):
            if s in (0,4): a(f"s_waitcnt lgkmcnt({12 if s==0 else 0})")
            a(f"v_mfma_f32_16x16x32_bf16 {vr(KVACC,4)}, {vr(KVX+4*s,4)}, {vr(KVW+4*s,4)}, {vr(KVACC,4)}")
        a.label(f"L_kv_e{gs}")
    stamp(a, cfg, 2)
    c=T; g_=T+1; x1=T+2; x2=T+3; ad=T+4
    a(f"v_and_b32 v{c}, 15, v0")
    a(f"v_lshrrev_b32 v{g_}, 4, v0")
    a(f"s_cmp_lg_u32 s{S_TYPE}, 0")
    a(f"s_cselect_b32 s{S_T0}, s{S_WM}, s{S_WN}")
    a(f"s_cselect_b32 s{S_T1}, s{S_WN}, s{S_WM}")
    a(f"s_cselect_b32 s{S_T2}, 0, 1")
    a(f"s_lshl_b32 s{S_T0}, s{S_T0}, 10")
    a(f"s_lshl_b32 s{S_T1}, s{S_T1}, 8")
    a(f"s_add_u32 s{S_T0}, s{S_T0}, s{S_T1}")
    a(f"s_lshl_b32 s{S_T1}, s{S_TYPE}, 11")
    a(f"s_add_u32 s{S_T0}, s{S_T0}, s{S_T1}")
    a(f"s_lshl_b32 s{S_T1}, s{S_R}, 2")
    a(f"s_lshr_b32 s{S_T3}, s{S_G}, 1")
    a(f"s_add_u32 s{S_T1}, s{S_T1}, s{S_T3}")
    a(f"s_lshl_b32 s{S_T1}, s{S_T1}, 12")
    a(f"s_add_u32 s{S_T0}, s{S_T0}, s{S_T1}")
    a(f"v_lshrrev_b32 v{x1}, s{S_T2}, v{g_}")
    a(f"v_and_b32 v{x1}, 1, v{x1}")
    a(f"v_lshlrev_b32 v{x1}, 9, v{x1}")
    a(f"s_xor_b32 s{S_T2}, s{S_T2}, 1")
    a(f"v_lshrrev_b32 v{x2}, s{S_T2}, v{g_}")
    a(f"v_and_b32 v{x2}, 1, v{x2}")
    a(f"v_lshlrev_b32 v{x2}, 3, v{x2}")
    a(f"v_lshlrev_b32 v{ad}, 4, v{c}")
    a(f"v_add3_u32 v{ad}, v{ad}, v{x1}, v{x2}")
    a(f"s_cmp_lg_u32 s{S_TYPE}, 0")
    a(f"s_cselect_b32 s{S_T1}, 1.0, {f32hex(KSCALE)}")
    a("s_nop 3")
    for i in range(4): a(f"v_mul_f32 v{KVACC+i}, s{S_T1}, v{KVACC+i}")
    a(f"v_cvt_pk_bf16_f32 v{T}, v{KVACC}, v{KVACC+1}")
    a(f"v_cvt_pk_bf16_f32 v{T+1}, v{KVACC+2}, v{KVACC+3}")
    a(f"buffer_store_dwordx2 {vr(T,2)}, v{ad}, s[{SRD_KV}:{SRD_KV+3}], s{S_T0} offen sc1")

    def q_reads(qs, s, fset):
        st_, so = slot_set((qs+4) % NSLOT)
        o = []
        xa = VXA + 2*st_ + s
        wa = VWA + 4*st_
        for cc in range(4):
            o.append(f"ds_read_b64_tr_b16 {vr(FA[fset]+4*cc,2)}, v{wa+cc} offset:{so + (32*s)*256}")
            o.append(f"ds_read_b64_tr_b16 {vr(FA[fset]+4*cc+2,2)}, v{wa+cc} offset:{so + (32*s+4)*256}")
            o.append(f"ds_read_b128 {vr(FB[fset]+4*cc,4)}, v{xa} offset:{so + cc*2048}")
        return o
    zero_list = [f"v_mov_b32 v{O+i}, 0" for i in range(64)] + [f"v_mov_b32 v{L+i}, 0" for i in range(16)]
    for qs in range(16):
        gs = qs+4
        if gs == PUB: a("s_waitcnt vmcnt(0) lgkmcnt(0)")
        else: a("s_waitcnt lgkmcnt(0)")
        a("s_barrier")
        if gs == PUB:
            a(f"s_cmp_lg_u32 s{S_W}, 0")
            a(f"s_cbranch_scc1 L_nopub")
            a(f"v_mov_b32 v{T+2}, 0")
            a(f"v_mov_b32 v{T+3}, 1")
            a(f"s_mov_b64 s[{S_SAVE}:{S_SAVE+1}], exec")
            a(f"s_mov_b64 exec, 1")
            a(f"global_atomic_add v{T+2}, v{T+3}, s[{S_CNT}:{S_CNT+1}] sc1")
            a(f"s_mov_b64 exec, s[{S_SAVE}:{S_SAVE+1}]")
            a.label("L_nopub")
        r0 = q_reads(qs, 0, 0); r1 = q_reads(qs, 1, 1)
        z = []
        if 2 <= qs <= 11: z = zero_list[8*(qs-2):8*(qs-1)]
        r0 = order_reads(r0); r1 = order_reads(r1)
        if qs == 0: a(r0)
        else: phase(a, gemm_mfmas(ACC,FA,FB,1), r0, z[:4])
        phase(a, gemm_mfmas(ACC,FA,FB,0), r1, z[4:], counted=True)
    a("s_waitcnt lgkmcnt(0)")
    a(gemm_mfmas(ACC,FA,FB,1))
    a("s_barrier")
    stamp(a, cfg, 3)

    a(f"v_mov_b32 v{VA}, v{VDMA}")
    a(f"v_add_u32 v{VB}, 0x8000, v{VDMA}")
    a(f"ds_read_b128 {vr(K[0],4)}, v{VDMA} offset:0")
    a(f"ds_read_b128 {vr(K[0]+4,4)}, v{VDMA} offset:1024")
    a(f"ds_read_b128 {vr(V[0],4)}, v{VDMA} offset:2048")
    a(f"ds_read_b128 {vr(V[0]+4,4)}, v{VDMA} offset:3072")
    a(f"ds_read_b128 {vr(K[1],4)}, v{VDMA} offset:4096")
    a(f"ds_read_b128 {vr(K[1]+4,4)}, v{VDMA} offset:{4096+1024}")
    for i in range(8): a(f"v_mov_b32 v{V[1]+i}, 0")
    tiles = [(hh, rb) for hh in range(2) for rb in range(2)]
    for (hh, rb) in tiles:
        t = hh*2+rb
        for m in range(2):
            cc = 2*hh+m
            x = ACC + (cc*4+2*rb)*4; y = ACC + (cc*4+2*rb+1)*4
            q = Q + t*8 + m*4
            a(f"v_cvt_pk_bf16_f32 v{q}, v{x}, v{x+1}")
            a(f"v_cvt_pk_bf16_f32 v{q+1}, v{x+2}, v{x+3}")
            a(f"v_cvt_pk_bf16_f32 v{q+2}, v{y}, v{y+1}")
            a(f"v_cvt_pk_bf16_f32 v{q+3}, v{y+2}, v{y+3}")
    for i in range(8): a(f"v_mov_b32 v{P[1]+i}, 0")
    for t in range(4):
        for m in range(2):
            q = Q + t*8 + m*4
            a(f"v_permlane16_swap_b32 v{q}, v{q+2}")
            a(f"v_permlane16_swap_b32 v{q+1}, v{q+3}")
    a(f"s_mov_b32 s{S_KVM0}, 0x8000")
    a(f"s_mov_b32 s{S_LOOP}, 8")
    a("s_waitcnt lgkmcnt(0)")
    a(f"v_mfma_f32_32x32x16_bf16 {vr(S[0],16)}, {vr(K[0],4)}, {vr(Q,4)}, 0")
    a(f"v_mfma_f32_32x32x16_bf16 {vr(S[0],16)}, {vr(K[0]+4,4)}, {vr(Q+4,4)}, {vr(S[0],16)}")
    stamp(a, cfg, 4)
    a("s_nop 7")
    a("s_nop 3")
    a(".p2align 6")
    a.label("L_attn")
    patt = cfg.get('patt', "A e e e c B r e e c e C r e c e e D r c e e c e e c e e c e S r c").split()
    assert patt.count('e') == 16 and patt.count('c') == 8
    NQ = 4; NSTEP = 8
    for step in range(NSTEP):
        for t in range(NQ):
            u = step*NQ + t
            un = u+1; stepn = un//NQ; tn = un % NQ
            up = u-1; stepp = up//NQ; tp = up % NQ
            sc = S[u%2]; sn = S[(u+1)%2]; Pp = P[(u-1)%2]; Pc = P[u%2]
            M = {
              'A': f"v_mfma_f32_32x32x16_bf16 {vr(sn,16)}, {vr(K[stepn%2],4)}, {vr(Q+tn*8,4)}, 0",
              'B': f"v_mfma_f32_32x32x16_bf16 {vr(sn,16)}, {vr(K[stepn%2]+4,4)}, {vr(Q+tn*8+4,4)}, {vr(sn,16)}",
              'C': f"v_mfma_f32_32x32x16_bf16 {vr(O+tp*16,16)}, {vr(V[stepp%2],4)}, {vr(Pp,4)}, {vr(O+tp*16,16)}",
              'D': f"v_mfma_f32_32x32x16_bf16 {vr(O+tp*16,16)}, {vr(V[stepp%2]+4,4)}, {vr(Pp+4,4)}, {vr(O+tp*16,16)}",
              'S': f"v_smfmac_f32_16x16x64_bf16 {vr(L+tp*4,4)}, {vr(ONES,4)}, {vr(Pp,8)}, v{IDX}",
            }
            ei = ci = ri = 0
            for tok in patt:
                if tok == 'e': a(f"v_exp_f32 v{sc+ei}, v{sc+ei}"); ei += 1
                elif tok == 'c': a(f"v_cvt_pk_bf16_f32 v{Pc+ci}, v{sc+2*ci}, v{sc+2*ci+1}"); ci += 1
                elif tok == 'x': a("s_nop 0")
                elif tok == 'R' or tok == 'r':
                    def addr(st): return (VA, st*4096) if st < 8 else (VB, (st-8)*4096)
                    rv, ov = addr(step+1); rk, ok = addr(step+2)
                    rds = [f"ds_read_b128 {vr(V[(step+1)%2],4)}, v{rv} offset:{ov+2048}",
                           f"ds_read_b128 {vr(V[(step+1)%2]+4,4)}, v{rv} offset:{ov+3072}",
                           f"ds_read_b128 {vr(K[step%2],4)}, v{rk} offset:{ok}",
                           f"ds_read_b128 {vr(K[step%2]+4,4)}, v{rk} offset:{ok+1024}"]
                    if t == NQ-1:
                        if ri == 0 and step == 6 and not cfg.get('a_nobar'): a("s_barrier")
                        if tok == 'R': a(rds)
                        else: a(rds[ri])
                    first_r = (ri == 0); ri += 1
                    if step == 7 and t == 0 and first_r:
                        a(f"s_cmp_eq_u32 s{S_KVM0}, 0x8000")
                        a(f"s_cselect_b32 s{S_T0}, 0x20000, 0")
                        a(f"s_cmp_eq_u32 s{S_KVM0}, 0")
                        a(f"s_cselect_b32 s{S_KVM0}, 0x8000, s{S_T0}")
                else:
                    if tok == 'A' and tn == 0: a("s_waitcnt lgkmcnt(0)")
                    if tok == 'C' and tp == 0: a("s_waitcnt lgkmcnt(2)")
                    a(M[tok])
                    if tok == 'A' and step == NSTEP-1 and t == NQ-1:
                        a(f"s_sub_u32 s{S_LOOP}, s{S_LOOP}, 1")
                        a(f"s_cmp_lg_u32 s{S_LOOP}, 0")
    a(f"v_mov_b32 v{VA}, v{VB}")
    a(f"v_add_u32 v{VB}, s{S_KVM0}, v{VDMA}")
    a(f"s_cbranch_scc1 L_attn")
    a("s_nop 0")
    a(f"v_mfma_f32_32x32x16_bf16 {vr(O+48,16)}, {vr(V[1],4)}, {vr(P[1],4)}, {vr(O+48,16)}")
    a(f"v_mfma_f32_32x32x16_bf16 {vr(O+48,16)}, {vr(V[1]+4,4)}, {vr(P[1]+4,4)}, {vr(O+48,16)}")
    a(f"v_smfmac_f32_16x16x64_bf16 {vr(L+12,4)}, {vr(ONES,4)}, {vr(P[1],8)}, v{IDX}")
    stamp(a, cfg, 5)
    def lsum(first):
        order = [0,1,2,3]
        for t in order:
            if t == 3 and first: a("s_nop 7")
            a(f"v_add_f32 v{XT+2*t}, v{L+4*t}, v{L+4*t+1}")
            a(f"v_add_f32 v{XT+2*t+1}, v{L+4*t+2}, v{L+4*t+3}")
        a("s_nop 1")
        for t in range(4): a(f"v_permlane16_swap_b32 v{XT+2*t}, v{XT+2*t+1}")
        a("s_nop 0")
        for t in range(4): a(f"v_mov_b32 v{LS+t}, v{XT+2*t}")
        a("s_nop 0")
        for t in range(4): a(f"v_permlane32_swap_b32 v{LS+t}, v{XT+2*t}")
    FS = 64
    for t in range(3):
        a(f"v_pk_add_f32 {vr(FS+2*t,2)}, {vr(O+16*t,2)}, {vr(O+16*t+2,2)}")
    for i in range(2, 8):
        for t in range(3):
            a(f"v_pk_add_f32 {vr(FS+2*t,2)}, {vr(FS+2*t,2)}, {vr(O+16*t+2*i,2)}")
    lsum(True)
    a(f"v_pk_add_f32 {vr(FS+6,2)}, {vr(O+48,2)}, {vr(O+50,2)}")
    for i in range(2, 8): a(f"v_pk_add_f32 {vr(FS+6,2)}, {vr(FS+6,2)}, {vr(O+48+2*i,2)}")
    for t in range(4): a(f"v_add_f32 v{FS+2*t}, v{FS+2*t}, v{FS+2*t+1}")
    a(f"v_add_f32 v{FS}, v{FS}, v{FS+2}")
    a(f"v_add_f32 v{FS+4}, v{FS+4}, v{FS+6}")
    a(f"v_add_f32 v{FS}, v{FS}, v{FS+4}")
    a(f"v_min_f32 v{FS+1}, v{LS}, v{LS+1}")
    a(f"v_min3_f32 v{FS+1}, v{LS+2}, v{LS+3}, v{FS+1}")
    a(f"v_max_f32 v{FS+2}, v{LS}, v{LS+1}")
    a(f"v_max3_f32 v{FS+2}, v{LS+2}, v{LS+3}, v{FS+2}")
    a(f"v_add_f32 v{FS+3}, v{LS}, v{LS+1}")
    a(f"v_add_f32 v{FS+3}, v{FS+3}, v{LS+2}")
    a(f"v_add_f32 v{FS+3}, v{FS+3}, v{LS+3}")
    a(f"s_mov_b32 s{S_T0}, 0x71800000")
    a(f"s_movk_i32 s{S_T1}, 0x1f8")
    a(f"v_cmp_le_f32 vcc, 1.0, v{FS+1}")
    a(f"v_cmp_ge_f32 s[{S_MASK}:{S_MASK+1}], s{S_T0}, v{FS+2}")
    a(f"v_cmp_class_f32 s[{S_MASK2}:{S_MASK2+1}], v{FS}, s{S_T1}")
    a(f"v_cmp_class_f32 s[{S_SAVE}:{S_SAVE+1}], v{FS+3}, s{S_T1}")
    for t in range(4): a(f"v_rcp_f32 v{LS+t}, v{LS+t}")
    a(f"s_and_b64 s[{S_MASK}:{S_MASK+1}], s[{S_MASK}:{S_MASK+1}], vcc")
    a(f"s_and_b64 s[{S_MASK}:{S_MASK+1}], s[{S_MASK}:{S_MASK+1}], s[{S_MASK2}:{S_MASK2+1}]")
    a(f"s_and_b64 s[{S_MASK}:{S_MASK+1}], s[{S_MASK}:{S_MASK+1}], s[{S_SAVE}:{S_SAVE+1}]")
    a(f"s_cmp_eq_u64 s[{S_MASK}:{S_MASK+1}], exec")
    if cfg.get('force_fallback'): a("s_cmp_eq_u32 s2, 0x7fffffff")
    a(f"s_cbranch_scc1 L_norm")
    NEG = S[0]; SS = S[1]; MX = XT; KF = K[0]; VF = V[0]; PP = P[0]
    for t in range(4):
        a(f"v_mov_b32 v{MX}, 0xff800000")
        a(f"s_mov_b32 s{S_T2}, 0")
        a.label(f"L_fb1_{t}")
        a(f"buffer_load_dwordx4 {vr(KF,4)}, v{VDMA}, s[{SRD_KV}:{SRD_KV+3}], s{S_T2} offen sc1")
        a(f"buffer_load_dwordx4 {vr(KF+4,4)}, v{VDMA}, s[{SRD_KV}:{SRD_KV+3}], s{S_T2} offen offset:1024 sc1")
        a("s_waitcnt vmcnt(0)")
        a(f"v_mfma_f32_32x32x16_bf16 {vr(SS,16)}, {vr(KF,4)}, {vr(Q+t*8,4)}, 0")
        a(f"v_mfma_f32_32x32x16_bf16 {vr(SS,16)}, {vr(KF+4,4)}, {vr(Q+t*8+4,4)}, {vr(SS,16)}")
        a("s_nop 15")
        for i in range(8): a(f"v_max3_f32 v{MX}, v{SS+2*i}, v{SS+2*i+1}, v{MX}")
        a(f"s_add_u32 s{S_T2}, s{S_T2}, 4096")
        a(f"s_cmp_lt_u32 s{S_T2}, 262144")
        a(f"s_cbranch_scc1 L_fb1_{t}")
        a(f"v_mov_b32 v{MX+1}, v{MX}")
        a("s_nop 1")
        a(f"v_permlane32_swap_b32 v{MX}, v{MX+1}")
        a("s_nop 1")
        a(f"v_max_f32 v{MX}, v{MX}, v{MX+1}")
        for i in range(16): a(f"v_sub_f32 v{NEG+i}, 0, v{MX}")
        for i in range(16): a(f"v_mov_b32 v{O+16*t+i}, 0")
        for i in range(4): a(f"v_mov_b32 v{L+4*t+i}, 0")
        a(f"s_mov_b32 s{S_T2}, 0")
        a.label(f"L_fb2_{t}")
        a(f"buffer_load_dwordx4 {vr(KF,4)}, v{VDMA}, s[{SRD_KV}:{SRD_KV+3}], s{S_T2} offen sc1")
        a(f"buffer_load_dwordx4 {vr(KF+4,4)}, v{VDMA}, s[{SRD_KV}:{SRD_KV+3}], s{S_T2} offen offset:1024 sc1")
        a(f"buffer_load_dwordx4 {vr(VF,4)}, v{VDMA}, s[{SRD_KV}:{SRD_KV+3}], s{S_T2} offen offset:2048 sc1")
        a(f"buffer_load_dwordx4 {vr(VF+4,4)}, v{VDMA}, s[{SRD_KV}:{SRD_KV+3}], s{S_T2} offen offset:3072 sc1")
        a("s_waitcnt vmcnt(0)")
        a(f"v_mfma_f32_32x32x16_bf16 {vr(SS,16)}, {vr(KF,4)}, {vr(Q+t*8,4)}, {vr(NEG,16)}")
        a(f"v_mfma_f32_32x32x16_bf16 {vr(SS,16)}, {vr(KF+4,4)}, {vr(Q+t*8+4,4)}, {vr(SS,16)}")
        a("s_nop 15")
        for i in range(16): a(f"v_exp_f32 v{SS+i}, v{SS+i}")
        a("s_nop 1")
        for i in range(8): a(f"v_cvt_pk_bf16_f32 v{PP+i}, v{SS+2*i}, v{SS+2*i+1}")
        a("s_nop 2")
        a(f"v_mfma_f32_32x32x16_bf16 {vr(O+16*t,16)}, {vr(VF,4)}, {vr(PP,4)}, {vr(O+16*t,16)}")
        a(f"v_mfma_f32_32x32x16_bf16 {vr(O+16*t,16)}, {vr(VF+4,4)}, {vr(PP+4,4)}, {vr(O+16*t,16)}")
        a(f"v_smfmac_f32_16x16x64_bf16 {vr(L+4*t,4)}, {vr(ONES,4)}, {vr(PP,8)}, v{IDX}")
        a("s_nop 15")
        a(f"s_add_u32 s{S_T2}, s{S_T2}, 4096")
        a(f"s_cmp_lt_u32 s{S_T2}, 262144")
        a(f"s_cbranch_scc1 L_fb2_{t}")
    a("s_nop 7")
    lsum(False)
    a("s_nop 1")
    for t in range(4): a(f"v_rcp_f32 v{LS+t}, v{LS+t}")
    a("s_nop 0")
    a.label("L_norm")
    for t in range(4):
        hh, rb = t>>1, t&1
        for i in range(8):
            a(f"v_pk_mul_f32 {vr(O+16*t+2*i,2)}, {vr(O+16*t+2*i,2)}, {vr(LS+t - (LS+t)%2,2)} op_sel:[0,{(LS+t)%2}] op_sel_hi:[1,{(LS+t)%2}]")
        R = O+16*t
        for i in range(8): a(f"v_cvt_pk_bf16_f32 v{R+i}, v{R+2*i}, v{R+2*i+1}")
        a(f"s_add_u32 s{S_T0}, s{S_OO}, {(2*rb*32 + hh)*1024}")
        a(f"buffer_store_dwordx4 {vr(R,4)}, v{VST}, s[{SRD_O}:{SRD_O+3}], s{S_T0} offen sc1")
        a(f"buffer_store_dwordx4 {vr(R+4,4)}, v{VST}, s[{SRD_O}:{SRD_O+3}], s{S_T0} offen offset:512 sc1")
        a(f"ds_write_b128 v{VOL}, {vr(R,4)} offset:{rb*4096 + hh*1024}")
        a(f"ds_write_b128 v{VOL}, {vr(R+4,4)} offset:{rb*4096 + hh*1024 + 512}")
    stamp(a, cfg, 6)
    def o_reads(st, s, fset):
        wo_ = (st % 4)*16384
        osl = st % 6
        xa, oo = (OXA+1, osl*16384) if osl < 2 else (OXA, (osl-2)*16384)
        o = []
        for cc in range(4):
            o.append(f"ds_read_b64_tr_b16 {vr(FA[fset]+4*cc,2)}, v{OWA+cc} offset:{wo_ + (32*s)*256}")
            o.append(f"ds_read_b64_tr_b16 {vr(FA[fset]+4*cc+2,2)}, v{OWA+cc} offset:{wo_ + (32*s+8)*256}")
            o.append(f"ds_read_b128 {vr(FB[fset]+4*cc,4)}, v{xa} offset:{oo + cc*2048 + s*1024}")
        return o
    for st in range(16):
        if st == 1: a("s_waitcnt vmcnt(0) lgkmcnt(0)")
        else: a("s_waitcnt lgkmcnt(0)")
        a("s_barrier")
        if st == 2: stamp(a, cfg, 7)
        r0 = o_reads(st, 0, 0); r1 = o_reads(st, 1, 1)
        r0 = order_reads(r0); r1 = order_reads(r1)
        if st == 0: a(r0)
        else: phase(a, gemm_mfmas(ACC,FA,FB,1), r0)
        phase(a, gemm_mfmas(ACC,FA,FB,0, czero=(st == 0)), r1, counted=True)
    a("s_waitcnt lgkmcnt(0)")
    a(gemm_mfmas(ACC,FA,FB,1, order='rt'))
    OUTF = cfg.get('outflags', 'sc0 sc1')
    R = 96
    k = 0
    for rt in range(4):
        if rt == 3: a("s_nop 1")
        qs_ = []
        for cp in range(2):
            x = ACC + ((2*cp)*4+rt)*4; y = ACC + ((2*cp+1)*4+rt)*4
            q = R + 4*k; k += 1; qs_.append(q)
            a(f"v_cvt_pk_bf16_f32 v{q}, v{x}, v{x+1}")
            a(f"v_cvt_pk_bf16_f32 v{q+1}, v{x+2}, v{x+3}")
            a(f"v_cvt_pk_bf16_f32 v{q+2}, v{y}, v{y+1}")
            a(f"v_cvt_pk_bf16_f32 v{q+3}, v{y+2}, v{y+3}")
        a(f"s_add_u32 s{S_T0}, s{S_OUTS}, {rt*16*4096}")
        a("s_nop 0")
        for q in qs_:
            a(f"v_permlane16_swap_b32 v{q}, v{q+2}")
            a(f"v_permlane16_swap_b32 v{q+1}, v{q+3}")
        a("s_nop 0")
        for cp, q in enumerate(qs_):
            a(f"buffer_store_dwordx4 {vr(q,4)}, v{VOUT}, s[{SRD_OUT}:{SRD_OUT+3}], s{S_T0} offen offset:{cp*64} {OUTF}")
    if cfg.get('stamps'):
        a("s_waitcnt vmcnt(0)")
        stamp(a, cfg, 8)
        stamp_store(a, cfg, 9, 0, "L_k1_ss")
        if cfg.get('dbgout'):
            WGSEL = int(cfg.get('dbgwg', 0))
            a(f"s_cmp_lg_u32 s{S_WG}, {WGSEL}")
            a("s_cbranch_scc1 L_dd")
            a(f"s_cmp_lg_u32 s{S_W}, 0")
            a("s_cbranch_scc1 L_dd")
            a("v_mov_b32 v6, 0")
            a("s_mov_b64 exec, 1")
            for i in range(1, 9):
                a(f"s_sub_u32 s{S_T0}, s{ST0+2*i}, s{ST0}")
                a(f"v_mov_b32 v5, s{S_T0}")
                a(f"global_store_dword v6, v5, s[{PTR+22}:{PTR+23}] offset:{4*i}")
            a.label("L_dd")
    a("s_endpgm")

    a.label("L_loader")
    VOX=2; VOW=6; VOWKV=10; VL=11; POLL=12; VOWO=13; VOB=17; WREG=40
    SRD_WO=12; S_FLAG=74
    gen_vox(a, VOX, T)
    X1=T+2; X2=T+3
    a(f"v_lshrrev_b32 v{X1}, 5, v0")
    a(f"v_lshlrev_b32 v{X1}, 1, v{X1}")
    a(f"v_and_b32 v{X2}, 3, v0")
    a(f"v_xor_b32 v{X1}, v{X1}, v{X2}")
    a(f"v_lshlrev_b32 v{X1}, 4, v{X1}")
    a(f"v_lshrrev_b32 v{X2}, 2, v0")
    a(f"v_lshlrev_b32 v{X2}, 6, v{X2}")
    a(f"v_add_u32 v{VOWKV}, v{X1}, v{X2}")
    a(f"s_lshl_b32 s{S_T0}, s{S_R}, 18")
    a(f"s_lshl_b32 s{S_T1}, s{S_W}, 16")
    a(f"s_add_u32 s{S_XQ}, s{S_T0}, s{S_T1}")
    a(f"s_lshl_b32 s{S_T1}, s{S_W}, 15")
    a(f"s_lshl_b32 s{S_T2}, s{S_G}, 8")
    a(f"s_add_u32 s{S_WQ}, s{S_T1}, s{S_T2}")
    a(f"s_lshr_b32 s{S_T1}, s{S_G}, 1")
    a(f"s_lshl_b32 s{S_T1}, s{S_T1}, 16")
    a(f"s_add_u32 s{S_XKV}, s{S_T0}, s{S_T1}")
    a(f"s_lshl_b32 s{S_T1}, s{S_W}, 7")
    a(f"s_add_u32 s{S_XKV}, s{S_XKV}, s{S_T1}")
    S_QROT = S_KVM0
    a(f"s_lshl_b32 s{S_QROT}, s{S_G}, 1")
    a(f"s_and_b32 s{S_T4}, s{S_R}, 1")
    a(f"s_add_u32 s{S_QROT}, s{S_QROT}, s{S_T4}")
    a("s_waitcnt lgkmcnt(0)")
    a(f"s_cmp_lg_u32 s{S_B}, 0")
    sel_ptr(a, SRD_X, 0, 10)
    sel_ptr(a, S_T0, 4, 14)
    sel_ptr(a, S_T2, 6, 16)
    sel_ptr(a, SRD_WQ, 2, 12)
    a(f"s_cmp_lg_u32 s{S_TYPE}, 0")
    a(f"s_cselect_b32 s{SRD_WKV}, s{S_T2}, s{S_T0}")
    a(f"s_cselect_b32 s{SRD_WKV+1}, s{S_T2+1}, s{S_T0+1}")
    srd_tail(a, SRD_X, 2048*2048)
    srd_tail(a, SRD_WKV, 1024*64)
    srd_tail(a, SRD_WQ, 1024*2048)
    vm = VM()
    LDF = 'sc1'
    def dma_stage(gs):
        o = []
        slot = gs % NSLOT
        if gs < 4:
            j = gs
            o.append(f"s_add_u32 m0, s{S_M0}, {slot*SLOT}")
            o.append(f"s_add_u32 s{S_OFFA}, s{S_XKV}, {j*512}")
            for i in range(4):
                o.append(f"buffer_load_dwordx4 v{VOX+i}, s[{SRD_X}:{SRD_X+3}], s{S_OFFA} offen offset:{i*1024} lds"); vm.issue(('st',gs))
            o.append(f"s_add_u32 m0, s{S_M0}, {slot*SLOT+16384}")
            o.append(f"s_add_u32 s{S_OFFB}, s{S_M0}, {j*16384}")
            for i in range(4):
                o.append(f"buffer_load_dwordx4 v{VOWKV}, s[{SRD_WKV}:{SRD_WKV+3}], s{S_OFFB} offen offset:{i*1024} lds"); vm.issue(('st',gs))
        else:
            qs = gs-4
            o.append(f"s_add_u32 s{S_T4}, s{S_QROT}, {qs}")
            o.append(f"s_and_b32 s{S_T4}, s{S_T4}, 15")
            o.append(f"s_lshl_b32 s{S_OFFA}, s{S_T4}, 7")
            o.append(f"s_add_u32 s{S_OFFA}, s{S_OFFA}, s{S_XQ}")
            o.append(f"s_add_u32 m0, s{S_M0}, {slot*SLOT}")
            o.append(f"s_lshl_b32 s{S_OFFB}, s{S_T4}, 17")
            for i in range(4):
                o.append(f"buffer_load_dwordx4 v{VOX+i}, s[{SRD_X}:{SRD_X+3}], s{S_OFFA} offen offset:{i*1024} lds"); vm.issue(('st',gs))
            o.append(f"s_add_u32 m0, s{S_M0}, {slot*SLOT+16384}")
            o.append(f"s_add_u32 s{S_OFFB}, s{S_OFFB}, s{S_WQ}")
            for j in range(4):
                o.append(f"buffer_load_dwordx4 v{VOW+j}, s[{SRD_WQ}:{SRD_WQ+3}], s{S_OFFB} offen offset:{j*1024} lds"); vm.issue(('st',gs))
        return o
    for gs in range(4): a(dma_stage(gs))
    gen_vow(a, VOW, T, lambda j: (j>>1)&1)
    a(dma_stage(4))
    gen_vow(a, VOWO, T, lambda j: j&1)
    a(f"v_lshlrev_b32 v{VL}, 4, v0")
    a(f"v_lshlrev_b32 v{VOB}, 4, v0")
    a(f"v_add_u32 v{VOB+1}, {32768-2048}, v{VOB}")
    a(f"s_lshl_b32 s{S_T0}, s{S_B}, 18")
    a(f"s_add_u32 s{SRD_KV}, s{PTR+24}, s{S_T0}")
    a(f"s_addc_u32 s{SRD_KV+1}, s{PTR+25}, 0")
    srd_tail(a, SRD_KV, 262144)
    a(f"s_lshl_b32 s{S_T0}, s{S_B}, 22")
    a(f"s_add_u32 s{S_T0}, s{S_T0}, {WS_O}")
    a(f"s_add_u32 s{SRD_O}, s{PTR+24}, s{S_T0}")
    a(f"s_addc_u32 s{SRD_O+1}, s{PTR+25}, 0")
    srd_tail(a, SRD_O, 4*1024*1024)
    a(f"s_lshl_b32 s{S_T0}, s{S_B}, 7")
    a(f"s_add_u32 s{S_CNT}, s{PTR+22}, s{S_T0}")
    a(f"s_addc_u32 s{S_CNT+1}, s{PTR+23}, 0")
    a(f"s_lshl_b32 s{S_T0}, s{S_B}, 4")
    a(f"s_add_u32 s{S_T0}, s{S_T0}, s{S_R}")
    a(f"s_lshl_b32 s{S_T0}, s{S_T0}, 7")
    a(f"s_add_u32 s{S_T0}, s{S_T0}, {WS_F}")
    a(f"s_add_u32 s{S_FLAG}, s{PTR+24}, s{S_T0}")
    a(f"s_addc_u32 s{S_FLAG+1}, s{PTR+25}, 0")
    a(f"s_lshl_b32 s{S_T0}, s{S_G}, 2")
    a(f"v_mov_b32 v{T}, s{S_T0}")
    a(f"v_mov_b32 v{T+1}, 0")
    a(f"s_cmp_lg_u32 s{S_W}, 0")
    a(f"s_cbranch_scc1 L_nozero")
    a(f"s_mov_b64 exec, 1")
    a(f"global_store_dword v{T}, v{T+1}, s[{S_FLAG}:{S_FLAG+1}] sc1")
    a(f"s_mov_b64 exec, -1")
    a.label("L_nozero")
    zero_pos = len(vm.ops)
    S_M8 = S_XKV
    a(f"s_lshl_b32 s{S_M8}, s{S_W}, 13")
    KVB = [0, 32768, 131072]
    def kv_dma(st):
        o = []
        for h in range(2):
            o.append(f"s_add_u32 m0, s{S_M8}, {KVB[st%3] + h*4096}")
            o.append(f"s_add_u32 s{S_OFFA}, s{S_M8}, {st*32768 + h*4096}")
            for i in range(4):
                o.append(f"buffer_load_dwordx4 v{VL}, s[{SRD_KV}:{SRD_KV+3}], s{S_OFFA} offen offset:{i*1024} {LDF} lds"); vm.issue(('kv',st))
        return o
    def touch():
        a(f"v_lshrrev_b32 v{T}, 4, v0")
        a(f"v_lshlrev_b32 v{T}, 11, v{T}")
        a(f"v_and_b32 v{T+1}, 15, v0")
        a(f"v_lshlrev_b32 v{T+1}, 7, v{T+1}")
        a(f"v_add_u32 v{T}, v{T}, v{T+1}")
        a(f"s_lshl_b32 s{S_T0}, s{S_R}, 18")
        a(f"s_lshl_b32 s{S_T1}, s{S_G}, 15")
        a(f"s_add_u32 s{S_T0}, s{S_T0}, s{S_T1}")
        a(f"s_lshl_b32 s{S_T1}, s{S_W}, 13")
        a(f"s_add_u32 s{S_T0}, s{S_T0}, s{S_T1}")
        a(f"buffer_load_dword v{WREG}, v{T}, s[{SRD_X}:{SRD_X+3}], s{S_T0} offen"); vm.issue('tch')
        a(f"v_lshrrev_b32 v{T}, 1, v0")
        a(f"v_lshlrev_b32 v{T}, 11, v{T}")
        a(f"v_and_b32 v{T+1}, 1, v0")
        a(f"v_lshlrev_b32 v{T+1}, 7, v{T+1}")
        a(f"v_add_u32 v{T}, v{T}, v{T+1}")
        a(f"s_and_b32 s{S_T0}, s{S_R}, 3")
        a(f"s_lshl_b32 s{S_T0}, s{S_T0}, 19")
        a(f"s_lshl_b32 s{S_T1}, s{S_W}, 17")
        a(f"s_add_u32 s{S_T0}, s{S_T0}, s{S_T1}")
        a(f"s_lshl_b32 s{S_T1}, s{S_G}, 8")
        a(f"s_add_u32 s{S_T0}, s{S_T0}, s{S_T1}")
        a(f"buffer_load_dword v{WREG+1}, v{T}, s[{SRD_WQ}:{SRD_WQ+3}], s{S_T0} offen"); vm.issue('tch')
        a(f"s_add_u32 s{S_T0}, s{S_T0}, {32*2048}")
        a(f"buffer_load_dword v{WREG+2}, v{T}, s[{SRD_WQ}:{SRD_WQ+3}], s{S_T0} offen"); vm.issue('tch')
    TOUCHAT = int(cfg.get('touchat', -1))
    POLLAT = int(cfg.get('pollat', 14))
    for gs in range(20):
        need = vm.wait_n(('st',gs))
        if gs == PUB: need = min(need, len(vm.ops) - zero_pos)
        if gs == 16: need = min(need, vm.wait_n('poll'))
        a(f"s_waitcnt vmcnt({need})")
        a("s_barrier")
        if gs == POLLAT:
            a(f"v_mov_b32 v{T}, 0")
            a(f"global_load_dword v{POLL}, v{T}, s[{S_CNT}:{S_CNT+1}] sc1"); vm.issue('poll')
        if gs >= 1 and gs+4 < 20: a(dma_stage(gs+4))
        if gs == TOUCHAT: touch()
        if gs == 16:
            a(f"v_readfirstlane_b32 s{S_T0}, v{POLL}")
            a("s_nop 3")
            a(f"s_cmp_ge_u32 s{S_T0}, 128")
            a(f"s_cbranch_scc1 L_kvready")
            a.label("L_spin")
            a("s_sleep 2")
            a(f"v_mov_b32 v{T}, 0")
            a(f"global_load_dword v{POLL}, v{T}, s[{S_CNT}:{S_CNT+1}] sc1")
            a("s_waitcnt vmcnt(0)")
            a(f"v_readfirstlane_b32 s{S_T0}, v{POLL}")
            a("s_nop 3")
            a(f"s_cmp_lt_u32 s{S_T0}, 128")
            a(f"s_cbranch_scc1 L_spin")
            a.label("L_kvready")
            a(kv_dma(0))
        if gs == 17: a(kv_dma(1))
    a(f"s_waitcnt vmcnt({vm.wait_n(('kv',0))})")
    a("s_barrier")
    a(f"s_cmp_lg_u32 s{S_B}, 0")
    sel_ptr(a, SRD_WO, 8, 18)
    srd_tail(a, SRD_WO, 1024*2048)
    S_G2 = S_T5
    a(f"s_lshl_b32 s{S_G2}, s{S_G}, 1")
    def rot(dst, i, shift, base):
        return [f"s_add_u32 s{dst}, s{S_G2}, {i}", f"s_and_b32 s{dst}, s{dst}, 15", f"s_lshl_b32 s{dst}, s{dst}, {shift}", f"s_add_u32 s{dst}, s{dst}, s{base}"]
    def wo_dma(i):
        o = rot(S_OFFB, i, 17, S_WQ)
        o.append(f"s_add_u32 m0, s{S_M0}, {65536 + (i%4)*16384}")
        for j in range(4):
            o.append(f"buffer_load_dwordx4 v{VOWO+j}, s[{SRD_WO}:{SRD_WO+3}], s{S_OFFB} offen offset:{j*1024} lds"); vm.issue(('wo',i))
        return o
    VTCH = T+4
    a(f"v_lshrrev_b32 v{VTCH}, 1, v0")
    a(f"v_lshlrev_b32 v{VTCH}, 11, v{VTCH}")
    a(f"v_and_b32 v{VTCH+1}, 1, v0")
    a(f"v_lshlrev_b32 v{VTCH+1}, 7, v{VTCH+1}")
    a(f"v_add_u32 v{VTCH}, v{VTCH}, v{VTCH+1}")
    def wo_touch(i):
        o = rot(S_OFFB, i, 17, S_WQ)
        o.append(f"buffer_load_dword v{WREG+i}, v{VTCH}, s[{SRD_WO}:{SRD_WO+3}], s{S_OFFB} offen"); vm.issue(('wt',i))
        return o
    for s in range(1, 9):
        if s <= 7: a(f"s_waitcnt vmcnt({vm.wait_n(('kv',s))})")
        if not cfg.get('a_nobar'): a("s_barrier")
        if s+1 <= 7: a(kv_dma(s+1))
        for i in (2*(s-1), 2*(s-1)+1):
            a(wo_dma(i) if i < 4 else wo_touch(i))
    a(f"s_lshl_b32 s{S_T0}, s{S_R}, 3")
    a(f"s_lshl_b32 s{S_T1}, s{S_W}, 1")
    a(f"s_add_u32 s{S_T0}, s{S_T0}, s{S_T1}")
    a(f"s_lshl_b32 s{S_XQ}, s{S_T0}, 15")
    a(f"s_lshl_b32 s{S_T0}, s{S_G}, 2")
    a(f"v_mov_b32 v{T}, s{S_T0}")
    a(f"v_mov_b32 v{T+1}, 1")
    a(f"v_and_b32 v{T+3}, 7, v0")
    a(f"v_lshlrev_b32 v{T+3}, 2, v{T+3}")
    a("s_waitcnt vmcnt(0)")
    vm.ops = []
    OSL = [131072, 131072+16384, 0, 16384, 32768, 49152]
    def o_dma(i):
        o = [f"s_add_u32 m0, s{S_M0}, {OSL[i%6]}"] + rot(S_OFFA, i, 11, S_XQ)
        for k in range(4):
            o.append(f"buffer_load_dwordx4 v{VOB+(k>>1)}, s[{SRD_O}:{SRD_O+3}], s{S_OFFA} offen offset:{k*1024} {LDF} lds"); vm.issue(('o',i))
        return o
    a("s_barrier")
    stamp(a, cfg, 0)
    if not cfg.get('early'): a(f"v_mov_b32 v{POLL}, 0")
    else: a(f"global_load_dword v{POLL}, v{T+3}, s[{S_FLAG}:{S_FLAG+1}] sc1")
    a(f"v_and_b32 v{T+2}, 7, v0")
    a(f"v_cmp_eq_u32 s[{S_MASK}:{S_MASK+1}], s{S_G}, v{T+2}")
    a("s_barrier")
    stamp(a, cfg, 1)
    a(f"s_cmp_lg_u32 s{S_W}, 0")
    a(f"s_cbranch_scc1 L_noflag")
    a(f"s_mov_b64 exec, 1")
    a(f"global_store_dword v{T}, v{T+1}, s[{S_FLAG}:{S_FLAG+1}] sc1")
    a(f"s_mov_b64 exec, -1")
    a(f"s_waitcnt vmcnt(1)")
    a(f"s_branch L_ochk")
    a.label("L_noflag")
    a(f"s_waitcnt vmcnt(0)")
    a.label("L_ochk")
    a(f"v_cmp_eq_u32 vcc, 1, v{POLL}")
    a("s_nop 4")
    a(f"s_or_b64 vcc, vcc, s[{S_MASK}:{S_MASK+1}]")
    a(f"s_cmp_eq_u64 vcc, exec")
    a(f"s_cbranch_scc1 L_oready")
    a.label("L_ospin")
    a(f"global_load_dword v{POLL}, v{T+3}, s[{S_FLAG}:{S_FLAG+1}] sc1")
    a("s_waitcnt vmcnt(0)")
    a(f"v_cmp_eq_u32 vcc, 1, v{POLL}")
    a("s_nop 4")
    a(f"s_or_b64 vcc, vcc, s[{S_MASK}:{S_MASK+1}]")
    a(f"s_cmp_eq_u64 vcc, exec")
    a(f"s_cbranch_scc1 L_oready")
    a(f"s_sleep {int(cfg.get('osleep',1))}")
    a("s_branch L_ospin")
    a.label("L_oready")
    stamp(a, cfg, 2)
    vm.ops = []
    for i in range(2, 4): a(o_dma(i))
    a(wo_dma(4))
    for i in range(4, 7): a(o_dma(i))
    for st in range(2, 16):
        need = vm.wait_n(('o',st))
        if st >= 4: need = min(need, vm.wait_n(('wo',st)))
        a(f"s_waitcnt vmcnt({need})")
        if st == 2: stamp(a, cfg, 3)
        a("s_barrier")
        if st+3 < 16: a(wo_dma(st+3))
        if st+5 < 16: a(o_dma(st+5))
    if cfg.get('stamps'): stamp_store(a, cfg, 4, 1, "L_ld_ss")
    a.label("L_end")
    a("s_endpgm")
    return a

def build(cfg):
    cfg = dict(cfg)
    cfg.setdefault('k1', NAME + '_kernel')
    hdr = open('cdna_kernels/' + NAME + '.s.ref').read().split('\n')
    head = [l for l in hdr if l.startswith(';') and '@launch' not in l and 'Override launch' not in l and 'grid=ceil' not in l]
    out = head[:15]
    out.append("; @launch grid=(256,1,1) block=(512,1,1) lds=163840")
    out.append('.amdgcn_target "amdgcn-amd-amdhsa--gfx950"')
    out.append('.text')
    out.append(gen_fused(cfg).text())
    out.append('.section .rodata,"a"')
    out.append('.p2align 6'); out.append(kd(cfg['k1'], 256, 102))
    return "\n".join(out) + "\n"

if __name__ == "__main__":
    cfg = {}
    outfn = 'cdna_kernels/' + NAME + '.s'
    for arg in sys.argv[1:]:
        if arg.startswith('-o'): outfn = arg[2:]
        elif '=' in arg:
            k, v = arg.split('=', 1); cfg[k] = v
        else: cfg[arg] = True
    txt = build(cfg)
    open(outfn, 'w').write(txt)
    print("wrote", outfn)
```

```python
import sys, math, struct
from gen import Asm, vr, sr, interleave, VM, NAME, f32hex, KSCALE, load_ptrs, sel_ptr, srd_tail, decode_ids, gen_vox, gen_vow, kd
import gen as G
from gen import (S_WG, SRD_X, SRD_WQ, SRD_WKV, SRD_KV, SRD_O, S_CNT, S_W, S_B, S_R, S_G, S_T0, S_T1, S_T2, S_T3, S_T4, S_T5, PTR,
                 S_XQ, S_WQ, S_XKV, S_WKV, S_M0, S_OFFA, S_OFFB, S_LOOP, S_KVOFF, S_KVM0, S_WM, S_WN, S_OST, S_SAVE, S_MASK, S_MASK2,
                 S_TYPE, S_W8, ST0, WS_O, stamp, stamp_store, lane_wave)
WS_F = 0xA00000
SPINMAX = 400000
S_PASS = 67

def gemm_mfmas(ACC, FA, FB, fset, czero=False, order='cc'):
    o = []
    idx = [(cc, rt) for cc in range(4) for rt in range(4)] if order == 'cc' else [(cc, rt) for rt in range(4) for cc in range(4)]
    for cc, rt in idx:
        acc = ACC + (cc*4+rt)*4
        o.append(f"v_mfma_f32_16x16x32_bf16 {vr(acc,4)}, {vr(FA[fset]+4*cc,4)}, {vr(FB[fset]+4*rt,4)}, {'0' if czero else vr(acc,4)}")
    return o


def order_reads(rd):
    A = [(rd[3*c], rd[3*c+1]) for c in range(4)]; B = [rd[3*c+2] for c in range(4)]
    return [B[0], A[0][0], A[0][1], B[1], B[2], B[3], A[1][0], A[1][1], A[2][0], A[2][1], A[3][0], A[3][1]]
NEED = {0: 2, 1: 3, 2: 4, 3: 5, 4: 7, 8: 9, 12: 11}

def phase(a, mf, newreads, extra=(), counted=False):
    nr = list(newreads); ex = list(extra); issued = 0
    for m, x in enumerate(mf):
        if counted and m in NEED:
            n = 11 - NEED[m] + issued
            a(f"s_waitcnt lgkmcnt({min(n, 15)})")
        a(x)
        if nr: a(nr.pop(0)); issued += 1
        elif ex: a(ex.pop(0))
    for x in nr + ex: a(x)

OSL = [32768, 49152, 131072, 147456, 0, 16384]
KVSEQ = [0,1,2,3,4,5,6,7,6,7]

def front_seq(cfg):
    mode = int(cfg.get('ilv', 0))
    K = [('K', j) for j in range(4)]; Qs = [('Q', j) for j in range(16)]
    if mode == 0: return K + Qs
    if mode == 1: return [K[0], Qs[0], K[1], Qs[1], K[2], Qs[2], K[3]] + Qs[3:]
    if mode == 2: return [K[0], K[1], Qs[0], K[2], Qs[1], K[3]] + Qs[2:]
    if mode == 3: return [K[0], K[1], K[2], Qs[0], K[3]] + Qs[1:]
    if mode == 4: return [Qs[0], K[0], K[1], Qs[1], K[2], K[3]] + Qs[2:]

def gen_fused(cfg):
    a = Asm()
    kname = cfg['k1']
    a(f".globl {kname}\n.p2align 8\n.type {kname},@function")
    a.label(kname)
    a(f"s_cmp_ge_u32 s{S_WG}, 256")
    a(f"s_cbranch_scc1 L_end")
    stamp(a, cfg, 0)
    load_ptrs(a)
    decode_ids(a)
    T=26
    lane_wave(a, T)
    a(f"s_and_b32 s{S_WN}, s{S_W}, 1")
    a(f"s_lshr_b32 s{S_WM}, s{S_W}, 1")
    a(f"s_and_b32 s{S_TYPE}, s{S_G}, 1")
    a(f"s_lshl_b32 s{S_M0}, s{S_W}, 12")
    a(f"s_cmp_ge_u32 s{S_W8}, 4")
    a(f"s_cbranch_scc1 L_loader")
    NSLOT=5; SLOT=32768
    PER = int(cfg.get('per', 2)); LEAD = int(cfg.get('lead', 2)); PUB = int(cfg.get('pub', 7))
    def slot_set(slot): return slot // 2, (slot % 2) * SLOT
    if cfg.get('prio'): a(f"s_setprio {cfg['prio']}")
    VXA=2; VWA=8; VKXA=20; VKWA=22
    ACC=32; FA=[96,128]; FB=[112,144]; KVACC=160; KVX=164; KVW=196
    Q=96; O=160; S=[32,48]; P=[64,72]; K=[144,152]; V=[128,136]; L=224; XT=80; LS=88
    ONES=240; IDX=244; OXA=245; OWA=247; VST=251; VOL=252; VOUT=253; VDMA=254; VA=2; VB=3; VTW=24; VTR=255
    L3=T+1; L4=T+2; X1=T+3; X2=T+4; X3=T+5
    a(f"v_lshrrev_b32 v{L4}, 4, v0")
    a(f"v_and_b32 v{X1}, 15, v0")
    a(f"v_lshrrev_b32 v{X2}, 1, v{X1}")
    a(f"v_lshlrev_b32 v{X3}, 7, v{X1}")
    a(f"s_lshl_b32 s{S_T0}, s{S_WM}, 13")
    a(f"s_lshl_b32 s{S_T1}, s{S_WM}, 11")
    for s in range(2):
        a(f"v_add_u32 v{L3}, {4*s}, v{L4}")
        a(f"v_xor_b32 v{L3}, v{L3}, v{X2}")
        a(f"v_lshlrev_b32 v{L3}, 4, v{L3}")
        a(f"v_add_u32 v{L3}, v{L3}, v{X3}")
        a(f"v_add_u32 v{VXA+s}, s{S_T0}, v{L3}")
        a(f"v_add_u32 v{VXA+2+s}, 0x10000, v{VXA+s}")
        a(f"v_add_u32 v{VXA+4+s}, 0x20000, v{VXA+s}")
        a(f"v_add_u32 v{VKXA+s}, s{S_T1}, v{L3}")
    a(f"v_lshrrev_b32 v{X2}, 2, v{X1}")
    a(f"v_and_b32 v{L3}, 1, v{L4}")
    a(f"v_lshlrev_b32 v{X3}, 2, v{L3}")
    a(f"v_or_b32 v{X3}, v{X3}, v{X2}")
    a(f"v_lshlrev_b32 v{T}, 3, v{L4}")
    a(f"v_add_u32 v{T}, v{T}, v{X2}")
    a(f"v_and_b32 v{X1}, 3, v{X1}")
    a(f"v_lshlrev_b32 v{X1}, 3, v{X1}")
    a(f"s_lshl_b32 s{S_T0}, s{S_WN}, 2")
    a(f"v_xor_b32 v{L3}, s{S_WN}, v{L3}")
    a(f"v_lshlrev_b32 v{L3}, 5, v{L3}")
    a(f"v_lshlrev_b32 v{X2}, 6, v{T}")
    a(f"v_add3_u32 v{VKWA}, v{L3}, v{X2}, v{X1}")
    a(f"v_add_u32 v{VKWA}, 16384, v{VKWA}")
    a(f"v_lshlrev_b32 v{T}, 8, v{T}")
    a(f"v_add_u32 v{T}, v{T}, v{X1}")
    a(f"v_add_u32 v{T}, 16384, v{T}")
    for cc in range(4):
        a(f"s_add_u32 s{S_T1}, s{S_T0}, {cc}")
        a(f"v_xor_b32 v{X2}, s{S_T1}, v{X3}")
        a(f"v_lshlrev_b32 v{X2}, 5, v{X2}")
        a(f"v_add_u32 v{VWA+cc}, v{X2}, v{T}")
        a(f"v_add_u32 v{VWA+4+cc}, 0x10000, v{VWA+cc}")
        a(f"v_add_u32 v{VWA+8+cc}, 0x20000, v{VWA+cc}")
    if not cfg.get('nocodepf'):
        a(f"s_cmp_ge_u32 s{S_WG}, 16")
        a(f"s_cbranch_scc1 L_pf_done")
        a(f"s_getpc_b64 s[{S_T2}:{S_T3}]")
        a.label("L_pc_anchor")
        a(f"s_sub_u32 s{S_T2}, s{S_T2}, L_pc_anchor-{kname}")
        a(f"s_subb_u32 s{S_T3}, s{S_T3}, 0")
        a(f"v_lshlrev_b32 v{X1}, 7, v0")
        a(f"s_lshl_b32 s{S_T0}, s{S_W}, 13")
        a(f"v_add_u32 v{X1}, s{S_T0}, v{X1}")
        for rep in range(2):
            a(f"v_cmp_gt_u32 vcc, L_code_end-{kname}, v{X1}")
            a(f"s_and_saveexec_b64 s[{S_SAVE}:{S_SAVE+1}], vcc")
            a(f"s_cbranch_execz L_pf_skip{rep}")
            a(f"global_load_dword v23, v{X1}, s[{S_T2}:{S_T3}]")
            a.label(f"L_pf_skip{rep}")
            a(f"s_mov_b64 exec, s[{S_SAVE}:{S_SAVE+1}]")
            if rep == 0: a(f"v_add_u32 v{X1}, 0x8000, v{X1}")
        a.label("L_pf_done")
    for i in range(4): a(f"v_mov_b32 v{KVACC+i}, 0")
    for i in range(64): a(f"v_mov_b32 v{ACC+i}, 0")
    a(f"v_lshlrev_b32 v{VDMA}, 4, v0")
    a(f"v_and_b32 v{X1}, 15, v0")
    a(f"v_mov_b32 v{X2}, 0x3f803f80")
    a(f"v_cmp_gt_u32 vcc, 2, v{X1}")
    a(f"v_lshrrev_b32 v{X3}, 1, v{X1}")
    a("s_nop 0")
    a(f"v_cndmask_b32 v{ONES}, 0, v{X2}, vcc")
    a(f"v_cndmask_b32 v{ONES+1}, 0, v{X2}, vcc")
    a(f"v_cmp_eq_u32 vcc, 1, v{X3}")
    a(f"v_and_b32 v{X3}, 1, v{X1}")
    a("s_nop 0")
    a(f"v_cndmask_b32 v{ONES+2}, 0, v{X2}, vcc")
    a(f"v_cndmask_b32 v{ONES+3}, 0, v{X2}, vcc")
    a(f"v_cmp_eq_u32 vcc, 1, v{X3}")
    a(f"v_mov_b32 v{X2}, 0x4444")
    a(f"v_mov_b32 v{X3}, 0xeeee")
    a(f"v_cndmask_b32 v{IDX}, v{X2}, v{X3}, vcc")
    a(f"v_lshlrev_b32 v{X1}, 4, v{X1}")
    a(f"v_lshrrev_b32 v{X2}, 5, v0")
    a(f"v_lshlrev_b32 v{X2}, 8, v{X2}")
    a(f"v_add_u32 v{X1}, v{X1}, v{X2}")
    a(f"v_bfe_u32 v{X2}, v0, 4, 1")
    a(f"v_lshlrev_b32 v{X3}, 15, v{X2}")
    a(f"v_add_u32 v{VST}, v{X1}, v{X3}")
    a(f"v_lshlrev_b32 v{X3}, 11, v{X2}")
    a(f"v_add_u32 v{VOL}, v{X1}, v{X3}")
    a(f"s_lshl_b32 s{S_T0}, s{S_WN}, 14")
    a(f"s_lshl_b32 s{S_T1}, s{S_WM}, 13")
    a(f"s_add_u32 s{S_T0}, s{S_T0}, s{S_T1}")
    a(f"s_add_u32 s{S_T0}, s{S_T0}, 0x20000")
    a(f"v_add_u32 v{VOL}, s{S_T0}, v{VOL}")
    a(f"v_add_u32 v{OXA}, s{S_T1}, v{VDMA}")
    a(f"v_add_u32 v{OXA+1}, 0x20000, v{OXA}")
    a(f"v_and_b32 v{X1}, 15, v0")
    a(f"v_lshrrev_b32 v{X2}, 2, v{X1}")
    a(f"v_and_b32 v{X3}, 1, v{L4}")
    a(f"v_lshlrev_b32 v{X3}, 2, v{X3}")
    a(f"v_add_u32 v{X3}, v{X3}, v{X2}")
    a(f"v_lshrrev_b32 v{T}, 1, v{L4}")
    a(f"v_lshlrev_b32 v{T}, 4, v{T}")
    a(f"v_add_u32 v{T}, v{T}, v{X3}")
    a(f"v_lshlrev_b32 v{T}, 8, v{T}")
    a(f"v_and_b32 v{X1}, 3, v{X1}")
    a(f"v_lshlrev_b32 v{X1}, 3, v{X1}")
    a(f"v_add_u32 v{T}, v{T}, v{X1}")
    a(f"v_add_u32 v{T}, 0x10000, v{T}")
    a(f"s_lshl_b32 s{S_T0}, s{S_WN}, 2")
    for cc in range(4):
        a(f"s_add_u32 s{S_T1}, s{S_T0}, {cc}")
        a(f"v_xor_b32 v{X2}, s{S_T1}, v{X3}")
        a(f"v_lshlrev_b32 v{X2}, 5, v{X2}")
        a(f"v_add_u32 v{OWA+cc}, v{X2}, v{T}")
    a(f"v_and_b32 v{X1}, 15, v0")
    a(f"v_and_b32 v{X2}, 1, v{L4}")
    a(f"v_lshlrev_b32 v{X2}, 1, v{X2}")
    a(f"v_lshrrev_b32 v{X3}, 1, v{L4}")
    a(f"v_add_u32 v{X2}, v{X2}, v{X3}")
    a(f"v_and_b32 v{X3}, 7, v{X1}")
    a(f"v_lshlrev_b32 v{X1}, 7, v{X1}")
    a(f"s_lshl_b32 s{S_T0}, s{S_W}, 13")
    a(f"v_add_u32 v{X1}, s{S_T0}, v{X1}")
    for cp in range(2):
        a(f"v_add_u32 v{T}, {4*cp}, v{X2}")
        a(f"v_xor_b32 v{T}, v{T}, v{X3}")
        a(f"v_lshlrev_b32 v{T}, 4, v{T}")
        a(f"v_add_u32 v{VTW+cp}, v{T}, v{X1}")
    a(f"v_lshrrev_b32 v{X1}, 3, v0")
    a(f"v_and_b32 v{X2}, 7, v0")
    a(f"v_lshlrev_b32 v{X3}, 12, v{X1}")
    a(f"v_lshlrev_b32 v{T}, 4, v{X2}")
    a(f"v_add_u32 v{VOUT}, v{X3}, v{T}")
    a(f"v_xor_b32 v{X2}, v{X2}, v{X1}")
    a(f"v_lshlrev_b32 v{X2}, 4, v{X2}")
    a(f"v_lshlrev_b32 v{X1}, 7, v{X1}")
    a(f"v_add3_u32 v{VTR}, v{X1}, v{X2}, s{S_T0}")
    S_OO = S_XQ
    S_OUTS = S_WQ
    a(f"s_lshl_b32 s{S_T0}, s{S_R}, 3")
    a(f"s_lshl_b32 s{S_T1}, s{S_WM}, 2")
    a(f"s_add_u32 s{S_T0}, s{S_T0}, s{S_T1}")
    a(f"s_lshl_b32 s{S_T0}, s{S_T0}, 5")
    a(f"s_lshl_b32 s{S_T1}, s{S_G}, 2")
    a(f"s_add_u32 s{S_T0}, s{S_T0}, s{S_T1}")
    a(f"s_lshl_b32 s{S_T1}, s{S_WN}, 1")
    a(f"s_add_u32 s{S_T0}, s{S_T0}, s{S_T1}")
    a(f"s_lshl_b32 s{S_OO}, s{S_T0}, 10")
    a(f"s_lshl_b32 s{S_T0}, s{S_R}, 19")
    a(f"s_lshl_b32 s{S_T1}, s{S_WM}, 18")
    a(f"s_add_u32 s{S_T0}, s{S_T0}, s{S_T1}")
    a(f"s_lshl_b32 s{S_T1}, s{S_B}, 11")
    a(f"s_add_u32 s{S_T0}, s{S_T0}, s{S_T1}")
    a(f"s_lshl_b32 s{S_T1}, s{S_G}, 8")
    a(f"s_add_u32 s{S_T0}, s{S_T0}, s{S_T1}")
    a(f"s_lshl_b32 s{S_T1}, s{S_WN}, 7")
    a(f"s_add_u32 s{S_OUTS}, s{S_T0}, s{S_T1}")
    a("s_waitcnt lgkmcnt(0)")
    a(f"s_lshl_b32 s{S_T0}, s{S_B}, 18")
    a(f"s_add_u32 s{SRD_KV}, s{PTR+24}, s{S_T0}")
    a(f"s_addc_u32 s{SRD_KV+1}, s{PTR+25}, 0")
    srd_tail(a, SRD_KV, 262144)
    a(f"s_lshl_b32 s{S_T0}, s{S_B}, 22")
    a(f"s_add_u32 s{S_T0}, s{S_T0}, {WS_O}")
    a(f"s_add_u32 s{SRD_O}, s{PTR+24}, s{S_T0}")
    a(f"s_addc_u32 s{SRD_O+1}, s{PTR+25}, 0")
    srd_tail(a, SRD_O, 4*1024*1024)
    a(f"s_lshl_b32 s{S_T0}, s{S_B}, 7")
    a(f"s_add_u32 s{S_CNT}, s{PTR+22}, s{S_T0}")
    a(f"s_addc_u32 s{S_CNT+1}, s{PTR+23}, 0")
    SRD_OUT=4
    a(f"s_mov_b32 s{SRD_OUT}, s{PTR+20}")
    a(f"s_mov_b32 s{SRD_OUT+1}, s{PTR+21}")
    srd_tail(a, SRD_OUT, 2048*4096)
    if not cfg.get('ost'): stamp(a, cfg, 1)
    SEQ = front_seq(cfg)
    lastK = max(u for u, (ty, j) in enumerate(SEQ) if ty == 'K')
    PUB = lastK + int(cfg.get('pubd', 4))
    KA = T+1
    def kv_block(u, j):
        slot = u % NSLOT
        so = (slot % 2) * SLOT; win = (slot // 2) * 0x10000
        a(f"v_add_u32 v{KA}, {win}, v{VKXA}")
        a(f"v_add_u32 v{KA+1}, {win}, v{VKXA+1}")
        a(f"v_add_u32 v{KA+2}, {win}, v{VKWA}")
        for s in range(8):
            a(f"ds_read_b128 {vr(KVX+4*s,4)}, v{KA+(s&1)} offset:{so + (s>>1)*4096}")
            a(f"ds_read_b64_tr_b16 {vr(KVW+4*s,2)}, v{KA+2} offset:{so + (32*s)*64}")
            a(f"ds_read_b64_tr_b16 {vr(KVW+4*s+2,2)}, v{KA+2} offset:{so + (32*s+4)*64}")
        a(f"s_cmp_lg_u32 s{S_TYPE}, 0")
        a(f"s_cbranch_scc1 L_kv_v{j}")
        for s in range(8):
            if s in (0,4): a(f"s_waitcnt lgkmcnt({12 if s==0 else 0})")
            a(f"v_mfma_f32_16x16x32_bf16 {vr(KVACC,4)}, {vr(KVW+4*s,4)}, {vr(KVX+4*s,4)}, {vr(KVACC,4)}")
        a(f"s_branch L_kv_e{j}")
        a.label(f"L_kv_v{j}")
        for s in range(8):
            if s in (0,4): a(f"s_waitcnt lgkmcnt({12 if s==0 else 0})")
            a(f"v_mfma_f32_16x16x32_bf16 {vr(KVACC,4)}, {vr(KVX+4*s,4)}, {vr(KVW+4*s,4)}, {vr(KVACC,4)}")
        a.label(f"L_kv_e{j}")
    def kv_epilogue():
        c=T; g_=T+1; x1=T+2; x2=T+3; ad=T+4
        a(f"v_and_b32 v{c}, 15, v0")
        a(f"v_lshrrev_b32 v{g_}, 4, v0")
        a(f"s_cmp_lg_u32 s{S_TYPE}, 0")
        a(f"s_cselect_b32 s{S_T0}, s{S_WM}, s{S_WN}")
        a(f"s_cselect_b32 s{S_T1}, s{S_WN}, s{S_WM}")
        a(f"s_cselect_b32 s{S_T2}, 0, 1")
        a(f"s_lshl_b32 s{S_T0}, s{S_T0}, 10")
        a(f"s_lshl_b32 s{S_T1}, s{S_T1}, 8")
        a(f"s_add_u32 s{S_T0}, s{S_T0}, s{S_T1}")
        a(f"s_lshl_b32 s{S_T1}, s{S_TYPE}, 11")
        a(f"s_add_u32 s{S_T0}, s{S_T0}, s{S_T1}")
        a(f"s_lshl_b32 s{S_T1}, s{S_R}, 2")
        a(f"s_lshr_b32 s{S_T3}, s{S_G}, 1")
        a(f"s_add_u32 s{S_T1}, s{S_T1}, s{S_T3}")
        a(f"s_lshl_b32 s{S_T1}, s{S_T1}, 12")
        a(f"s_add_u32 s{S_T0}, s{S_T0}, s{S_T1}")
        a(f"v_lshrrev_b32 v{x1}, s{S_T2}, v{g_}")
        a(f"v_and_b32 v{x1}, 1, v{x1}")
        a(f"v_lshlrev_b32 v{x1}, 9, v{x1}")
        a(f"s_xor_b32 s{S_T2}, s{S_T2}, 1")
        a(f"v_lshrrev_b32 v{x2}, s{S_T2}, v{g_}")
        a(f"v_and_b32 v{x2}, 1, v{x2}")
        a(f"v_lshlrev_b32 v{x2}, 3, v{x2}")
        a(f"v_lshlrev_b32 v{ad}, 4, v{c}")
        a(f"v_add3_u32 v{ad}, v{ad}, v{x1}, v{x2}")
        a(f"s_cmp_lg_u32 s{S_TYPE}, 0")
        a(f"s_cselect_b32 s{S_T1}, 1.0, {f32hex(KSCALE)}")
        a("s_nop 3")
        for i in range(4): a(f"v_mul_f32 v{KVACC+i}, s{S_T1}, v{KVACC+i}")
        a(f"v_cvt_pk_bf16_f32 v{T}, v{KVACC}, v{KVACC+1}")
        a(f"v_cvt_pk_bf16_f32 v{T+1}, v{KVACC+2}, v{KVACC+3}")
        a(f"buffer_store_dwordx2 {vr(T,2)}, v{ad}, s[{SRD_KV}:{SRD_KV+3}], s{S_T0} offen sc1")
    def q_reads(u, s, fset):
        st_, so = slot_set(u % NSLOT)
        o = []
        xa = VXA + 2*st_ + s
        wa = VWA + 4*st_
        for cc in range(4):
            o.append(f"ds_read_b64_tr_b16 {vr(FA[fset]+4*cc,2)}, v{wa+cc} offset:{so + (32*s)*256}")
            o.append(f"ds_read_b64_tr_b16 {vr(FA[fset]+4*cc+2,2)}, v{wa+cc} offset:{so + (32*s+4)*256}")
            o.append(f"ds_read_b128 {vr(FB[fset]+4*cc,4)}, v{xa} offset:{so + cc*2048}")
        return o
    zero_list = [f"v_mov_b32 v{O+i}, 0" for i in range(64)] + [f"v_mov_b32 v{L+i}, 0" for i in range(16)]
    zpos = 0
    for u, (ty, j) in enumerate(SEQ):
        if u == PUB: a("s_waitcnt vmcnt(0) lgkmcnt(0)")
        elif u > 0: a("s_waitcnt lgkmcnt(0)")
        a("s_barrier")
        if u == PUB:
            a(f"s_cmp_lg_u32 s{S_W}, 0")
            a(f"s_cbranch_scc1 L_nopub")
            a(f"v_mov_b32 v{T+2}, 0")
            a(f"v_mov_b32 v{T+3}, 1")
            a(f"s_mov_b64 s[{S_SAVE}:{S_SAVE+1}], exec")
            a(f"s_mov_b64 exec, 1")
            a(f"global_atomic_add v{T+2}, v{T+3}, s[{S_CNT}:{S_CNT+1}] sc1")
            a(f"s_mov_b64 exec, s[{S_SAVE}:{S_SAVE+1}]")
            a.label("L_nopub")
        if ty == 'K':
            kv_block(u, j)
            if u == lastK:
                if not cfg.get('ost'): stamp(a, cfg, 2)
                kv_epilogue()
        else:
            r0 = order_reads(q_reads(u, 0, 0)); r1 = order_reads(q_reads(u, 1, 1))
            z = []
            if u > lastK + 1 and zpos < len(zero_list): z = zero_list[zpos:zpos+8]; zpos += 8
            if j == 0: a(r0)
            else: phase(a, gemm_mfmas(ACC,FA,FB,1), r0, z[:4])
            phase(a, gemm_mfmas(ACC,FA,FB,0), r1, z[4:], counted=True)
    assert zpos >= len(zero_list), "zero list not fully emitted"
    a("s_waitcnt lgkmcnt(0)")
    a(gemm_mfmas(ACC,FA,FB,1))
    a("s_barrier")
    if not cfg.get('ost'): stamp(a, cfg, 3)

    a(f"v_mov_b32 v{VA}, v{VDMA}")
    a(f"v_add_u32 v{VB}, 0x8000, v{VDMA}")
    a(f"ds_read_b128 {vr(K[0],4)}, v{VDMA} offset:0")
    a(f"ds_read_b128 {vr(K[0]+4,4)}, v{VDMA} offset:1024")
    a(f"ds_read_b128 {vr(V[0],4)}, v{VDMA} offset:2048")
    a(f"ds_read_b128 {vr(V[0]+4,4)}, v{VDMA} offset:3072")
    a(f"ds_read_b128 {vr(K[1],4)}, v{VDMA} offset:4096")
    a(f"ds_read_b128 {vr(K[1]+4,4)}, v{VDMA} offset:{4096+1024}")
    for i in range(8): a(f"v_mov_b32 v{V[1]+i}, 0")
    tiles = [(hh, rb) for hh in range(2) for rb in range(2)]
    for (hh, rb) in tiles:
        t = hh*2+rb
        for m in range(2):
            cc = 2*hh+m
            x = ACC + (cc*4+2*rb)*4; y = ACC + (cc*4+2*rb+1)*4
            q = Q + t*8 + m*4
            a(f"v_cvt_pk_bf16_f32 v{q}, v{x}, v{x+1}")
            a(f"v_cvt_pk_bf16_f32 v{q+1}, v{x+2}, v{x+3}")
            a(f"v_cvt_pk_bf16_f32 v{q+2}, v{y}, v{y+1}")
            a(f"v_cvt_pk_bf16_f32 v{q+3}, v{y+2}, v{y+3}")
    for i in range(8): a(f"v_mov_b32 v{P[1]+i}, 0")
    for t in range(4):
        for m in range(2):
            q = Q + t*8 + m*4
            a(f"v_permlane16_swap_b32 v{q}, v{q+2}")
            a(f"v_permlane16_swap_b32 v{q+1}, v{q+3}")
    a(f"s_mov_b32 s{S_KVM0}, 0x8000")
    a(f"s_mov_b32 s{S_LOOP}, 6")
    a(f"s_mov_b32 s{S_PASS}, 0")
    a("s_waitcnt lgkmcnt(0)")
    a(f"v_mfma_f32_32x32x16_bf16 {vr(S[0],16)}, {vr(K[0],4)}, {vr(Q,4)}, 0")
    a(f"v_mfma_f32_32x32x16_bf16 {vr(S[0],16)}, {vr(K[0]+4,4)}, {vr(Q+4,4)}, {vr(S[0],16)}")
    stamp(a, cfg, 4)
    a("s_nop 7")
    a("s_nop 3")
    patt = cfg.get('patt', "A e e e c B r e e c e C r e c e e D r c e e c e e c e e c e S r c").split()
    assert patt.count('e') == 16 and patt.count('c') == 8
    if cfg.get('diag_perm'): a("v_mov_b32 v23, 0x07060302")
    NSTEP = 8
    def attn_loop(label, NQ):
        if not cfg.get('noalign'): a(".p2align 6")
        a.label(label)
        for step in range(NSTEP):
            for t in range(NQ):
                u = step*NQ + t
                un = u+1; stepn = un//NQ; tn = un % NQ
                up = u-1; stepp = up//NQ; tp = up % NQ
                sc = S[u%2]; sn = S[(u+1)%2]; Pp = P[(u-1)%2]; Pc = P[u%2]
                M = {
                  'A': f"v_mfma_f32_32x32x16_bf16 {vr(sn,16)}, {vr(K[stepn%2],4)}, {vr(Q+tn*8,4)}, 0",
                  'B': f"v_mfma_f32_32x32x16_bf16 {vr(sn,16)}, {vr(K[stepn%2]+4,4)}, {vr(Q+tn*8+4,4)}, {vr(sn,16)}",
                  'C': f"v_mfma_f32_32x32x16_bf16 {vr(O+tp*16,16)}, {vr(V[stepp%2],4)}, {vr(Pp,4)}, {vr(O+tp*16,16)}",
                  'D': f"v_mfma_f32_32x32x16_bf16 {vr(O+tp*16,16)}, {vr(V[stepp%2]+4,4)}, {vr(Pp+4,4)}, {vr(O+tp*16,16)}",
                  'S': f"v_smfmac_f32_16x16x64_bf16 {vr(L+tp*4,4)}, {vr(ONES,4)}, {vr(Pp,8)}, v{IDX}",
                }
                ei = ci = ri = 0
                for tok in patt:
                    if tok == 'e': a(f"v_exp_f32 v{sc+ei}, v{sc+ei}"); ei += 1
                    elif tok == 'c':
                        if cfg.get('diag_perm'): a(f"v_perm_b32 v{Pc+ci}, v{sc+2*ci+1}, v{sc+2*ci}, v23")
                        else: a(f"v_cvt_pk_bf16_f32 v{Pc+ci}, v{sc+2*ci}, v{sc+2*ci+1}")
                        ci += 1
                    elif tok == 'S' and cfg.get('diag_nosum'): a("s_nop 0")
                    elif tok == 'r':
                        def addr(st): return (VA, st*4096) if st < 8 else (VB, (st-8)*4096)
                        rv, ov = addr(step+1); rk, ok = addr(step+2)
                        rds = [f"ds_read_b128 {vr(V[(step+1)%2],4)}, v{rv} offset:{ov+2048}",
                               f"ds_read_b128 {vr(V[(step+1)%2]+4,4)}, v{rv} offset:{ov+3072}",
                               f"ds_read_b128 {vr(K[step%2],4)}, v{rk} offset:{ok}",
                               f"ds_read_b128 {vr(K[step%2]+4,4)}, v{rk} offset:{ok+1024}"]
                        if t == NQ-1:
                            if ri == 0 and step == 6:
                                if NQ == 2: a("s_waitcnt vmcnt(0)")
                                if not cfg.get('a_nobar'): a("s_barrier")
                            a(rds[ri])
                        if step == 7 and t == 0 and ri == 0:
                            a(f"s_cmp_eq_u32 s{S_KVM0}, 0x8000")
                            a(f"s_cselect_b32 s{S_T0}, 0x20000, 0")
                            a(f"s_cmp_eq_u32 s{S_KVM0}, 0")
                            a(f"s_cselect_b32 s{S_KVM0}, 0x8000, s{S_T0}")
                        ri += 1
                    else:
                        if tok == 'A' and tn == 0: a("s_waitcnt lgkmcnt(0)")
                        if tok == 'C' and tp == 0 and NQ == 4: a("s_waitcnt lgkmcnt(2)")
                        a(M[tok])
                        if tok == 'A' and step == NSTEP-1 and t == NQ-1:
                            a(f"s_sub_u32 s{S_LOOP}, s{S_LOOP}, 1")
                            a(f"s_cmp_lg_u32 s{S_LOOP}, 0")
        a(f"v_mov_b32 v{VA}, v{VB}")
        a(f"v_add_u32 v{VB}, s{S_KVM0}, v{VDMA}")
        a(f"s_cbranch_scc1 {label}")
        a("s_nop 0")
        tl = NQ-1
        a(f"v_mfma_f32_32x32x16_bf16 {vr(O+16*tl,16)}, {vr(V[1],4)}, {vr(P[1],4)}, {vr(O+16*tl,16)}")
        a(f"v_mfma_f32_32x32x16_bf16 {vr(O+16*tl,16)}, {vr(V[1]+4,4)}, {vr(P[1]+4,4)}, {vr(O+16*tl,16)}")
        a(f"v_smfmac_f32_16x16x64_bf16 {vr(L+4*tl,4)}, {vr(ONES,4)}, {vr(P[1],8)}, v{IDX}")
    attn_loop("L_attnY", 4)
    for i in range(8): a(f"v_mov_b32 v{P[1]+i}, 0")
    a(f"s_mov_b32 s{S_LOOP}, 2")
    a("s_nop 1")
    attn_loop("L_attnX", 2)
    stamp(a, cfg, 5)
    NT = 2
    def lsum(first):
        for t in range(NT):
            if t == NT-1 and first: a("s_nop 7")
            a(f"v_add_f32 v{XT+2*t}, v{L+4*t}, v{L+4*t+1}")
            a(f"v_add_f32 v{XT+2*t+1}, v{L+4*t+2}, v{L+4*t+3}")
        a("s_nop 1")
        for t in range(NT): a(f"v_permlane16_swap_b32 v{XT+2*t}, v{XT+2*t+1}")
        a("s_nop 0")
        for t in range(NT): a(f"v_mov_b32 v{LS+t}, v{XT+2*t}")
        a("s_nop 1")
        for t in range(NT): a(f"v_permlane32_swap_b32 v{LS+t}, v{XT+2*t}")
    FS = 64
    def norm_store():
        for t in range(NT):
            for i in range(8):
                a(f"v_pk_mul_f32 {vr(O+16*t+2*i,2)}, {vr(O+16*t+2*i,2)}, {vr(LS+2,2)} op_sel:[0,{t}] op_sel_hi:[1,{t}]")
            R = O+16*t
            for i in range(8): a(f"v_cvt_pk_bf16_f32 v{R+i}, v{R+2*i}, v{R+2*i+1}")
            so = S_OO if t == 0 else S_T2
            a(f"buffer_store_dwordx4 {vr(R,4)}, v{VST}, s[{SRD_O}:{SRD_O+3}], s{so} offen sc1")
            a(f"buffer_store_dwordx4 {vr(R+4,4)}, v{VST}, s[{SRD_O}:{SRD_O+3}], s{so} offen offset:512 sc1")
    a(f"v_pk_add_f32 {vr(FS,2)}, {vr(O,2)}, {vr(O+2,2)}")
    for i in range(2, 8): a(f"v_pk_add_f32 {vr(FS,2)}, {vr(FS,2)}, {vr(O+2*i,2)}")
    lsum(True)
    a(f"s_add_u32 s{S_T2}, s{S_OO}, 65536")
    for t in range(NT): a(f"v_rcp_f32 v{LS+2+t}, v{LS+t}")
    a(f"v_pk_add_f32 {vr(FS+2,2)}, {vr(O+16,2)}, {vr(O+18,2)}")
    for i in range(2, 8): a(f"v_pk_add_f32 {vr(FS+2,2)}, {vr(FS+2,2)}, {vr(O+16+2*i,2)}")
    norm_store()
    a(f"v_pk_add_f32 {vr(FS,2)}, {vr(FS,2)}, {vr(FS+2,2)}")
    a(f"v_min_f32 v{FS+4}, v{LS}, v{LS+1}")
    a(f"v_add_f32 v{FS}, v{FS}, v{FS+1}")
    a(f"v_max_f32 v{FS+5}, v{LS}, v{LS+1}")
    a(f"v_add_f32 v{FS+6}, v{LS}, v{LS+1}")
    a(f"s_mov_b32 s{S_T0}, 0x71800000")
    a(f"s_movk_i32 s{S_T1}, 0x1f8")
    a(f"v_cmp_le_f32 vcc, 1.0, v{FS+4}")
    a(f"v_cmp_ge_f32 s[{S_MASK}:{S_MASK+1}], s{S_T0}, v{FS+5}")
    a(f"v_cmp_class_f32 s[{S_MASK2}:{S_MASK2+1}], v{FS}, s{S_T1}")
    a(f"v_cmp_class_f32 s[{S_SAVE}:{S_SAVE+1}], v{FS+6}, s{S_T1}")
    a("s_nop 3")
    a(f"s_and_b64 s[{S_MASK}:{S_MASK+1}], s[{S_MASK}:{S_MASK+1}], vcc")
    a(f"s_and_b64 s[{S_MASK}:{S_MASK+1}], s[{S_MASK}:{S_MASK+1}], s[{S_MASK2}:{S_MASK2+1}]")
    a(f"s_and_b64 s[{S_MASK}:{S_MASK+1}], s[{S_MASK}:{S_MASK+1}], s[{S_SAVE}:{S_SAVE+1}]")
    a(f"s_cmp_eq_u64 s[{S_MASK}:{S_MASK+1}], exec")
    if cfg.get('force_fallback'): a("s_cmp_eq_u32 s2, 0x7fffffff")
    if cfg.get('diag_nosum'): a("s_cmp_eq_u32 s2, s2")
    a(f"s_cbranch_scc1 L_norm")
    NEG = S[0]; SS = S[1]; MX = XT; KF = 4; VF = 12; PP = P[0]
    a("s_waitcnt vmcnt(0) lgkmcnt(0)")
    for t in range(NT):
        a(f"v_mov_b32 v{MX}, 0xff800000")
        a(f"s_mov_b32 s{S_T3}, 0")
        a.label(f"L_fb1_{t}")
        a(f"buffer_load_dwordx4 {vr(KF,4)}, v{VDMA}, s[{SRD_KV}:{SRD_KV+3}], s{S_T3} offen sc1")
        a(f"buffer_load_dwordx4 {vr(KF+4,4)}, v{VDMA}, s[{SRD_KV}:{SRD_KV+3}], s{S_T3} offen offset:1024 sc1")
        a("s_waitcnt vmcnt(0)")
        a(f"v_mfma_f32_32x32x16_bf16 {vr(SS,16)}, {vr(KF,4)}, {vr(Q+t*8,4)}, 0")
        a(f"v_mfma_f32_32x32x16_bf16 {vr(SS,16)}, {vr(KF+4,4)}, {vr(Q+t*8+4,4)}, {vr(SS,16)}")
        a("s_nop 15")
        for i in range(8): a(f"v_max3_f32 v{MX}, v{SS+2*i}, v{SS+2*i+1}, v{MX}")
        a(f"s_add_u32 s{S_T3}, s{S_T3}, 4096")
        a(f"s_cmp_lt_u32 s{S_T3}, 262144")
        a(f"s_cbranch_scc1 L_fb1_{t}")
        a(f"v_mov_b32 v{MX+1}, v{MX}")
        a("s_nop 1")
        a(f"v_permlane32_swap_b32 v{MX}, v{MX+1}")
        a("s_nop 1")
        a(f"v_max_f32 v{MX}, v{MX}, v{MX+1}")
        for i in range(16): a(f"v_sub_f32 v{NEG+i}, 0, v{MX}")
        for i in range(16): a(f"v_mov_b32 v{O+16*t+i}, 0")
        for i in range(4): a(f"v_mov_b32 v{L+4*t+i}, 0")
        a(f"s_mov_b32 s{S_T3}, 0")
        a.label(f"L_fb2_{t}")
        a(f"buffer_load_dwordx4 {vr(KF,4)}, v{VDMA}, s[{SRD_KV}:{SRD_KV+3}], s{S_T3} offen sc1")
        a(f"buffer_load_dwordx4 {vr(KF+4,4)}, v{VDMA}, s[{SRD_KV}:{SRD_KV+3}], s{S_T3} offen offset:1024 sc1")
        a(f"buffer_load_dwordx4 {vr(VF,4)}, v{VDMA}, s[{SRD_KV}:{SRD_KV+3}], s{S_T3} offen offset:2048 sc1")
        a(f"buffer_load_dwordx4 {vr(VF+4,4)}, v{VDMA}, s[{SRD_KV}:{SRD_KV+3}], s{S_T3} offen offset:3072 sc1")
        a("s_waitcnt vmcnt(0)")
        a(f"v_mfma_f32_32x32x16_bf16 {vr(SS,16)}, {vr(KF,4)}, {vr(Q+t*8,4)}, {vr(NEG,16)}")
        a(f"v_mfma_f32_32x32x16_bf16 {vr(SS,16)}, {vr(KF+4,4)}, {vr(Q+t*8+4,4)}, {vr(SS,16)}")
        a("s_nop 15")
        for i in range(16): a(f"v_exp_f32 v{SS+i}, v{SS+i}")
        a("s_nop 1")
        for i in range(8): a(f"v_cvt_pk_bf16_f32 v{PP+i}, v{SS+2*i}, v{SS+2*i+1}")
        a("s_nop 2")
        a(f"v_mfma_f32_32x32x16_bf16 {vr(O+16*t,16)}, {vr(VF,4)}, {vr(PP,4)}, {vr(O+16*t,16)}")
        a(f"v_mfma_f32_32x32x16_bf16 {vr(O+16*t,16)}, {vr(VF+4,4)}, {vr(PP+4,4)}, {vr(O+16*t,16)}")
        a(f"v_smfmac_f32_16x16x64_bf16 {vr(L+4*t,4)}, {vr(ONES,4)}, {vr(PP,8)}, v{IDX}")
        a("s_nop 15")
        a(f"s_add_u32 s{S_T3}, s{S_T3}, 4096")
        a(f"s_cmp_lt_u32 s{S_T3}, 262144")
        a(f"s_cbranch_scc1 L_fb2_{t}")
    a("s_nop 7")
    lsum(False)
    a("s_nop 1")
    for t in range(NT): a(f"v_rcp_f32 v{LS+2+t}, v{LS+t}")
    a("s_nop 0")
    norm_store()
    a.label("L_norm")
    a(f"s_cmp_lg_u32 s{S_PASS}, 0")
    a(f"s_cbranch_scc1 L_attn_done")
    a(f"s_mov_b32 s{S_PASS}, 1")
    a(f"s_add_u32 s{S_OO}, s{S_OO}, 1024")
    a(f"s_mov_b32 s{S_LOOP}, 2")
    for i in range(0, 16, 2): a(f"v_pk_mov_b32 {vr(Q+i,2)}, {vr(Q+16+i,2)}, {vr(Q+16+i,2)} op_sel:[0,1]")
    a("s_waitcnt lgkmcnt(0)")
    a(f"v_mfma_f32_32x32x16_bf16 {vr(S[0],16)}, {vr(K[0],4)}, {vr(Q,4)}, 0")
    a(f"v_mfma_f32_32x32x16_bf16 {vr(S[0],16)}, {vr(K[0]+4,4)}, {vr(Q+4,4)}, {vr(S[0],16)}")
    for i in range(0, 32, 2): a(f"v_pk_mov_b32 {vr(O+i,2)}, {vr(O+32+i,2)}, {vr(O+32+i,2)} op_sel:[0,1]")
    for i in range(0, 8, 2): a(f"v_pk_mov_b32 {vr(L+i,2)}, {vr(L+8+i,2)}, {vr(L+8+i,2)} op_sel:[0,1]")
    for i in range(8): a(f"v_mov_b32 v{P[1]+i}, 0")
    a("s_branch L_attnX")
    a.label("L_attn_done")
    if not cfg.get('ost'): stamp(a, cfg, 6)
    def o_reads(st, s, fset):
        wo_ = (st % 4)*16384
        ob = OSL[st % 6]
        xa, oo = (OXA+1, ob-131072) if ob >= 131072 else (OXA, ob)
        o = []
        for cc in range(4):
            o.append(f"ds_read_b64_tr_b16 {vr(FA[fset]+4*cc,2)}, v{OWA+cc} offset:{wo_ + (32*s)*256}")
            o.append(f"ds_read_b64_tr_b16 {vr(FA[fset]+4*cc+2,2)}, v{OWA+cc} offset:{wo_ + (32*s+8)*256}")
            o.append(f"ds_read_b128 {vr(FB[fset]+4*cc,4)}, v{xa} offset:{oo + cc*2048 + s*1024}")
        return o
    for st in range(16):
        if st == int(cfg.get('flagat', 2)): a("s_waitcnt vmcnt(0) lgkmcnt(0)")
        else: a("s_waitcnt lgkmcnt(0)")
        a("s_barrier")
        if cfg.get('ost'):
            mp = {0:1, 4:2, 8:3, 12:6, 15:7}
            if st in mp: stamp(a, cfg, mp[st])
        elif st == 2: stamp(a, cfg, 7)
        r0 = o_reads(st, 0, 0); r1 = o_reads(st, 1, 1)
        r0 = order_reads(r0); r1 = order_reads(r1)
        if st == 0: a(r0)
        else: phase(a, gemm_mfmas(ACC,FA,FB,1), r0)
        phase(a, gemm_mfmas(ACC,FA,FB,0, czero=(st == 0)), r1, counted=True)
    a("s_waitcnt lgkmcnt(0)")
    OUTF = cfg.get('outflags', 'sc0 sc1')
    fin = gemm_mfmas(ACC,FA,FB,1, order='rt')
    R = 96; R2 = 160
    def conv(rt):
        qs_ = []
        for cp in range(2):
            x = ACC + ((2*cp)*4+rt)*4; y = ACC + ((2*cp+1)*4+rt)*4
            q = R + 8*rt + 4*cp; qs_.append(q)
            a(f"v_cvt_pk_bf16_f32 v{q}, v{x}, v{x+1}")
            a(f"v_cvt_pk_bf16_f32 v{q+1}, v{x+2}, v{x+3}")
            a(f"v_cvt_pk_bf16_f32 v{q+2}, v{y}, v{y+1}")
            a(f"v_cvt_pk_bf16_f32 v{q+3}, v{y+2}, v{y+3}")
        a("s_nop 1")
        for q in qs_:
            a(f"v_permlane16_swap_b32 v{q}, v{q+2}")
            a(f"v_permlane16_swap_b32 v{q+1}, v{q+3}")
        a("s_nop 0")
        for cp, q in enumerate(qs_):
            a(f"ds_write_b128 v{VTW+cp}, {vr(q,4)} offset:{rt*2048}")
        for i in (2*rt, 2*rt+1): a(f"ds_read_b128 {vr(R2+4*i,4)}, v{VTR} offset:{i*1024}")
    def put(rt, nleft):
        for k, i in enumerate((2*rt, 2*rt+1)):
            a(f"s_add_u32 s{S_T0}, s{S_OUTS}, {i*8*4096}")
            a(f"s_waitcnt lgkmcnt({nleft + 1 - k})")
            a(f"buffer_store_dwordx4 {vr(R2+4*i,4)}, v{VOUT}, s[{SRD_OUT}:{SRD_OUT+3}], s{S_T0} offen {OUTF}")
    a(fin[0:12])
    conv(0)
    a(fin[12:16])
    conv(1)
    put(0, 4)
    conv(2)
    put(1, 4)
    a("s_nop 3")
    conv(3)
    put(2, 4)
    put(3, 0)
    if cfg.get('stamps'):
        a("s_waitcnt vmcnt(0)")
        stamp(a, cfg, 8)
        stamp_store(a, cfg, 9, 0, "L_k1_ss")
        if cfg.get('dbgout'):
            WGSEL = int(cfg.get('dbgwg', 0))
            a(f"s_cmp_lg_u32 s{S_WG}, {WGSEL}")
            a("s_cbranch_scc1 L_dd")
            a(f"s_cmp_lg_u32 s{S_W}, 0")
            a("s_cbranch_scc1 L_dd")
            a("v_mov_b32 v6, 0")
            a("s_mov_b64 exec, 1")
            for i in range(1, 9):
                a(f"s_sub_u32 s{S_T0}, s{ST0+2*i}, s{ST0}")
                a(f"v_mov_b32 v5, s{S_T0}")
                a(f"global_store_dword v6, v5, s[{PTR+22}:{PTR+23}] offset:{4*i}")
            a.label("L_dd")
    a("s_endpgm")

    a.label("L_loader")
    VOX=2; VOW=6; VOWKV=10; VL=11; POLL=12; VOWO=13; VOB=17; WREG=40
    SRD_WO=12; S_FLAG=74
    X1=T+2; X2=T+3
    a(f"v_lshrrev_b32 v{T}, 3, v0")
    a(f"v_lshrrev_b32 v{T+1}, 4, v0")
    a(f"v_and_b32 v{X1}, 7, v0")
    a(f"v_xor_b32 v{X1}, v{X1}, v{T+1}")
    a(f"v_lshlrev_b32 v{X1}, 4, v{X1}")
    a(f"v_lshl_add_u32 v{VOX}, v{T}, 11, v{X1}")
    a(f"v_xor_b32 v{X2}, 64, v{VOX}")
    a(f"v_add_u32 v{VOX+2}, {2*15360}, v{VOX}")
    a(f"v_add_u32 v{VOX+1}, {15360}, v{X2}")
    a(f"v_add_u32 v{VOX+3}, {3*15360}, v{X2}")
    a(f"s_lshl_b32 s{S_T0}, s{S_R}, 18")
    a(f"s_lshr_b32 s{S_T1}, s{S_G}, 1")
    a(f"s_lshl_b32 s{S_T1}, s{S_T1}, 16")
    a(f"s_add_u32 s{S_XKV}, s{S_T0}, s{S_T1}")
    a(f"s_lshl_b32 s{S_T1}, s{S_W}, 7")
    a(f"s_add_u32 s{S_XKV}, s{S_XKV}, s{S_T1}")
    def late_setup():
        a(f"v_lshrrev_b32 v{X1}, 5, v0")
        a(f"v_lshlrev_b32 v{X1}, 1, v{X1}")
        a(f"v_and_b32 v{X2}, 3, v0")
        a(f"v_xor_b32 v{X1}, v{X1}, v{X2}")
        a(f"v_lshlrev_b32 v{X1}, 4, v{X1}")
        a(f"v_lshrrev_b32 v{X2}, 2, v0")
        a(f"v_lshl_add_u32 v{VOWKV}, v{X2}, 6, v{X1}")
        a(f"s_cmp_lg_u32 s{S_B}, 0")
        sel_ptr(a, S_T0, 4, 14)
        sel_ptr(a, S_T2, 6, 16)
        sel_ptr(a, SRD_WQ, 2, 12)
        a(f"s_cmp_lg_u32 s{S_TYPE}, 0")
        a(f"s_cselect_b32 s{SRD_WKV}, s{S_T2}, s{S_T0}")
        a(f"s_cselect_b32 s{SRD_WKV+1}, s{S_T2+1}, s{S_T0+1}")
        srd_tail(a, SRD_WKV, 1024*64)
        srd_tail(a, SRD_WQ, 1024*2048)
        a(f"s_lshl_b32 s{S_T0}, s{S_R}, 18")
        a(f"s_lshl_b32 s{S_T1}, s{S_W}, 16")
        a(f"s_add_u32 s{S_XQ}, s{S_T0}, s{S_T1}")
        a(f"s_lshl_b32 s{S_T1}, s{S_W}, 15")
        a(f"s_lshl_b32 s{S_T2}, s{S_G}, 8")
        a(f"s_add_u32 s{S_WQ}, s{S_T1}, s{S_T2}")
        QR = cfg.get('qrot', 'g2r')
        if QR == 'g2r':
            a(f"s_lshl_b32 s{S_QROT}, s{S_G}, 1")
            a(f"s_and_b32 s{S_T4}, s{S_R}, 1")
            a(f"s_add_u32 s{S_QROT}, s{S_QROT}, s{S_T4}")
        elif QR == 'none': a(f"s_mov_b32 s{S_QROT}, 0")
    S_QROT = S_KVM0
    a("s_waitcnt lgkmcnt(0)")
    a(f"s_cmp_lg_u32 s{S_B}, 0")
    sel_ptr(a, SRD_X, 0, 10)
    srd_tail(a, SRD_X, 2048*2048)
    vm = VM()
    LDF = 'sc1'
    SEQL = front_seq(cfg)
    def dma_stage(gs):
        o = []
        slot = gs % NSLOT
        ty, j = SEQL[gs]
        if ty == 'K':
            o.append(f"s_add_u32 m0, s{S_M0}, {slot*SLOT}")
            o.append(f"s_add_u32 s{S_OFFA}, s{S_XKV}, {j*512}")
            for i in range(4):
                o.append(f"buffer_load_dwordx4 v{VOX+i}, s[{SRD_X}:{SRD_X+3}], s{S_OFFA} offen offset:{i*1024} lds"); vm.issue(('st',gs))
            o.append(f"s_add_u32 m0, s{S_M0}, {slot*SLOT+16384}")
            o.append(f"s_add_u32 s{S_OFFB}, s{S_M0}, {j*16384}")
            for i in range(4):
                o.append(f"buffer_load_dwordx4 v{VOWKV}, s[{SRD_WKV}:{SRD_WKV+3}], s{S_OFFB} offen offset:{i*1024} lds"); vm.issue(('st',gs))
        else:
            qs = j
            o.append(f"s_add_u32 s{S_T4}, s{S_QROT}, {qs}")
            o.append(f"s_and_b32 s{S_T4}, s{S_T4}, 15")
            o.append(f"s_lshl_b32 s{S_OFFA}, s{S_T4}, 7")
            o.append(f"s_add_u32 s{S_OFFA}, s{S_OFFA}, s{S_XQ}")
            o.append(f"s_lshl_b32 s{S_OFFB}, s{S_T4}, 17")
            if cfg.get('diag_w0'): o.append(f"s_mov_b32 s{S_OFFB}, 0")
            if cfg.get('diag_x0'): o.append(f"s_mov_b32 s{S_OFFA}, s{S_XQ}")
            o.append(f"s_add_u32 s{S_OFFB}, s{S_OFFB}, s{S_WQ}")
            xs = [f"s_add_u32 m0, s{S_M0}, {slot*SLOT}", "s_nop 0"] + [f"buffer_load_dwordx4 v{VOX+i}, s[{SRD_X}:{SRD_X+3}], s{S_OFFA} offen offset:{i*1024} lds" for i in range(4)]
            wsl = [f"s_add_u32 m0, s{S_M0}, {slot*SLOT+16384}", "s_nop 0"] + [f"buffer_load_dwordx4 v{VOW+j}, s[{SRD_WQ}:{SRD_WQ+3}], s{S_OFFB} offen offset:{j*1024} lds" for j in range(4)]
            o += (xs + wsl) if cfg.get('xfirst') else (wsl + xs)
            for _ in range(8): vm.issue(('st',gs))
        return o
    firstQ = min(u for u, (ty, j) in enumerate(SEQL) if ty == 'Q')
    assert firstQ >= 1
    d0 = dma_stage(0)
    a(d0[:6]); late_setup(); a(d0[6:])
    for gs in range(1, min(firstQ, 5)): a(dma_stage(gs))
    gen_vow(a, VOW, T, lambda j: (j>>1)&1)
    for gs in range(min(firstQ, 5), 5): a(dma_stage(gs))
    lastKL = max(u for u, (ty, j) in enumerate(SEQL) if ty == 'K')
    PUB = lastKL + int(cfg.get('pubd', 4))
    gen_vow(a, VOWO, T, lambda j: j&1)
    a(f"v_lshlrev_b32 v{VL}, 4, v0")
    a(f"v_lshlrev_b32 v{VOB}, 4, v0")
    a(f"v_add_u32 v{VOB+1}, {32768-2048}, v{VOB}")
    a(f"s_lshl_b32 s{S_T0}, s{S_B}, 18")
    a(f"s_add_u32 s{SRD_KV}, s{PTR+24}, s{S_T0}")
    a(f"s_addc_u32 s{SRD_KV+1}, s{PTR+25}, 0")
    srd_tail(a, SRD_KV, 262144)
    a(f"s_lshl_b32 s{S_T0}, s{S_B}, 22")
    a(f"s_add_u32 s{S_T0}, s{S_T0}, {WS_O}")
    a(f"s_add_u32 s{SRD_O}, s{PTR+24}, s{S_T0}")
    a(f"s_addc_u32 s{SRD_O+1}, s{PTR+25}, 0")
    srd_tail(a, SRD_O, 4*1024*1024)
    a(f"s_lshl_b32 s{S_T0}, s{S_B}, 7")
    a(f"s_add_u32 s{S_CNT}, s{PTR+22}, s{S_T0}")
    a(f"s_addc_u32 s{S_CNT+1}, s{PTR+23}, 0")
    a(f"s_lshl_b32 s{S_T0}, s{S_B}, 4")
    a(f"s_add_u32 s{S_T0}, s{S_T0}, s{S_R}")
    a(f"s_lshl_b32 s{S_T0}, s{S_T0}, 7")
    a(f"s_add_u32 s{S_T0}, s{S_T0}, {WS_F}")
    a(f"s_add_u32 s{S_FLAG}, s{PTR+24}, s{S_T0}")
    a(f"s_addc_u32 s{S_FLAG+1}, s{PTR+25}, 0")
    a(f"s_lshl_b32 s{S_T0}, s{S_G}, 2")
    a(f"v_mov_b32 v{T}, s{S_T0}")
    a(f"v_mov_b32 v{T+1}, 0")
    a(f"s_cmp_lg_u32 s{S_W}, 0")
    a(f"s_cbranch_scc1 L_nozero")
    a(f"s_mov_b64 exec, 1")
    a(f"global_store_dword v{T}, v{T+1}, s[{S_FLAG}:{S_FLAG+1}] sc1")
    a(f"s_mov_b64 exec, -1")
    a.label("L_nozero")
    zero_pos = len(vm.ops)
    S_M8 = S_KVOFF
    a(f"s_lshl_b32 s{S_M8}, s{S_W}, 13")
    KVB = [0, 32768, 131072]
    def kv_dma(st):
        o = []
        for h in range(2):
            o.append(f"s_add_u32 m0, s{S_M8}, {KVB[st%3] + h*4096}")
            o.append(f"s_add_u32 s{S_OFFA}, s{S_M8}, {st*32768 + h*4096}")
            for i in range(4):
                o.append(f"buffer_load_dwordx4 v{VL}, s[{SRD_KV}:{SRD_KV+3}], s{S_OFFA} offen offset:{i*1024} {LDF} lds"); vm.issue(('kv',st))
        return o
    def touch():
        a(f"v_lshrrev_b32 v{T}, 4, v0")
        a(f"v_lshlrev_b32 v{T}, 11, v{T}")
        a(f"v_and_b32 v{T+1}, 15, v0")
        a(f"v_lshlrev_b32 v{T+1}, 7, v{T+1}")
        a(f"v_add_u32 v{T}, v{T}, v{T+1}")
        a(f"s_lshl_b32 s{S_T0}, s{S_R}, 18")
        a(f"s_lshl_b32 s{S_T1}, s{S_G}, 15")
        a(f"s_add_u32 s{S_T0}, s{S_T0}, s{S_T1}")
        a(f"s_lshl_b32 s{S_T1}, s{S_W}, 13")
        a(f"s_add_u32 s{S_T0}, s{S_T0}, s{S_T1}")
        a(f"buffer_load_dword v{WREG}, v{T}, s[{SRD_X}:{SRD_X+3}], s{S_T0} offen"); vm.issue('tch')
        a(f"v_lshrrev_b32 v{T}, 1, v0")
        a(f"v_lshlrev_b32 v{T}, 11, v{T}")
        a(f"v_and_b32 v{T+1}, 1, v0")
        a(f"v_lshlrev_b32 v{T+1}, 7, v{T+1}")
        a(f"v_add_u32 v{T}, v{T}, v{T+1}")
        a(f"s_and_b32 s{S_T0}, s{S_R}, 3")
        a(f"s_lshl_b32 s{S_T0}, s{S_T0}, 19")
        a(f"s_lshl_b32 s{S_T1}, s{S_W}, 17")
        a(f"s_add_u32 s{S_T0}, s{S_T0}, s{S_T1}")
        a(f"s_lshl_b32 s{S_T1}, s{S_G}, 8")
        a(f"s_add_u32 s{S_T0}, s{S_T0}, s{S_T1}")
        a(f"buffer_load_dword v{WREG+1}, v{T}, s[{SRD_WQ}:{SRD_WQ+3}], s{S_T0} offen"); vm.issue('tch')
        a(f"s_add_u32 s{S_T0}, s{S_T0}, {32*2048}")
        a(f"buffer_load_dword v{WREG+2}, v{T}, s[{SRD_WQ}:{SRD_WQ+3}], s{S_T0} offen"); vm.issue('tch')
    TOUCHAT = int(cfg.get('touchat', -1))
    POLLAT = int(cfg.get('pollat', 14))
    for gs in range(20):
        need = vm.wait_n(('st',gs))
        if gs == PUB: need = min(need, len(vm.ops) - zero_pos)
        if gs == 16: need = min(need, vm.wait_n('poll'))
        a(f"s_waitcnt vmcnt({need})")
        a("s_barrier")
        if gs == POLLAT:
            a(f"v_mov_b32 v{T}, 0")
            a(f"global_load_dword v{POLL}, v{T}, s[{S_CNT}:{S_CNT+1}] sc1"); vm.issue('poll')
        if gs >= 1 and gs+4 < 20:
            d = dma_stage(gs+4)
            if cfg.get('q_nodma') and gs >= 3: d = [x for x in d if 'buffer_load' not in x]
            a(d)
        if gs == TOUCHAT: touch()
        if gs == 16:
            a(f"v_readfirstlane_b32 s{S_T0}, v{POLL}")
            a("s_nop 3")
            a(f"s_cmp_ge_u32 s{S_T0}, 128")
            a(f"s_cbranch_scc1 L_kvready")
            a(f"s_mov_b32 s{S_LOOP}, {SPINMAX}")
            a.label("L_spin")
            a(f"s_sub_u32 s{S_LOOP}, s{S_LOOP}, 1")
            a(f"s_cbranch_scc1 L_kvready")
            a("s_sleep 2")
            a(f"v_mov_b32 v{T}, 0")
            a(f"global_load_dword v{POLL}, v{T}, s[{S_CNT}:{S_CNT+1}] sc1")
            a("s_waitcnt vmcnt(0)")
            a(f"v_readfirstlane_b32 s{S_T0}, v{POLL}")
            a("s_nop 3")
            a(f"s_cmp_lt_u32 s{S_T0}, 128")
            a(f"s_cbranch_scc1 L_spin")
            a.label("L_kvready")
            a(kv_dma(0))
        if gs == 17: a(kv_dma(1))
    a(f"s_waitcnt vmcnt({vm.wait_n(('kv',0))})")
    a("s_barrier")
    a(f"s_cmp_lg_u32 s{S_B}, 0")
    sel_ptr(a, SRD_WO, 8, 18)
    srd_tail(a, SRD_WO, 1024*2048)
    S_WOB = S_WQ
    a(f"s_lshr_b32 s{S_T0}, s{S_W}, 1")
    a(f"s_lshl_b32 s{S_T0}, s{S_T0}, 17")
    a(f"s_and_b32 s{S_T1}, s{S_W}, 1")
    a(f"s_lshl_b32 s{S_T1}, s{S_T1}, 15")
    a(f"s_add_u32 s{S_T0}, s{S_T0}, s{S_T1}")
    a(f"s_lshl_b32 s{S_T1}, s{S_G}, 8")
    a(f"s_add_u32 s{S_WOB}, s{S_T0}, s{S_T1}")
    a(f"s_lshl_b32 s{S_T0}, s{S_R}, 3")
    a(f"s_lshl_b32 s{S_T1}, s{S_W}, 1")
    a(f"s_add_u32 s{S_T0}, s{S_T0}, s{S_T1}")
    a(f"s_lshl_b32 s{S_XQ}, s{S_T0}, 15")
    def head_off(dst, i, shift, base):
        return [f"s_add_u32 s{dst}, s{S_G}, {i}", f"s_and_b32 s{dst}, s{dst}, 7", f"s_lshl_b32 s{dst}, s{dst}, {shift+2}",
                f"s_add_u32 s{dst}, s{dst}, s{base}"] + ([f"s_add_u32 s{dst}, s{dst}, {1 << shift}"] if i >= 8 else [])
    def wo_dma(i):
        o = [f"s_add_u32 m0, s{S_M0}, {65536 + (i%4)*16384}"] + head_off(S_OFFB, i, 16, S_WOB)
        for j in range(4):
            o.append(f"buffer_load_dwordx4 v{VOWO+j}, s[{SRD_WO}:{SRD_WO+3}], s{S_OFFB} offen offset:{j*1024} lds"); vm.issue(('wo',i))
        return o
    VTCH = T+4
    a(f"v_lshrrev_b32 v{VTCH}, 1, v0")
    a(f"v_lshlrev_b32 v{VTCH}, 11, v{VTCH}")
    a(f"v_and_b32 v{VTCH+1}, 1, v0")
    a(f"v_lshlrev_b32 v{VTCH+1}, 7, v{VTCH+1}")
    a(f"v_add_u32 v{VTCH}, v{VTCH}, v{VTCH+1}")
    def wo_touch(i):
        o = head_off(S_OFFB, i, 16, S_WOB)
        o.append(f"buffer_load_dword v{WREG+i}, v{VTCH}, s[{SRD_WO}:{SRD_WO+3}], s{S_OFFB} offen"); vm.issue(('wt',i))
        return o
    VO4 = 20
    for k in range(4): a(f"v_add_u32 v{VO4+k}, {(k>>1)*32768 + (k&1)*2048 - k*1024}, v{VL}")
    def o_dma(i):
        o = [f"s_add_u32 m0, s{S_M0}, {OSL[i%6]}"] + head_off(S_OFFA, i, 10, S_XQ)
        for k in range(4):
            o.append(f"buffer_load_dwordx4 v{VO4+k}, s[{SRD_O}:{SRD_O+3}], s{S_OFFA} offen offset:{k*1024} {LDF} lds"); vm.issue(('o',i))
        return o
    a(f"s_lshl_b32 s{S_T0}, s{S_G}, 2")
    a(f"v_mov_b32 v{T}, s{S_T0}")
    a(f"v_and_b32 v{T+3}, 7, v0")
    a(f"v_lshlrev_b32 v{T+3}, 2, v{T+3}")
    def set_flag(val, lab):
        a(f"v_mov_b32 v{T+1}, {val}")
        a(f"s_cmp_lg_u32 s{S_W}, 0")
        a(f"s_cbranch_scc1 {lab}")
        a(f"s_mov_b64 exec, 1")
        a(f"global_store_dword v{T}, v{T+1}, s[{S_FLAG}:{S_FLAG+1}] sc1")
        a(f"s_mov_b64 exec, -1")
        a.label(lab)
    def spin(val, lab):
        a(f"s_mov_b32 s{S_LOOP}, {SPINMAX}")
        a.label(lab)
        a(f"s_sub_u32 s{S_LOOP}, s{S_LOOP}, 1")
        a(f"s_cbranch_scc1 {lab}_ok")
        a(f"global_load_dword v{POLL}, v{T+3}, s[{S_FLAG}:{S_FLAG+1}] sc1")
        a("s_waitcnt vmcnt(0)")
        a(f"v_cmp_le_u32 vcc, {val}, v{POLL}")
        a("s_nop 4")
        a(f"s_cmp_eq_u64 vcc, exec")
        a(f"s_cbranch_scc1 {lab}_ok")
        a("s_sleep 1")
        a(f"s_branch {lab}")
        a.label(f"{lab}_ok")
        vm.ops = []
    def kv_dma2(idx):
        o = []
        st = KVSEQ[idx]
        for h in range(2):
            o.append(f"s_add_u32 m0, s{S_M8}, {KVB[idx%3] + h*4096}")
            o.append(f"s_add_u32 s{S_OFFA}, s{S_M8}, {st*32768 + h*4096}")
            for i in range(4):
                o.append(f"buffer_load_dwordx4 v{VL}, s[{SRD_KV}:{SRD_KV+3}], s{S_OFFA} offen offset:{i*1024} {LDF} lds"); vm.issue(('kv',idx))
        return o
    for j in range(1, 11):
        if j <= 9: a(f"s_waitcnt vmcnt({vm.wait_n(('kv',j))})")
        if not cfg.get('a_nobar'): a("s_barrier")
        if j+1 <= 9: a(kv_dma2(j+1))
        if j <= 8:
            for i in (2*(j-1), 2*(j-1)+1):
                a(wo_dma(i) if i < 4 else wo_touch(i))
        if j == 9:
            set_flag(1, "L_nf1")
    spin(1, "L_sp1")
    for i in range(4): a(o_dma(i))
    a(f"s_waitcnt vmcnt({vm.wait_n(('o',0))})")
    a("s_barrier")
    stamp(a, cfg, 0)
    for i in range(4, 6): a(o_dma(i))
    FLAT = int(cfg.get('flagat', 2))
    LATEAT = int(cfg.get('lateat', 6))
    nxt = 6
    for st in range(1, 16):
        need = vm.wait_n(('o',st))
        if st >= 4: need = min(need, vm.wait_n(('wo',st)))
        a(f"s_waitcnt vmcnt({need})")
        a("s_barrier")
        if st == FLAT:
            if not cfg.get('ost'): stamp(a, cfg, 1)
            set_flag(2, "L_nf2")
        if st+3 < 16: a(wo_dma(st+3))
        lim = st+5
        if st == LATEAT:
            pend = list(vm.ops)
            spin(2, "L_sp2")
            if not cfg.get('ost'): stamp(a, cfg, 2)
            vm.ops = pend
            vm.ops = []
            vm.issue(('wo', st+3))
            for q_ in range(st+1, nxt): vm.issue(('o', q_))
            for q_ in range(st+1, st+3): vm.issue(('wo', q_))
        while nxt <= min(lim, 15) and (nxt < 8 or (nxt == 8 and st >= FLAT) or st >= LATEAT):
            a(o_dma(nxt)); nxt += 1
        if st == LATEAT+1: stamp(a, cfg, 3)
    if cfg.get('stamps'): stamp_store(a, cfg, 4, 1, "L_ld_ss")
    a.label("L_end")
    a("s_endpgm")
    if cfg.get('loaderfirst'):
        L = a.l
        ib = next(i for i, x in enumerate(L) if x.strip() == "s_cbranch_scc1 L_loader")
        il = L.index("L_loader:")
        head, comp, load = L[:ib], L[ib+1:il], L[il+1:]
        a.l = head + ["  s_cbranch_scc0 L_compute"] + load + ["L_compute:"] + comp
    a.label("L_code_end")
    a("s_endpgm")
    return a

DOC = """
;
; Waves 0-3 compute, waves 4-7 only move data (LDS-DMA) and poll hand-off words.
"""

def build(cfg):
    cfg = dict(cfg)
    cfg.setdefault('k1', NAME + '_kernel')
    hdr = open('cdna_kernels/' + NAME + '.s.ref').read().split('\n')
    head = [l for l in hdr if l.startswith(';') and '@launch' not in l and 'Override launch' not in l and 'grid=ceil' not in l]
    out = head[:15]
    out.append("; @launch grid=(256,1,1) block=(512,1,1) lds=163840")
    out += DOC.strip("\n").split("\n")
    out.append('.amdgcn_target "amdgcn-amd-amdhsa--gfx950"')
    out.append('.text')
    out.append(gen_fused(cfg).text())
    out.append('.section .rodata,"a"')
    out.append('.p2align 6'); out.append(kd(cfg['k1'], 256, 102))
    return "\n".join(out) + "\n"

if __name__ == "__main__":
    cfg = {}
    outfn = 'cdna_kernels/' + NAME + '.s'
    for arg in sys.argv[1:]:
        if arg.startswith('-o'): outfn = arg[2:]
        elif '=' in arg:
            k, v = arg.split('=', 1); cfg[k] = v
        else: cfg[arg] = True
    txt = build(cfg)
    open(outfn, 'w').write(txt)
    print("wrote", outfn)
```
